```python
import torch

def _softmax(x, axis=-1):
    return torch.softmax(x, dim=axis)

def _gelu(x):
    return torch.nn.functional.gelu(x, approximate='tanh')

def _silu(x):
    return torch.nn.functional.silu(x)

def _sigmoid(x):
    return torch.sigmoid(x)

def _layernorm(x, axis=-1, eps=1e-05):
    m = x.mean(dim=axis, keepdim=True)
    v = x.var(dim=axis, keepdim=True, unbiased=False)
    return (x - m) / torch.sqrt(v + eps)

def _scatter_add(tgt, idx, src, axis=0):
    return tgt.clone().index_add_(axis, idx, src)

def _segment_sum(src, seg, n):
    out = torch.zeros((n,) + src.shape[1:], dtype=src.dtype)
    return out.index_add_(0, seg, src)

def _pad(x, pw):
    flat = tuple((v for pair in reversed(pw) for v in pair))
    return torch.nn.functional.pad(x, flat)
kernel_name = 'recurrent_scan__memory_aug_recurrent_mem_tr__dense_activation_squared_relu__prompt'

def setup_inputs():

    _w = lambda a: (lambda t: t.to(torch.bfloat16) if t.is_floating_point() else t)(torch.as_tensor(a))

    def _A_setup():
        B, S, Dm = (1, 2048, 512)
        H, Dh = (32, 128)
        M, seg = (8, 32)
        seg = min(seg, S)
        S = S // seg * seg
        return {'x': _w((lambda *s: torch.randn(*s, dtype=torch.bfloat16) * 0.05)(B, S, Dm)), 'mem0': _w((lambda *s: torch.randn(*s, dtype=torch.bfloat16) * 0.2)(B, M, Dm)), 'Wq': _w((lambda *s: torch.randn(*s, dtype=torch.bfloat16) * 1.6)(Dm, H, Dh) * Dm ** (-0.5)), 'Wk': _w((lambda *s: torch.randn(*s, dtype=torch.bfloat16) * 1.6)(Dm, H, Dh) * Dm ** (-0.5)), 'Wv': _w((lambda *s: torch.randn(*s, dtype=torch.bfloat16) * 0.2)(Dm, H, Dh) * Dm ** (-0.5)), 'Wo': _w((lambda *s: torch.randn(*s, dtype=torch.bfloat16) * 0.2)(H, Dh, Dm) * (H * Dh) ** (-0.5)), 'seg_len': seg}
    _A_in = _A_setup()

    def _B_setup():
        B, S, D, F = (1, 2048, 512, 1376)
        return {'x': _w((lambda *s: torch.randn(*s, dtype=torch.bfloat16) * 0.05)(B, S, D)), 'w1': _w((lambda *s: torch.randn(*s, dtype=torch.bfloat16) * 0.1)(D, F)), 'b1': _w((lambda *s: torch.randn(*s, dtype=torch.bfloat16) * 0.8)(F)), 'w2': _w((lambda *s: torch.randn(*s, dtype=torch.bfloat16) * 0.1)(F, D)), 'b2': _w((lambda *s: torch.randn(*s, dtype=torch.bfloat16) * 12.8)(D))}
    _B_in = _B_setup()
    return {'A_x': _A_in['x'], 'A_mem0': _A_in['mem0'], 'A_Wq': _A_in['Wq'], 'A_Wk': _A_in['Wk'], 'A_Wv': _A_in['Wv'], 'A_Wo': _A_in['Wo'], 'A_seg_len': _A_in['seg_len'], 'B_x': _B_in['x'], 'B_w1': _B_in['w1'], 'B_b1': _B_in['b1'], 'B_w2': _B_in['w2'], 'B_b2': _B_in['b2']}

def reference(A_x, A_mem0, A_Wq, A_Wk, A_Wv, A_Wo, A_seg_len, B_x, B_w1, B_b1, B_w2, B_b2):

    def _A_ref(x, mem0, Wq, Wk, Wv, Wo, seg_len):
        B, S, Dm = x.shape
        H, Dh = (Wq.shape[1], Wq.shape[2])
        M = mem0.shape[1]
        scale = Dh ** (-0.5)
        n_seg = S // seg_len
        L = M + seg_len
        idx = torch.arange(L)
        mask = (idx[:, None] < M) | (idx[:, None] >= idx[None, :])
        mem = mem0
        outs = []
        for s in range(n_seg):
            xs = x[:, s * seg_len:(s + 1) * seg_len, :].clone()
            h = torch.concatenate([mem, xs], axis=1)
            q = torch.einsum('btd,dhe->bhte', h, Wq)
            k = torch.einsum('btd,dhe->bhte', h, Wk)
            v = torch.einsum('btd,dhe->bhte', h, Wv)
            scores = torch.einsum('bhqe,bhke->bhqk', q, k) * scale
            scores = torch.where(mask[None, None], scores, -1000000000.0)
            p = _softmax(scores, axis=-1)
            o = torch.einsum('bhqk,bhke->bhqe', p, v)
            o = torch.einsum('bhte,hed->btd', o, Wo)
            mem = o[:, :M, :].clone()
            outs.append(o[:, M:, :])
        return torch.concatenate(outs, axis=1)

    def _B_ref(x, w1, b1, w2, b2):
        h = torch.einsum('bsd,df->bsf', x, w1) + b1
        zero = torch.zeros_like(h)
        r = torch.where(h > zero, h, zero)
        h = r * r
        out = torch.einsum('bsf,fd->bsd', h, w2) + b2
        return out
    x = A_x
    xn = _layernorm(x, axis=-1)
    s = _A_ref(xn, A_mem0, A_Wq, A_Wk, A_Wv, A_Wo, A_seg_len)
    g = _silu(_B_ref(xn, B_w1, B_b1, B_w2, B_b2))
    return x + s * g
```

```python
class Asm:
    def __init__(self):
        self.lines = []
        self._uid = 0

    def __call__(self, s):
        for ln in s.strip("\n").split("\n"):
            ln = ln.strip()
            if ln:
                self.lines.append("    " + ln)

    def raw(self, s):
        self.lines.append(s)

    def label(self, name):
        self.lines.append(name + ":")

    def uid(self, prefix="L"):
        self._uid += 1
        return f"{prefix}_{self._uid}"

    def comment(self, s):
        self.lines.append("    ; " + s)

    def text(self):
        return "\n".join(self.lines) + "\n"


def vr(base, n=1):
    return f"v{base}" if n == 1 else f"v[{base}:{base+n-1}]"


def ar(base, n=1):
    return f"a{base}" if n == 1 else f"a[{base}:{base+n-1}]"


def sr(base, n=1):
    return f"s{base}" if n == 1 else f"s[{base}:{base+n-1}]"


def kernel_header(a, name):
    a.raw(f".globl {name}")
    a.raw(".p2align 8")
    a.raw(f".type {name},@function")
    a.label(name)


def kernel_desc(name, vgpr, accum, sgpr=102):
    return f""".amdhsa_kernel {name}
  .amdhsa_next_free_vgpr {vgpr}
  .amdhsa_next_free_sgpr {sgpr}
  .amdhsa_accum_offset {accum}
  .amdhsa_group_segment_fixed_size 0
  .amdhsa_kernarg_size 120
  .amdhsa_user_sgpr_count 2
  .amdhsa_user_sgpr_kernarg_segment_ptr 1
  .amdhsa_system_sgpr_workgroup_id_x 1
.end_amdhsa_kernel
"""


def make_srd(a, d, base, nbytes):
    a(f"s_mov_b32 s{d}, s{base}")
    a(f"s_and_b32 s{d+1}, s{base+1}, 0xffff")
    a(f"s_mov_b32 s{d+2}, {nbytes:#x}")
    a(f"s_mov_b32 s{d+3}, 0x00020000")
```

```python
import sys
sys.path.insert(0, "gen")
from asmlib import *
from layout import *

TIMEOUT = 400000
L_WV = 0x0
L_MIR = 0x20000
L_QL = 0x22000
L_KL = 0x22800
L_OL = 0x23000
L_KX = 0x23800
L_MISC = 0x27800
LDS_BYTES = 163840

S_WS, S_DBG, S_W = 8, 12, 44
S_H, S_WAVE, S_STEP = 16, 17, 18
SCALE_LOG2E = 0x3e029406
import struct, math
def f2u(f):
    return struct.unpack("<I", struct.pack("<f", f))[0]
C_SCALE = f2u(128 ** -0.5 * math.log2(math.e))


def gen_chain(a, opt):
    D1 = opt.get("d1", 8)
    D2 = opt.get("d2", 8)
    NSTEP = opt.get("nstep", 64)
    SC = opt.get("sc", "")
    a("""
    v_and_b32 v120, 15, v1
    v_lshrrev_b32 v121, 4, v1
    v_lshrrev_b32 v122, 2, v120
    v_and_b32 v123, 3, v120
    v_lshlrev_b32 v4, 4, v1
    s_lshl_b32 s19, s17, 15
    """)
    a("s_mov_b32 s36, s19")
    a("""
    v_lshrrev_b32 v24, 2, v1
    v_lshlrev_b32 v24, 13, v24
    v_bfe_u32 v25, v1, 1, 1
    v_lshrrev_b32 v26, 5, v1
    v_xor_b32 v25, v25, v26
    v_lshl_add_u32 v24, v25, 5, v24
    v_and_b32 v25, 1, v1
    v_lshl_add_u32 v24, v25, 4, v24
    s_lshl_b32 s19, s16, 8
    s_lshl_b32 s20, s17, 6
    s_add_u32 s19, s19, s20
    v_add_u32 v24, s19, v24
    """)
    a("""
    v_bfe_u32 v27, v1, 1, 3
    v_xor_b32 v27, v27, v121
    v_lshlrev_b32 v25, 10, v121
    v_lshl_add_u32 v25, v27, 5, v25
    v_and_b32 v27, 1, v1
    v_lshl_add_u32 v25, v27, 4, v25
    s_lshl_b32 s19, s17, 8
    v_add_u32 v25, s19, v25
    v_xor_b32 v26, 0x80, v25
    """)
    a("""
    v_lshl_add_u32 v27, v121, 3, v122
    v_lshlrev_b32 v27, 6, v27
    v_and_b32 v29, 1, v121
    v_lshl_add_u32 v27, v29, 5, v27
    v_lshl_add_u32 v27, v123, 3, v27
    v_add_u32 v27, s36, v27
    v_xor_b32 v28, 32, v27
    """)
    a("""
    v_lshl_add_u32 v29, v121, 3, v122
    v_lshlrev_b32 v29, 8, v29
    v_and_b32 v30, 1, v121
    v_lshl_add_u32 v30, v30, 2, v122
    v_lshl_add_u32 v29, v30, 5, v29
    v_lshl_add_u32 v29, v123, 3, v29
    v_add_u32 v29, s36, v29
    v_add_u32 v31, s36, v4
    """)

    def srd_from_arg(d, arg, nbytes):
        a(f"s_load_dwordx2 s[20:21], s[0:1], {arg}")
        a("s_waitcnt lgkmcnt(0)")
        make_srd(a, d, 20, nbytes)

    srd_from_arg(44, ARG_WQ, 4 << 20)
    srd_from_arg(48, ARG_WK, 4 << 20)
    srd_from_arg(52, ARG_WV, 4 << 20)
    srd_from_arg(56, ARG_WO, 4 << 20)
    srd_from_arg(60, ARG_MEM0, 8192)

    units = [("q", 0), ("q", 1), ("k", 0), ("k", 1), ("o", 0), ("o", 1), ("v", 0), ("v", 1)]
    srd_of = {"q": 44, "k": 48, "v": 52, "o": 56}

    def issue(u):
        kind, hf = units[u]
        srd = srd_of[kind]
        for m in range(16):
            mm = hf * 16 + m
            a(f"s_add_u32 m0, s36, {mm*1024}")
            if kind == "o":
                a(f"s_lshl_b32 s19, s16, 17")
                a(f"s_add_u32 s19, s19, {mm*4096}")
                vo = 26 if (mm >> 1) & 1 else 25
                a(f"buffer_load_dwordx4 v{vo}, s[{srd}:{srd+3}], s19 offen lds")
            else:
                a(f"s_mov_b32 s19, {mm*16*8192}")
                a(f"buffer_load_dwordx4 v24, s[{srd}:{srd+3}], s19 offen lds")

    def consume(u):
        kind, hf = units[u]
        if kind in "qk":
            base = 0 if kind == "q" else 128
            for ks in range(hf * 4, hf * 4 + 4):
                for t in range(2):
                    for ip in range(4):
                        off = ks * 4096 + (ip >> 1) * 2048 + (ip & 1) * 256
                        r = base + (t * 8 + ks) * 8 + ip * 2
                        a(f"ds_read_b64_tr_b16 a[{r}:{r+1}], v{27+t} offset:{off}")
                a("s_waitcnt lgkmcnt(0)")
        elif kind == "o":
            u_ = hf
            for T in range(8):
                a(f"v_xor_b32 v30, {T*32}, v29")
                for ip in range(4):
                    off = (64 * u_ + 32 * (ip >> 1) + 4 * (ip & 1)) * 256
                    r = 128 + (T * 2 + u_) * 8 + ip * 2
                    a(f"ds_read_b64_tr_b16 v[{r}:{r+1}], v30 offset:{off}")
                a("s_waitcnt lgkmcnt(0)")
        else:
            for ks in range(hf * 4, hf * 4 + 4):
                for t in range(2):
                    for ip in range(4):
                        off = ks * 4096 + (ip >> 1) * 2048 + (ip & 1) * 256
                        r = 32 + t * 8 + ip * 2
                        a(f"ds_read_b64_tr_b16 v[{r}:{r+1}], v{27+t} offset:{off}")
                a("s_waitcnt lgkmcnt(0)")
                for q in range(4):
                    a(f"ds_write_b128 v31, v[{32+4*q}:{35+4*q}] offset:{ks*4096+q*1024}")
                a("s_waitcnt lgkmcnt(0)")

    issue(0)
    issue(1)
    a(f"""
    s_lshl_b32 s19, s17, 11
    v_add_u32 v3, s19, v4
    v_add_u32 v2, {WS_MB2:#x}, v3
    v_add_u32 v3, {L_MIR:#x}, v3
    s_lshl_b32 s19, s16, 13
    s_lshl_b32 s20, s17, 11
    s_add_u32 s19, s19, s20
    s_add_u32 s19, s19, {WS_MB1:#x}
    v_add_u32 v5, s19, v4
    """)
    a(f"""
    v_lshrrev_b32 v6, 1, v121
    v_lshlrev_b32 v6, 13, v6
    v_lshl_add_u32 v6, v122, 11, v6
    v_and_b32 v7, 1, v121
    v_lshl_add_u32 v6, v7, 5, v6
    v_lshl_add_u32 v6, v123, 3, v6
    s_lshl_b32 s19, s17, 16
    s_lshl_b32 s20, s16, 6
    s_add_u32 s19, s19, s20
    s_add_u32 s19, s19, {WS_MB1:#x}
    v_add_u32 v6, s19, v6
    """)
    a(f"""
    v_lshrrev_b32 v8, 1, v121
    v_lshl_add_u32 v8, v8, 2, v123
    v_and_b32 v9, 1, v121
    v_lshl_add_u32 v7, v9, 3, v8
    v_lshlrev_b32 v7, 4, v7
    s_lshl_b32 s19, s16, 8
    s_lshl_b32 s20, s17, 2
    s_add_u32 s19, s19, s20
    s_add_u32 s19, s19, {WS_MB2:#x}
    v_add_u32 v7, s19, v7
    v_lshlrev_b32 v15, 10, v8
    v_lshl_add_u32 v15, v9, 2, v15
    s_lshl_b32 s19, s16, 5
    s_lshl_b32 s20, s17, 3
    s_add_u32 s19, s19, s20
    v_add_u32 v15, s19, v15
    v_cmp_ne_u32 vcc, 1, v122
    v_mov_b32 v9, 0x7fffff00
    v_cndmask_b32 v7, v7, v9, vcc
    """)
    a("""
    v_mov_b32 v8, 0x44444444
    v_mov_b32 v9, 0xeeeeeeee
    v_and_b32 v10, 8, v1
    v_cmp_ne_u32 vcc, 0, v10
    v_cndmask_b32 v8, v8, v9, vcc
    """)
    a(f"""
    v_and_b32 v10, 1, v121
    v_lshlrev_b32 v10, 3, v10
    v_lshl_add_u32 v14, v120, 4, v10
    s_lshl_b32 s19, s17, 9
    v_add_u32 v14, s19, v14
    v_lshrrev_b32 v10, 1, v121
    v_lshl_add_u32 v9, v10, 8, v14
    v_add_u32 v9, {L_QL:#x}, v9
    v_add_u32 v14, {L_OL:#x}, v14
    """)
    a(f"""
    v_lshl_add_u32 v10, v121, 2, v122
    v_lshlrev_b32 v10, 4, v10
    v_and_b32 v12, 1, v123
    v_lshl_add_u32 v10, v12, 3, v10
    v_add_u32 v10, {L_QL:#x}, v10
    v_lshrrev_b32 v11, 1, v122
    v_lshlrev_b32 v11, 2, v11
    v_lshl_add_u32 v11, v121, 4, v11
    v_lshrrev_b32 v13, 1, v123
    v_lshl_add_u32 v11, v13, 1, v11
    v_and_b32 v13, 1, v122
    v_add_u32 v11, v11, v13
    v_lshlrev_b32 v11, 4, v11
    v_lshl_add_u32 v11, v12, 3, v11
    v_add_u32 v11, {L_OL:#x}, v11
    """)
    a(f"""
    s_lshl_b32 s19, s16, 13
    s_lshl_b32 s20, s17, 11
    s_add_u32 s19, s19, s20
    v_add_u32 v12, s19, v4
    v_add_u32 v13, {L_MIR:#x}, v4
    """)
    for i in range(4):
        a(f"v_mov_b32 v{20+i}, -1")
    a("buffer_load_dword v32, v15, s[60:63], 0 offen")
    a("s_mov_b32 s19, 0x40000")
    for i in range(2):
        a(f"buffer_store_dwordx4 v[20:23], v5, s[8:11], 0 offen offset:{i*1024} {SC}")
        a(f"buffer_store_dwordx4 v[20:23], v5, s[8:11], s19 offen offset:{i*1024} {SC}")
    for r in range(1, 4):
        a(f"s_mov_b32 s19, {r*8192}")
        a(f"buffer_store_dword v20, v7, s[8:11], s19 offen {SC}")
    a("s_waitcnt vmcnt(7)")
    a(f"buffer_store_dword v32, v7, s[8:11], 0 offen {SC}")
    for u in range(8):
        if u >= 2:
            a(f"s_waitcnt vmcnt({16 if u < 7 else 0})")
        consume(u)
        if u + 2 < 8:
            issue(u + 2)
    a("v_and_b32 v32, 7, v1")
    for d in range(4):
        a(f"""
        v_mov_b32 v{16+d}, 0
        v_cmp_eq_u32 vcc, {2*d}, v32
        v_mov_b32 v33, 0x3f80
        v_cndmask_b32 v{16+d}, v{16+d}, v33, vcc
        v_cmp_eq_u32 vcc, {2*d+1}, v32
        v_mov_b32 v33, 0x3f800000
        v_cndmask_b32 v{16+d}, v{16+d}, v33, vcc
        """)
    a("v_mov_b32 v15, v31")
    a(f"""
    s_lshl_b32 s37, s17, 11
    s_add_u32 s37, s37, {L_KX:#x}
    s_mov_b32 m0, s37
    s_mov_b32 s19, {WS_KF:#x}
    buffer_load_dwordx4 v12, s[8:11], s19 offen lds
    buffer_load_dwordx4 v12, s[8:11], s19 offen offset:1024 lds
    s_mov_b32 s19, {WS_VF:#x}
    buffer_load_dwordx4 v[112:115], v12, s[8:11], s19 offen
    buffer_load_dwordx4 v[116:119], v12, s[8:11], s19 offen offset:1024
    """)
    a(f"""
    s_waitcnt vmcnt(0)
    s_barrier
    s_cmp_lg_u32 s17, 0
    s_cbranch_scc1 C_nobar
    v_mov_b32 v32, 4
    v_mov_b32 v33, 1
    s_mov_b64 exec, 1
    buffer_atomic_add v33, v32, s[12:15], 0 offen sc1
    s_mov_b32 s21, 0
    C_barpoll:
    buffer_load_dword v33, v32, s[12:15], 0 offen sc1
    s_waitcnt vmcnt(0)
    v_readfirstlane_b32 s19, v33
    s_add_u32 s21, s21, 1
    s_cmp_gt_u32 s21, {TIMEOUT}
    s_cbranch_scc1 C_fail
    s_cmp_lt_u32 s19, 32
    s_cbranch_scc1 C_barpoll
    s_mov_b64 exec, -1
    C_nobar:
    s_barrier
    s_memrealtime s[24:25]
    s_memtime s[28:29]
    s_mov_b32 s18, 0
    s_mov_b32 s64, {C_SCALE:#x}
    """)
    MA, AQ, AK, AV, QB, F = 24, 56, 64, 72, 80, 96
    VXN = 112
    VXC = 104
    a(f"""
    C_step:
    s_and_b32 s19, s18, 3
    s_lshl_b32 s22, s19, 13
    s_add_u32 s19, s18, 1
    s_and_b32 s19, s19, 3
    s_lshl_b32 s23, s19, 13
    s_add_u32 s19, s18, 3
    s_and_b32 s19, s19, 3
    s_lshl_b32 s34, s19, 13
    s_and_b32 s19, s18, 1
    s_lshl_b32 s26, s19, 18
    s_xor_b32 s35, s26, 0x40000
    s_lshl_b32 s38, s19, 13
    s_lshl_b32 s39, s18, 18            ; s*256KB
    s_mov_b32 s21, 0
    """)
    for _ in range(D2):
        a("s_nop 3")
    a(f"""
    C_p2:
    buffer_load_dwordx4 v[80:83], v2, s[8:11], s22 offen sc1
    buffer_load_dwordx4 v[84:87], v2, s[8:11], s22 offen offset:1024 sc1
    s_add_u32 s21, s21, 1
    s_cmp_gt_u32 s21, {TIMEOUT}
    s_cbranch_scc1 C_fail
    s_waitcnt vmcnt(0)
    v_max3_u32 v88, v80, v81, v82
    v_max3_u32 v89, v83, v84, v85
    v_max3_u32 v88, v88, v86, v87
    v_max_u32 v88, v88, v89
    v_cmp_eq_u32 vcc, -1, v88
    s_cbranch_vccnz C_p2
    ds_write_b128 v3, v[80:83]
    ds_write_b128 v3, v[84:87] offset:1024
    """)
    for i in range(8):
        a(f"v_mov_b32 v{VXC+i}, v{VXN+i}")
    for i in range(24):
        a(f"v_mov_b32 v{AQ+i}, 0")
    a("s_waitcnt lgkmcnt(0)")
    a("s_barrier")
    for ks in range(8):
        a(f"ds_read_b128 v[{MA+4*ks}:{MA+4*ks+3}], v13 offset:{ks*1024}")
    for i in range(2):
        a(f"buffer_store_dwordx4 v[20:23], v5, s[8:11], s35 offen offset:{i*1024} {SC}")
    a(f"buffer_store_dword v20, v7, s[8:11], s34 offen {SC}")
    a(f"""
    s_xor_b32 s19, s38, 0x2000
    s_add_u32 m0, s37, s19
    s_add_u32 s19, s39, {WS_KF + 0x40000:#x}
    buffer_load_dwordx4 v12, s[8:11], s19 offen lds
    buffer_load_dwordx4 v12, s[8:11], s19 offen offset:1024 lds
    s_add_u32 s19, s39, {WS_VF + 0x40000:#x}
    buffer_load_dwordx4 v[{VXN}:{VXN+3}], v12, s[8:11], s19 offen
    buffer_load_dwordx4 v[{VXN+4}:{VXN+7}], v12, s[8:11], s19 offen offset:1024
    """)
    for ks in range(8):
        a(f"s_waitcnt lgkmcnt({7-ks})")
        for t in range(2):
            b = (t * 8 + ks) * 8
            a(f"v_smfmac_f32_16x16x64_bf16 v[{AQ+4*t}:{AQ+4*t+3}], v[{MA+4*ks}:{MA+4*ks+3}], a[{b}:{b+7}], v8")
    for ks in range(8):
        for t in range(2):
            b = 128 + (t * 8 + ks) * 8
            a(f"v_smfmac_f32_16x16x64_bf16 v[{AK+4*t}:{AK+4*t+3}], v[{MA+4*ks}:{MA+4*ks+3}], a[{b}:{b+7}], v8")

    def combine(acc, dst):
        for i in range(4):
            a(f"v_permlane32_swap_b32 v{acc+i}, v{acc+4+i}")
        for i in range(4):
            a(f"v_add_f32 v{acc+i}, v{acc+i}, v{acc+4+i}")
        a(f"v_cvt_pk_bf16_f32 v{dst}, v{acc}, v{acc+1}")
        a(f"v_cvt_pk_bf16_f32 v{dst+1}, v{acc+2}, v{acc+3}")

    combine(AQ, AQ)
    a(f"ds_write_b64 v9, v[{AQ}:{AQ+1}]")
    combine(AK, AK)
    a(f"ds_write_b64 v9, v[{AK}:{AK+1}] offset:{L_KL-L_QL}")
    for ks in range(8):
        for t in range(2):
            a(f"ds_read_b128 v[96:99], v15 offset:{(ks*2+t)*2048}")
            a(f"ds_read_b128 v[100:103], v15 offset:{(ks*2+t)*2048+1024}")
            a("s_waitcnt lgkmcnt(0)")
            a(f"v_smfmac_f32_16x16x64_bf16 v[{AV+4*t}:{AV+4*t+3}], v[{MA+4*ks}:{MA+4*ks+3}], v[96:103], v8")
    a("s_barrier")
    for ks4 in range(4):
        for u in range(2):
            a(f"ds_read_b64_tr_b16 v[{QB+4*ks4+2*u}:{QB+4*ks4+2*u+1}], v10 offset:{(32*ks4+16*u)*16}")
    KA = 24
    for ks4 in range(4):
        for u in range(2):
            a(f"ds_read_b64_tr_b16 v[{KA+4*ks4+2*u}:{KA+4*ks4+2*u+1}], v10 offset:{(32*ks4+16*u)*16 + L_KL-L_QL}")
    a(f"v_add_u32 v31, s38, v13") if False else None
    a(f"v_add_u32 v124, s38, v13")
    SX0, SX1, SM = 56, 60, 64
    for t in range(2):
        for ks4 in range(4):
            a(f"ds_read_b128 v[{40+4*ks4}:{43+4*ks4}], v124 offset:{L_KX-L_MIR+(t*4+ks4)*1024}")
        a("s_waitcnt lgkmcnt(0)")
        for ks4 in range(4):
            c = "0" if ks4 == 0 else f"v[{SX0+4*t}:{SX0+4*t+3}]"
            a(f"v_mfma_f32_16x16x32_bf16 v[{SX0+4*t}:{SX0+4*t+3}], v[{40+4*ks4}:{43+4*ks4}], v[{QB+4*ks4}:{QB+4*ks4+3}], {c}")
    for ks4 in range(4):
        c = "0" if ks4 == 0 else f"v[{SM}:{SM+3}]"
        a(f"v_mfma_f32_16x16x32_bf16 v[{SM}:{SM+3}], v[{KA+4*ks4}:{KA+4*ks4+3}], v[{QB+4*ks4}:{QB+4*ks4+3}], {c}")
    a(f"s_lshl_b32 s19, s18, 17")
    a(f"s_lshl_b32 s20, s16, 12")
    a(f"s_add_u32 s19, s19, s20")
    a(f"s_add_u32 s19, s19, {WS_KM:#x}")
    for w in range(4):
        lab = a.uid("C_ex")
        a(f"s_cmp_lg_u32 s17, {w}")
        a(f"s_cbranch_scc1 {lab}")
        a(f"buffer_store_dwordx4 v[{KA+4*w}:{KA+4*w+3}], v4, s[8:11], s19 offen offset:{w*1024}")
        a(f"{lab}:")
    for t in range(2):
        a(f"v_cvt_pk_bf16_f32 v{96+2*t}, v{AV+4*t}, v{AV+4*t+1}")
        a(f"v_cvt_pk_bf16_f32 v{97+2*t}, v{AV+4*t+2}, v{AV+4*t+3}")
    combine(AV, AV)
    a(f"""
    s_lshl_b32 s19, s18, 16
    s_lshl_b32 s20, s16, 11
    s_add_u32 s19, s19, s20
    s_lshl_b32 s20, s17, 9
    s_add_u32 s19, s19, s20
    s_add_u32 s19, s19, {WS_VM:#x}
    v_lshlrev_b32 v125, 3, v1
    buffer_store_dwordx2 v[{AV}:{AV+1}], v125, s[8:11], s19 offen
    """)
    a(f"s_cmp_eq_u32 s18, {NSTEP-1}")
    a("s_cbranch_scc1 C_done")
    T0, T1 = 68, 69
    a(f"""
    v_max3_f32 v{T0}, v{SX0}, v{SX0+1}, v{SX0+2}
    v_max3_f32 v{T1}, v{SX0+3}, v{SX1}, v{SX1+1}
    v_max3_f32 v{T0}, v{T0}, v{SX1+2}, v{SX1+3}
    v_max3_f32 v{T1}, v{T1}, v{SM}, v{SM+1}
    v_max3_f32 v{T0}, v{T0}, v{SM+2}, v{SM+3}
    v_max_f32 v{T0}, v{T0}, v{T1}
    v_mov_b32 v{T1}, v{T0}
    v_permlane32_swap_b32 v{T0}, v{T1}
    v_max_f32 v{T0}, v{T0}, v{T1}
    v_mov_b32 v{T1}, v{T0}
    v_permlane16_swap_b32 v{T0}, v{T1}
    v_max_f32 v{T0}, v{T0}, v{T1}
    v_mul_f32 v{T0}, s64, v{T0}
    """)
    for i in range(12):
        a(f"v_fma_f32 v{SX0+i}, v{SX0+i}, s64, -v{T0}")
    for i in range(12):
        a(f"v_exp_f32 v{SX0+i}, v{SX0+i}")
    a(f"""
    v_add_f32 v{T0}, v{SM}, v{SM+1}
    v_add_f32 v{T1}, v{SM+2}, v{SM+3}
    v_add_f32 v{T0}, v{T0}, v{T1}
    v_mul_f32 v{T0}, 0.5, v{T0}
    """)
    for i in range(8):
        a(f"v_add_f32 v{T0}, v{T0}, v{SX0+i}")
    a(f"""
    v_mov_b32 v{T1}, v{T0}
    v_permlane32_swap_b32 v{T0}, v{T1}
    v_add_f32 v{T0}, v{T0}, v{T1}
    v_mov_b32 v{T1}, v{T0}
    v_permlane16_swap_b32 v{T0}, v{T1}
    v_add_f32 v{T0}, v{T0}, v{T1}
    v_rcp_f32 v{T0}, v{T0}
    """)
    for i in range(12):
        a(f"v_mul_f32 v{SX0+i}, v{SX0+i}, v{T0}")
    PX, PM = 40, 44
    for i in range(6):
        a(f"v_cvt_pk_bf16_f32 v{PX+i}, v{SX0+2*i}, v{SX0+2*i+1}")
    O = 48
    for t in range(2):
        a(f"v_mfma_f32_16x16x32_bf16 v[{O+4*t}:{O+4*t+3}], v[{PX}:{PX+3}], v[{VXC+4*t}:{VXC+4*t+3}], 0")
    for t in range(2):
        a(f"v_mfma_f32_16x16x16_bf16 v[{O+4*t}:{O+4*t+3}], v[{PM}:{PM+1}], v[{96+2*t}:{97+2*t}], v[{O+4*t}:{O+4*t+3}]")
    for t in range(2):
        a(f"v_cvt_pk_bf16_f32 v{O+4*t}, v{O+4*t}, v{O+4*t+1}")
        a(f"v_cvt_pk_bf16_f32 v{O+4*t+1}, v{O+4*t+2}, v{O+4*t+3}")
        a(f"ds_write_b64 v14, v[{O+4*t}:{O+4*t+1}] offset:{t*256}")
    WA = 56
    for i in range(32):
        a(f"v_mov_b32 v{WA+i}, 0")
    a("s_waitcnt lgkmcnt(0)")
    a("s_barrier")
    OA = 24
    for u in range(2):
        for v in range(2):
            a(f"ds_read_b64_tr_b16 v[{OA+4*u+2*v}:{OA+4*u+2*v+1}], v11 offset:{(64*u+8*v)*16}")
    a("s_waitcnt lgkmcnt(0)")
    for p in range(4):
        for u in range(2):
            for tt in range(2):
                T = 2 * p + tt
                b = 128 + (T * 2 + u) * 8
                a(f"v_smfmac_f32_16x16x64_bf16 v[{WA+4*T}:{WA+4*T+3}], v[{OA+4*u}:{OA+4*u+3}], v[{b}:{b+7}], v8")
    for p in range(4):
        acc = WA + 8 * p
        combine(acc, acc)
        a(f"s_add_u32 s19, s26, {p*16384}")
        a(f"buffer_store_dwordx2 v[{acc}:{acc+1}], v6, s[8:11], s19 offen {SC}")
    a("s_mov_b32 s21, 0")
    for _ in range(D1):
        a("s_nop 3")
    a(f"""
    C_p1:
    buffer_load_dwordx4 v[32:35], v5, s[8:11], s26 offen sc1
    buffer_load_dwordx4 v[36:39], v5, s[8:11], s26 offen offset:1024 sc1
    s_add_u32 s21, s21, 1
    s_cmp_gt_u32 s21, {TIMEOUT}
    s_cbranch_scc1 C_fail
    s_waitcnt vmcnt(0)
    v_mfma_f32_16x16x32_bf16 v[40:43], v[32:35], v[16:19], 0
    v_mfma_f32_16x16x32_bf16 v[40:43], v[36:39], v[16:19], v[40:43]
    v_max3_u32 v44, v32, v33, v34
    v_max3_u32 v45, v35, v36, v37
    v_max3_u32 v44, v44, v38, v39
    v_max_u32 v44, v44, v45
    v_cmp_eq_u32 vcc, -1, v44
    s_cbranch_vccnz C_p1
    v_permlane32_swap_b32 v40, v42
    v_permlane32_swap_b32 v41, v43
    v_add_f32 v40, v40, v42
    v_add_f32 v41, v41, v43
    v_permlane16_swap_b32 v40, v41
    v_add_f32 v40, v40, v41
    v_mov_b32_dpp v41, v40 row_ror:4 row_mask:0xf bank_mask:0xf
    v_cvt_pk_bf16_f32 v40, v41, v40
    buffer_store_dword v40, v7, s[8:11], s23 offen {SC}
    s_add_u32 s18, s18, 1
    s_branch C_step
    C_done:
    s_memrealtime s[30:31]
    s_memtime s[32:33]
    s_waitcnt lgkmcnt(0)
    s_sub_u32 s30, s30, s24
    s_sub_u32 s32, s32, s28
    s_cmp_lg_u32 s16, 0
    s_cbranch_scc1 C_exit
    s_cmp_lg_u32 s17, 0
    s_cbranch_scc1 C_exit
    v_mov_b32 v32, s30
    v_mov_b32 v33, s32
    v_mov_b32 v34, s65
    v_mov_b32 v35, s24
    v_mov_b32 v36, 16
    s_mov_b64 exec, 1
    buffer_store_dwordx4 v[32:35], v36, s[12:15], 0 offen
    s_waitcnt vmcnt(0)
    s_endpgm
    C_fail:
    v_mov_b32 v32, 0xdead
    v_mov_b32 v33, 8
    s_mov_b64 exec, 1
    buffer_store_dword v32, v33, s[12:15], 0 offen
    s_waitcnt vmcnt(0)
    C_exit:
    s_endpgm
    """)


def gen_chain_kernel(a, name, opt):
    kernel_header(a, name)
    a(f"""
    s_memrealtime s[66:67]
    s_cmp_ge_u32 s2, 256
    s_cbranch_scc1 C_exit
    s_load_dwordx2 s[4:5], s[0:1], {ARG_DBG}
    s_load_dwordx2 s[6:7], s[0:1], {ARG_WS}
    s_getreg_b32 s3, hwreg(HW_REG_XCC_ID)
    s_and_b32 s3, s3, 0xf
    v_and_b32 v1, 63, v0
    v_lshrrev_b32 v2, 6, v0
    v_readfirstlane_b32 s17, v2
    s_waitcnt lgkmcnt(0)
    s_mov_b32 s65, s66
    """)
    make_srd(a, 8, 6, WS_SIZE)
    make_srd(a, 12, 4, 256)
    a(f"""
    s_cmp_lg_u32 s3, 0
    s_cbranch_scc1 C_exit
    v_mov_b32 v3, {L_MISC:#x}
    v_mov_b32 v4, 1
    v_mov_b32 v5, 0
    s_cmp_lg_u32 s17, 0
    s_cbranch_scc1 C_noticket
    s_mov_b64 exec, 1
    buffer_atomic_add v4, v5, s[12:15], 0 offen sc0 sc1
    s_waitcnt vmcnt(0)
    ds_write_b32 v3, v4
    s_mov_b64 exec, -1
    s_waitcnt lgkmcnt(0)
    C_noticket:
    s_barrier
    ds_read_b32 v4, v3
    s_waitcnt lgkmcnt(0)
    v_readfirstlane_b32 s16, v4
    s_cmp_ge_u32 s16, 32
    s_cbranch_scc1 C_exit
    """)
    gen_chain(a, opt)


if __name__ == "__main__":
    import hazard
    opt = {}
    for kv in sys.argv[2:]:
        k, v = kv.split("=")
        opt[k] = v if k == "sc" else int(v)
    a = Asm()
    a.raw(f"; @launch kernel=chain_kernel grid=(256,1,1) block=(256,1,1) lds={LDS_BYTES}")
    a.raw('.amdgcn_target "amdgcn-amd-amdhsa--gfx950"')
    a.raw(".text")
    gen_chain_kernel(a, "chain_kernel", opt)
    a.lines = hazard.fix(a.lines, True)
    a.raw('.section .rodata,"a"')
    a.raw(".p2align 6")
    a.raw(kernel_desc("chain_kernel", 512, 256))
    open(sys.argv[1], "w").write(a.text())
```

```python
import re

_reg_re = re.compile(r"\b([vas])(\d+)\b|\b([vas])\[(\d+):(\d+)\]|\b(vcc|exec|m0|scc)\b")
TRANS = ("v_exp_f32", "v_log_f32", "v_rcp_f32", "v_rsq_f32", "v_sqrt_f32", "v_sin_f32", "v_cos_f32",
         "v_rcp_iflag_f32", "v_exp_f16", "v_rcp_f16")


def regs_of(op):
    out = set()
    for m in _reg_re.finditer(op):
        if m.group(1):
            out.add((m.group(1), int(m.group(2))))
        elif m.group(3):
            for i in range(int(m.group(4)), int(m.group(5)) + 1):
                out.add((m.group(3), i))
        else:
            out.add((m.group(6), 0))
    return out


def split_ops(s):
    ops, depth, cur = [], 0, ""
    for ch in s:
        if ch == "[":
            depth += 1
        if ch == "]":
            depth -= 1
        if ch == "," and depth == 0:
            ops.append(cur.strip())
            cur = ""
        else:
            cur += ch
    if cur.strip():
        ops.append(cur.strip())
    return ops


class Ins:
    __slots__ = ("text", "mn", "cls", "wr", "rd", "A", "B", "C", "D", "passes", "slots", "dpp", "wide_store", "lds_dma",
                 "sdata")

    def __init__(self, text):
        self.text = text
        body = text.split(";")[0].strip()
        parts = body.split(None, 1)
        mn = parts[0]
        self.mn = mn
        rest = parts[1] if len(parts) > 1 else ""
        ops = split_ops(rest)
        self.wr, self.rd = set(), set()
        self.A = self.B = self.C = self.D = frozenset()
        self.passes = 0
        self.slots = 1
        self.dpp = ("_dpp" in mn) or ("row_" in rest) or ("quad_perm" in rest)
        self.wide_store = False
        self.lds_dma = False
        self.sdata = frozenset()
        R = [regs_of(re.sub(r"(quad_perm|op_sel|op_sel_hi|neg_lo|neg_hi):\[[^\]]*\]", "", o)) for o in ops]
        if mn == "s_nop":
            self.cls = "nop"
            self.slots = int(ops[0], 0) + 1
        elif mn.startswith("v_mfma") or mn.startswith("v_smfmac"):
            self.cls = "mfma"
            self.passes = 8 if "32x32" in mn else 4
            self.D = frozenset(R[0])
            self.A = frozenset(R[1])
            self.B = frozenset(R[2])
            if mn.startswith("v_smfmac"):
                self.C = self.D
                self.A = self.A | frozenset(R[3])
            else:
                self.C = frozenset(R[3])
            self.wr = set(self.D)
            self.rd = set(self.A | self.B | self.C)
        elif mn.startswith("v_"):
            self.cls = "valu"
            if mn.startswith("v_permlane") and "swap" in mn:
                self.wr = R[0] | R[1]
                self.rd = R[0] | R[1]
            elif mn.startswith("v_cmp"):
                self.wr = set(R[0])
                for r in R[1:]:
                    self.rd |= r
                if mn.startswith("v_cmpx"):
                    self.wr.add(("exec", 0))
            elif re.match(r"v_(add|sub|subrev|addc|subb)_co_", mn) or mn.startswith("v_div_scale"):
                self.wr = R[0] | R[1]
                for r in R[2:]:
                    self.rd |= r
            elif mn == "v_nop":
                pass
            else:
                self.wr = set(R[0])
                for r in R[1:]:
                    self.rd |= r
                if re.match(r"v_(fmac|dot2c|pk_fmac|writelane|dot4c)", mn):
                    self.rd |= R[0]
        elif mn.startswith("ds_"):
            self.cls = "ds"
            if mn.startswith("ds_read") or "permute" in mn or "swizzle" in mn:
                self.wr = set(R[0])
                for r in R[1:]:
                    self.rd |= r
            else:
                for r in R:
                    self.rd |= r
        elif mn.startswith("buffer_") or mn.startswith("global_"):
            self.cls = "vmem"
            is_lds = bool(re.search(r"\blds\b", rest)) or "_lds_" in mn
            self.lds_dma = is_lds
            if "load" in mn and not is_lds:
                self.wr = set(R[0])
                for r in R[1:]:
                    self.rd |= r
            else:
                for r in R:
                    self.rd |= r
                if "atomic" in mn and "sc0" in rest:
                    self.wr = set(R[0])
                if "store" in mn and ("x4" in mn or "x3" in mn):
                    self.wide_store = True
                    self.sdata = frozenset(R[0] if mn.startswith("buffer_") else R[1])
        elif mn.startswith("s_"):
            self.cls = "salu"
            if re.match(r"s_(cmp|cbranch|branch|waitcnt|barrier|endpgm|sleep|setprio|bitcmp|setreg)", mn):
                for r in R:
                    self.rd |= r
            elif R:
                self.wr = set(R[0])
                for r in R[1:]:
                    self.rd |= r
                if "saveexec" in mn:
                    self.wr.add(("exec", 0))
        else:
            self.cls = "other"


def _base(mn):
    return re.sub(r"_(e32|e64|dpp|sdwa)$", "", mn)


def _vg(s):
    return {r for r in s if r[0] in "va" and len(r[0]) == 1}


def _sg(s):
    return {r for r in s if r[0] == "s" or r[0] == "vcc"}


def need(p, c):
    n = 0
    if p.cls == "valu":
        w = _vg(p.wr)
        if c.cls == "mfma" and w & c.rd:
            n = max(n, 2)
        if c.cls == "valu":
            if c.mn.startswith("v_permlane") and w & c.rd:
                n = max(n, 2)
            if c.dpp and w & c.rd:
                n = max(n, 2)
            if re.match(r"v_read(first)?lane", c.mn) and w & c.rd:
                n = max(n, 1)
            if _base(p.mn) in TRANS and _base(c.mn) not in TRANS and w & (c.rd | c.wr):
                n = max(n, 1)
            if ("sdwa" in p.mn or "op_sel:" in p.text) and w & (c.rd | c.wr):
                n = max(n, 1)
        if _base(p.mn) in TRANS and c.cls in ("ds", "vmem") and w & c.rd:
            n = max(n, 1)
        sw = _sg(p.wr)
        if sw:
            if c.cls == "valu" and sw & c.rd:
                n = max(n, 4 if re.match(r"v_(read|write)lane", c.mn) else 2)
            if c.cls == "vmem" and sw & c.rd:
                n = max(n, 5)
            if c.cls == "salu" and sw & c.rd and not c.mn.startswith("s_cbranch"):
                n = max(n, 1)
        if ("exec", 0) in p.wr:
            if c.cls == "mfma":
                n = max(n, 4)
            if c.cls == "valu":
                n = max(n, 5)
    elif p.cls == "mfma":
        big = p.passes == 8
        if c.cls == "mfma":
            if p.D & (c.A | c.B):
                n = max(n, 12 if big else 8)
            if p.D & c.C and not (p.D == c.C and p.passes == c.passes):
                n = max(n, 10 if big else 6)
            if p.D & c.D and not (p.D == c.C and p.passes == c.passes):
                n = max(n, 10 if big else 6)
        elif c.cls in ("valu", "ds", "vmem"):
            if p.D & (c.rd | c.wr):
                n = max(n, 12 if big else 8)
            if p.C & c.wr:
                n = max(n, 7 if big else 3)
    elif p.cls == "vmem":
        if p.wide_store and p.sdata & c.wr:
            n = max(n, 2)
    elif p.cls == "salu":
        if ("m0", 0) in p.wr and ((c.cls == "vmem" and c.lds_dma) or c.mn.startswith("v_writelane")
                                  or c.mn.startswith("v_readlane") or c.mn.startswith("s_movrel")):
            n = max(n, 1)
    if p.cls in ("ds", "vmem") and c.cls == "valu" and c.dpp:
        pass
    return n


def fix(lines, report=False):
    out = []
    hist = []
    inserted = 0
    for ln in lines:
        s = ln.strip()
        if (not s) or s.startswith(";") or s.startswith(".") or s.endswith(":") or not ln.startswith("    "):
            out.append(ln)
            if s.startswith(".p2align") or s.startswith(".globl"):
                hist = []
            continue
        c = Ins(s)
        dist = 0
        pad = 0
        for p in reversed(hist):
            k = need(p, c)
            if k > dist:
                pad = max(pad, k - dist)
            dist += p.slots
            if dist >= 20:
                break
        if pad:
            inserted += pad
            nop = Ins(f"s_nop {pad-1}")
            out.append(f"    s_nop {pad-1}")
            hist.append(nop)
        out.append(ln)
        hist.append(c)
        if c.mn in ("s_branch", "s_endpgm"):
            hist = []
        if len(hist) > 24:
            hist = hist[-24:]
    if report:
        print("hazard nops inserted:", inserted)
    return out
```

```python
WS_MB1 = 0x0000000
WS_MB2 = 0x0080000
WS_FLAGS = 0x0090000
WS_XN = 0x0100000
WS_KF = 0x0400000
WS_VF = 0x1400000
WS_QF = 0x2400000
WS_KM = 0x3400000
WS_VM = 0x3C00000
WS_OF = 0x4000000
WS_HF = 0x5000000
WS_DBG = 0x6000000
WS_SIZE = 0x10000000

ARG_X, ARG_MEM0, ARG_WQ, ARG_WK, ARG_WV, ARG_WO = 0, 8, 16, 24, 32, 40
ARG_W1, ARG_B1, ARG_W2, ARG_B2 = 64, 72, 80, 88
ARG_OUT, ARG_DBG, ARG_WS = 96, 104, 112
```

```python
import sys, struct, math
sys.path.insert(0, "gen")
from asmlib import *
from layout import *


def f2u(f):
    return struct.unpack("<I", struct.pack("<f", f))[0]


def srd_from_arg(a, d, arg, nbytes, tmp=20):
    a(f"s_load_dwordx2 s[{tmp}:{tmp+1}], s[0:1], {arg}")
    a("s_waitcnt lgkmcnt(0)")
    make_srd(a, d, tmp, nbytes)


def common_prologue(a, nwg, exit_label):
    a(f"""
    s_cmp_ge_u32 s2, {nwg}
    s_cbranch_scc1 {exit_label}
    s_load_dwordx2 s[6:7], s[0:1], {ARG_WS}
    v_and_b32 v1, 63, v0
    v_lshrrev_b32 v2, 6, v0
    v_readfirstlane_b32 s17, v2
    v_and_b32 v120, 15, v1
    v_lshrrev_b32 v121, 4, v1
    v_lshrrev_b32 v122, 2, v120
    v_and_b32 v123, 3, v120
    v_lshlrev_b32 v4, 4, v1
    s_waitcnt lgkmcnt(0)
    """)
    make_srd(a, 8, 6, WS_SIZE)


def xreduce_add(a, v, t):
    a(f"""
    v_mov_b32 v{t}, v{v}
    v_permlane32_swap_b32 v{v}, v{t}
    v_add_f32 v{v}, v{v}, v{t}
    v_mov_b32 v{t}, v{v}
    v_permlane16_swap_b32 v{v}, v{t}
    v_add_f32 v{v}, v{v}, v{t}
    """)


def xreduce_max(a, v, t):
    a(f"""
    v_mov_b32 v{t}, v{v}
    v_permlane32_swap_b32 v{v}, v{t}
    v_max_f32 v{v}, v{v}, v{t}
    v_mov_b32 v{t}, v{v}
    v_permlane16_swap_b32 v{v}, v{t}
    v_max_f32 v{v}, v{v}, v{t}
    """)


def round_bf16(a, v):
    a(f"v_cvt_pk_bf16_f32 v{v}, v{v}, v{v}")
    a(f"v_lshlrev_b32 v{v}, 16, v{v}")


def gen_ln(a, s_tile, srd_x, lds_base, sc=""):
    X, F = 24, 40
    a(f"""
    s_lshl_b32 s19, s{s_tile}, 14
    s_lshl_b32 s20, s17, 8
    s_add_u32 s19, s19, s20
    v_lshlrev_b32 v72, 10, v120
    v_lshl_add_u32 v72, v121, 4, v72
    """)
    for k in range(4):
        a(f"buffer_load_dwordx4 v[{X+4*k}:{X+4*k+3}], v72, s[{srd_x}:{srd_x+3}], s19 offen offset:{k*64}")
    a(f"""
    s_lshl_b32 s20, s17, 6
    v_lshlrev_b32 v73, 2, v120
    v_add_u32 v73, {lds_base:#x}, v73
    v_add_u32 v74, s20, v73
    s_waitcnt vmcnt(0)
    """)
    for i in range(16):
        a(f"v_lshlrev_b32 v{F+2*i}, 16, v{X+i}")
        a(f"v_and_b32 v{F+2*i+1}, 0xffff0000, v{X+i}")
    a(f"v_pk_add_f32 v[{X}:{X+1}], v[{F}:{F+1}], v[{F+2}:{F+3}]")
    for i in range(2, 16):
        a(f"v_pk_add_f32 v[{X}:{X+1}], v[{X}:{X+1}], v[{F+2*i}:{F+2*i+1}]")
    a(f"v_add_f32 v{X}, v{X}, v{X+1}")
    xreduce_add(a, X, X + 1)
    a(f"""
    ds_write_b32 v74, v{X}
    s_waitcnt lgkmcnt(0)
    s_barrier
    ds_read_b32 v{X}, v73
    ds_read_b32 v{X+1}, v73 offset:64
    ds_read_b32 v{X+2}, v73 offset:128
    ds_read_b32 v{X+3}, v73 offset:192
    s_waitcnt lgkmcnt(0)
    v_add_f32 v{X}, v{X}, v{X+1}
    v_add_f32 v{X+2}, v{X+2}, v{X+3}
    v_add_f32 v{X}, v{X}, v{X+2}
    v_mul_f32 v{X}, {f2u(1.0/512):#x}, v{X}
    v_mov_b32 v{X+2}, 0
    v_mov_b32 v{X+3}, 0
    """)
    for i in range(32):
        a(f"v_sub_f32 v{X+4}, v{F+i}, v{X}")
        a(f"v_fmac_f32 v{X+2+(i&1)}, v{X+4}, v{X+4}")
    a(f"v_add_f32 v{X+2}, v{X+2}, v{X+3}")
    xreduce_add(a, X + 2, X + 3)
    a(f"""
    ds_write_b32 v74, v{X+2} offset:256
    s_waitcnt lgkmcnt(0)
    s_barrier
    ds_read_b32 v{X+2}, v73 offset:256
    ds_read_b32 v{X+3}, v73 offset:320
    ds_read_b32 v{X+4}, v73 offset:384
    ds_read_b32 v{X+5}, v73 offset:448
    s_waitcnt lgkmcnt(0)
    v_add_f32 v{X+2}, v{X+2}, v{X+3}
    v_add_f32 v{X+4}, v{X+4}, v{X+5}
    v_add_f32 v{X+2}, v{X+2}, v{X+4}
    v_mul_f32 v{X+2}, {f2u(1.0/512):#x}, v{X+2}
    """)
    round_bf16(a, X)
    round_bf16(a, X + 2)
    a(f"v_add_f32 v{X+2}, {f2u(1e-5):#x}, v{X+2}")
    round_bf16(a, X + 2)
    a(f"v_sqrt_f32 v{X+2}, v{X+2}")
    round_bf16(a, X + 2)
    a(f"v_rcp_f32 v{X+2}, v{X+2}")
    for i in range(16):
        f0, f1 = F + 2 * i, F + 2 * i + 1
        a(f"""
        v_sub_f32 v{f0}, v{f0}, v{X}
        v_sub_f32 v{f1}, v{f1}, v{X}
        v_cvt_pk_bf16_f32 v{f1}, v{f0}, v{f1}
        v_lshlrev_b32 v{f0}, 16, v{f1}
        v_and_b32 v{f1}, 0xffff0000, v{f1}
        v_mul_f32 v{f0}, v{f0}, v{X+2}
        v_mul_f32 v{f1}, v{f1}, v{X+2}
        v_cvt_pk_bf16_f32 v{F+i}, v{f0}, v{f1}
        """)
    a(f"""
    s_lshl_b32 s19, s{s_tile}, 14
    s_lshl_b32 s20, s17, 12
    s_add_u32 s19, s19, s20
    s_add_u32 s19, s19, {WS_XN:#x}
    """)
    for k in range(4):
        a(f"buffer_store_dwordx4 v[{F+4*k}:{F+4*k+3}], v4, s[8:11], s19 offen offset:{k*1024} {sc}")


def gen_ln_kernel(a, name):
    kernel_header(a, name)
    ex = name + "_exit"
    common_prologue(a, 128, ex)
    srd_from_arg(a, 44, ARG_X, 2 << 20)
    gen_ln(a, 2, 44, 0)
    a(f"{ex}:")
    a("s_endpgm")


NCHUNK = 214
def gen_gemm1(a, s_rb, s_j, nj, pfx, sc="", ldsc="", after_chunk=None):
    srd_from_arg(a, 44, ARG_WK, 4 << 20)
    srd_from_arg(a, 48, ARG_WV, 4 << 20)
    srd_from_arg(a, 52, ARG_WQ, 4 << 20)
    srd_from_arg(a, 56, ARG_W1, 512 * 1376 * 2)
    srd_from_arg(a, 60, ARG_B1, 1376 * 2)
    a("s_mov_b32 s67, 0x00020000")
    a(f"""
    v_bfe_u32 v5, v1, 1, 2
    v_bfe_u32 v6, v1, 4, 1
    v_xor_b32 v5, v5, v6
    v_lshlrev_b32 v5, 5, v5
    v_and_b32 v6, 1, v1
    v_lshl_add_u32 v5, v6, 4, v5
    v_xor_b32 v6, 64, v5
    v_lshrrev_b32 v7, 3, v1
    v_lshl_add_u32 v8, v7, 13, v5
    v_lshl_add_u32 v9, v7, 13, v6
    v_mul_u32_u24 v7, 2752, v7
    v_add_u32 v10, v7, v5
    v_add_u32 v11, v7, v6
    """)
    a(f"""
    v_lshl_add_u32 v14, v121, 3, v122
    v_lshlrev_b32 v14, 7, v14
    v_lshrrev_b32 v5, 1, v122
    v_and_b32 v6, 1, v121
    v_lshl_add_u32 v5, v6, 1, v5
    v_lshl_add_u32 v14, v5, 5, v14
    v_lshl_add_u32 v14, v123, 3, v14
    v_xor_b32 v15, 32, v14
    v_xor_b32 v16, 64, v14
    v_xor_b32 v17, 96, v14
    v_lshlrev_b32 v18, 3, v121
    """)

    def setup_next():
        l1, l2 = a.uid(pfx + "_n"), a.uid(pfx + "_n")
        a(f"""
        s_min_u32 s19, s69, {NCHUNK-1}
        s_cmp_ge_u32 s19, 192
        s_cbranch_scc1 {l1}
        s_cmp_lt_u32 s19, 64
        s_cselect_b32 s64, s44, s48
        s_cselect_b32 s65, s45, s49
        s_cmp_ge_u32 s19, 128
        s_cselect_b32 s64, s52, s64
        s_cselect_b32 s65, s53, s65
        s_mov_b32 s66, {4 << 20:#x}
        s_and_b32 s19, s19, 63
        s_lshl_b32 s70, s19, 7
        s_lshl_b32 s20, s17, 20
        s_add_u32 s70, s70, s20
        s_mov_b32 s71, {8*8192}
        v_mov_b32 v12, v8
        v_mov_b32 v13, v9
        s_branch {l2}
        {l1}:
        s_mov_b32 s64, s56
        s_mov_b32 s65, s57
        s_mov_b32 s66, {512*1376*2:#x}
        s_sub_u32 s19, s19, 192
        s_lshl_b32 s70, s19, 7
        s_mul_i32 s20, s17, {128*2752}
        s_add_u32 s70, s70, s20
        s_mov_b32 s71, {8*2752}
        v_mov_b32 v12, v10
        v_mov_b32 v13, v11
        {l2}:
        """)

    def dma(m):
        a(f"s_add_u32 m0, s72, {m*1024}")
        a(f"buffer_load_dwordx4 v{12+(m&1)}, s[64:67], s70 offen lds")
        a("s_add_u32 s70, s70, s71")

    a(f"s_mov_b32 s69, s{s_j}")
    setup_next()
    a("s_lshl_b32 s72, s17, 14")
    for m in range(16):
        dma(m)
    return setup_next, dma


def gen_gemm1_loadA(a, s_rb, ldsc=""):
    a(f"""
    s_lshl_b32 s19, s{s_rb}, 18
    s_lshl_b32 s20, s17, 16
    s_add_u32 s19, s19, s20
    s_add_u32 s19, s19, {WS_XN:#x}
    """)
    for i in range(64):
        if i % 4 == 0 and i:
            a("s_add_u32 s19, s19, 4096")
        if i == 40:
            a("s_waitcnt vmcnt(30)")
        a(f"buffer_load_dwordx4 a[{4*i}:{4*i+3}], v4, s[8:11], s19 offen offset:{(i%4)*1024} {ldsc}")


def gen_gemm1_loop(a, s_rb, s_j, nj, pfx, setup_next, dma, sc="", after_chunk=None):
    WF, ACC = 24, 56
    a(f"""
    s_mov_b32 s68, s{s_j}
    s_waitcnt vmcnt(0)
    {pfx}_loop:
    s_waitcnt vmcnt(8)
    s_barrier
    s_add_u32 s69, s68, {nj}
    """)
    setup_next()
    a("s_xor_b32 s72, s72, 0x10000")

    def rd(ks, buf):
        for ct in range(4):
            for u in range(2):
                r = WF + buf * 16 + ct * 4 + u * 2
                a(f"ds_read_b64_tr_b16 v[{r}:{r+1}], v{14+ct} offset:{ks*4096+u*512}")

    def body(vtype):
        rd(0, 0)
        for ks in range(16):
            b = ks & 1
            if ks < 15:
                rd(ks + 1, b ^ 1)
                a("s_waitcnt lgkmcnt(8)")
            else:
                a("s_waitcnt lgkmcnt(0)")
            k = 0
            for ct in range(4):
                for tt in range(4):
                    d = ACC + (tt * 4 + ct) * 4
                    w = WF + b * 16 + ct * 4
                    x = (tt * 16 + ks) * 4
                    c = "0" if ks == 0 else f"v[{d}:{d+3}]"
                    if vtype:
                        a(f"v_mfma_f32_16x16x32_bf16 v[{d}:{d+3}], a[{x}:{x+3}], v[{w}:{w+3}], {c}")
                    else:
                        a(f"v_mfma_f32_16x16x32_bf16 v[{d}:{d+3}], v[{w}:{w+3}], a[{x}:{x+3}], {c}")
                    k += 1
                    if k == 4:
                        dma(ks)

    a(f"""
    s_cmp_lt_u32 s68, 64
    s_cbranch_scc1 {pfx}_kq
    s_cmp_ge_u32 s68, 128
    s_cbranch_scc1 {pfx}_kq
    """)
    body(True)
    a(f"""
    s_lshl_b32 s19, s{s_rb}, 21
    s_lshl_b32 s20, s17, 19
    s_add_u32 s19, s19, s20
    s_and_b32 s20, s68, 63
    s_lshl_b32 s20, s20, 12
    s_add_u32 s19, s19, s20
    s_add_u32 s19, s19, {WS_VF:#x}
    """)
    for sp in range(2):
        for ct in range(4):
            d0 = ACC + ((2 * sp) * 4 + ct) * 4
            d1 = ACC + ((2 * sp + 1) * 4 + ct) * 4
            a(f"""
            v_cvt_pk_bf16_f32 v{d0}, v{d0}, v{d0+1}
            v_cvt_pk_bf16_f32 v{d0+1}, v{d0+2}, v{d0+3}
            v_cvt_pk_bf16_f32 v{d0+2}, v{d1}, v{d1+1}
            v_cvt_pk_bf16_f32 v{d0+3}, v{d1+2}, v{d1+3}
            buffer_store_dwordx4 v[{d0}:{d0+3}], v4, s[8:11], s19 offen offset:{ct*1024} {sc}
            """)
        if sp == 0:
            a("s_add_u32 s19, s19, 0x40000")
    a(f"s_branch {pfx}_next")
    a(f"{pfx}_kq:")
    a(f"""
    s_sub_u32 s19, s68, 192
    s_lshl_b32 s19, s19, 7
    s_cmp_lt_u32 s68, 192
    s_cselect_b32 s19, 0, s19
    buffer_load_dwordx2 v[20:21], v18, s[60:63], s19 offen
    buffer_load_dwordx2 v[22:23], v18, s[60:63], s19 offen offset:32
    buffer_load_dwordx2 v[124:125], v18, s[60:63], s19 offen offset:64
    buffer_load_dwordx2 v[126:127], v18, s[60:63], s19 offen offset:96
    """)
    body(False)
    a(f"""
    s_cmp_ge_u32 s68, 192
    s_cbranch_scc1 {pfx}_h
    s_lshl_b32 s19, s{s_rb}, 21
    s_lshl_b32 s20, s17, 19
    s_add_u32 s19, s19, s20
    s_and_b32 s20, s68, 62
    s_lshl_b32 s20, s20, 12
    s_add_u32 s19, s19, s20
    s_and_b32 s20, s68, 1
    s_lshl_b32 s20, s20, 11
    s_add_u32 s19, s19, s20
    s_mov_b32 s20, {WS_KF:#x}
    s_cmp_ge_u32 s68, 128
    s_cselect_b32 s20, {WS_QF:#x}, s20
    s_add_u32 s19, s19, s20
    """)
    for tt in range(4):
        for p in range(2):
            d0 = ACC + (tt * 4 + 2 * p) * 4
            d1 = d0 + 4
            a(f"""
            v_cvt_pk_bf16_f32 v{d0}, v{d0}, v{d0+1}
            v_cvt_pk_bf16_f32 v{d0+1}, v{d0+2}, v{d0+3}
            v_cvt_pk_bf16_f32 v{d0+2}, v{d1}, v{d1+1}
            v_cvt_pk_bf16_f32 v{d0+3}, v{d1+2}, v{d1+3}
            buffer_store_dwordx4 v[{d0}:{d0+3}], v4, s[8:11], s19 offen offset:{p*1024} {sc}
            """)
        if tt < 3:
            a(f"s_add_u32 s19, s19, {0x1000 if tt != 1 else 0x40000 - 0x1000:#x}")
    a(f"s_branch {pfx}_next")
    a(f"{pfx}_h:")
    a("s_waitcnt vmcnt(16)")
    BI = [20, 22, 124, 126]
    for ct in range(4):
        for j in range(2):
            a(f"v_lshlrev_b32 v{24+ct*4+2*j}, 16, v{BI[ct]+j}")
            a(f"v_and_b32 v{24+ct*4+2*j+1}, 0xffff0000, v{BI[ct]+j}")
    a(f"""
    s_lshl_b32 s19, s{s_rb}, 4
    s_lshl_b32 s20, s17, 2
    s_add_u32 s19, s19, s20
    s_mul_i32 s19, s19, {43*1024}
    s_sub_u32 s20, s68, 192
    s_lshl_b32 s20, s20, 11
    s_add_u32 s19, s19, s20
    s_add_u32 s19, s19, {WS_HF:#x}
    v_mov_b32 v19, v4
    s_cmp_eq_u32 s68, {NCHUNK-1}
    s_cselect_b32 s20, 0x7ffff000, 0
    v_add_u32 v19, s20, v4
    """)
    for tt in range(4):
        for p in range(2):
            d0 = ACC + (tt * 4 + 2 * p) * 4
            for j in range(4):
                r0 = d0 + 2 * j
                bi = 24 + (2 * p + (j >> 1)) * 4 + (j & 1) * 2
                a(f"""
                v_cvt_pk_bf16_f32 v{r0+1}, v{r0}, v{r0+1}
                v_lshlrev_b32 v{r0}, 16, v{r0+1}
                v_and_b32 v{r0+1}, 0xffff0000, v{r0+1}
                v_add_f32 v{r0}, v{r0}, v{bi}
                v_add_f32 v{r0+1}, v{r0+1}, v{bi+1}
                v_cvt_pk_bf16_f32 v{r0+1}, v{r0}, v{r0+1}
                v_lshlrev_b32 v{r0}, 16, v{r0+1}
                v_and_b32 v{r0+1}, 0xffff0000, v{r0+1}
                v_max_f32 v{r0}, 0, v{r0}
                v_max_f32 v{r0+1}, 0, v{r0+1}
                v_mul_f32 v{r0}, v{r0}, v{r0}
                v_mul_f32 v{r0+1}, v{r0+1}, v{r0+1}
                v_cvt_pk_bf16_f32 v{d0+j}, v{r0}, v{r0+1}
                """)
            va = 4 if p == 0 else 19
            a(f"buffer_store_dwordx4 v[{d0}:{d0+3}], v{va}, s[8:11], s19 offen offset:{p*1024} {sc}")
        if tt < 3:
            a(f"s_add_u32 s19, s19, {43*1024}")
    a(f"{pfx}_next:")
    if after_chunk:
        after_chunk()
    a(f"""
    v_xor_b32 v14, 0x10000, v14
    v_xor_b32 v15, 0x10000, v15
    v_xor_b32 v16, 0x10000, v16
    v_xor_b32 v17, 0x10000, v17
    s_mov_b32 s68, s69
    s_cmp_lt_u32 s68, {NCHUNK}
    s_cbranch_scc1 {pfx}_loop
    """)


def gen_gemm1_kernel(a, name):
    kernel_header(a, name)
    ex = name + "_exit"
    common_prologue(a, 256, ex)
    a("""
    s_lshr_b32 s40, s2, 3
    s_and_b32 s40, s40, 7
    s_and_b32 s41, s2, 7
    s_lshr_b32 s19, s2, 6
    s_lshl_b32 s19, s19, 3
    s_add_u32 s41, s41, s19
    """)
    sn, dma = gen_gemm1(a, 40, 41, 32, "G1")
    gen_gemm1_loadA(a, 40)
    gen_gemm1_loop(a, 40, 41, 32, "G1", sn, dma)
    a("s_waitcnt vmcnt(0)")
    a(f"{ex}:")
    a("s_endpgm")


C_SCALE = 128 ** -0.5
LOG2E = math.log2(math.e)
def gen_attn_consts(a):
    a(f"""
    v_and_b32 v2, 31, v1
    v_lshlrev_b32 v2, 3, v2
    v_lshlrev_b32 v3, 2, v121
    s_mov_b32 s73, {f2u(C_SCALE):#x}
    s_mov_b32 s82, {f2u(LOG2E):#x}
    """)
    for i in range(4):
        a(f"v_add_u32 v5, {i}, v3")
        a(f"v_cmp_le_u32 s[{74+2*i}:{75+2*i}], v5, v120")
    a("v_cmp_gt_u32 s[84:85], 32, v1")


def gen_attn_load(a, s_seg, s_head, ldsc=""):
    Q, K, V = 24, 56, 88
    a(f"""
    s_lshl_b32 s19, s{s_seg}, 18
    s_lshl_b32 s20, s{s_head}, 13
    s_add_u32 s19, s19, s20
    """)
    for base, ws in ((Q, WS_QF), (K, WS_KF), (V, WS_VF)):
        for hh in range(2):
            a(f"s_add_u32 s20, s19, {ws + hh*4096:#x}")
            for i in range(4):
                r = base + (hh * 4 + i) * 4
                a(f"buffer_load_dwordx4 v[{r}:{r+3}], v4, s[8:11], s20 offen offset:{i*1024} {ldsc}")


def gen_attn_loadm(a, s_seg, s_head, ldsc=""):
    KM, VM = 128, 144
    a(f"""
    s_lshl_b32 s19, s{s_seg}, 17
    s_lshl_b32 s20, s{s_head}, 12
    s_add_u32 s19, s19, s20
    s_lshr_b32 s20, s19, 1
    s_add_u32 s19, s19, {WS_KM:#x}
    s_add_u32 s20, s20, {WS_VM:#x}
    """)
    for i in range(4):
        a(f"buffer_load_dwordx4 v[{KM+4*i}:{KM+4*i+3}], v4, s[8:11], s19 offen offset:{i*1024} {ldsc}")
    for et in range(8):
        a(f"buffer_load_dwordx2 v[{VM+2*et}:{VM+2*et+1}], v2, s[8:11], s20 offen offset:{et*256} {ldsc}")


def gen_attn_compute(a, s_seg, s_head, sc=""):
    Q, K, V, KM, VM = 24, 56, 88, 128, 144
    S = 160
    T0, T1 = 180, 181
    P = 184
    O = 196
    NEG = 183
    tiles = {0: [("x0", S), ("m", S + 4)], 1: [("x0", S + 8), ("x1", S + 12), ("m", S + 16)]}
    for qt in (0, 1):
        for kind, d in tiles[qt]:
            for ks in range(4):
                ab = {"x0": K + ks * 4, "x1": K + 16 + ks * 4, "m": KM + ks * 4}[kind]
                qb = Q + (qt * 4 + ks) * 4
                c = "0" if ks == 0 else f"v[{d}:{d+3}]"
                a(f"v_mfma_f32_16x16x32_bf16 v[{d}:{d+3}], v[{ab}:{ab+3}], v[{qb}:{qb+3}], {c}")
    a(f"v_mov_b32 v{NEG}, {f2u(-1e30):#x}")
    for qt in (0, 1):
        regs = [d + i for _, d in tiles[qt] for i in range(4)]
        for j in range(0, len(regs), 2):
            r0, r1 = regs[j], regs[j + 1]
            a(f"""
            v_cvt_pk_bf16_f32 v{r1}, v{r0}, v{r1}
            v_lshlrev_b32 v{r0}, 16, v{r1}
            v_and_b32 v{r1}, 0xffff0000, v{r1}
            v_mul_f32 v{r0}, s73, v{r0}
            v_mul_f32 v{r1}, s73, v{r1}
            v_cvt_pk_bf16_f32 v{r1}, v{r0}, v{r1}
            v_lshlrev_b32 v{r0}, 16, v{r1}
            v_and_b32 v{r1}, 0xffff0000, v{r1}
            """)
        diag = tiles[qt][0][1] if qt == 0 else tiles[qt][1][1]
        for i in range(4):
            a(f"v_cndmask_b32 v{diag+i}, v{NEG}, v{diag+i}, s[{74+2*i}:{75+2*i}]")
        md = tiles[qt][-1][1]
        for i in range(4):
            a(f"v_cndmask_b32 v{md+i}, v{NEG}, v{md+i}, s[84:85]")
        a(f"v_max3_f32 v{T0}, v{regs[0]}, v{regs[1]}, v{regs[2]}")
        j = 3
        while j < len(regs):
            if j + 1 < len(regs):
                a(f"v_max3_f32 v{T0}, v{T0}, v{regs[j]}, v{regs[j+1]}")
                j += 2
            else:
                a(f"v_max_f32 v{T0}, v{T0}, v{regs[j]}")
                j += 1
        xreduce_max(a, T0, T1)
        for r in regs:
            a(f"v_sub_f32 v{r}, v{r}, v{T0}")
        for r in regs:
            a(f"v_mul_f32 v{r}, s82, v{r}")
        for r in regs:
            a(f"v_exp_f32 v{r}, v{r}")
        a(f"v_add_f32 v{T0}, v{regs[0]}, v{regs[1]}")
        for r in regs[2:]:
            a(f"v_add_f32 v{T0}, v{T0}, v{r}")
        xreduce_add(a, T0, T1)
        a(f"v_rcp_f32 v{T0}, v{T0}")
        for r in regs:
            a(f"v_mul_f32 v{r}, v{r}, v{T0}")
        p = P + qt * 6
        x0 = tiles[qt][0][1]
        a(f"v_cvt_pk_bf16_f32 v{p}, v{x0}, v{x0+1}")
        a(f"v_cvt_pk_bf16_f32 v{p+1}, v{x0+2}, v{x0+3}")
        if qt == 0:
            a(f"v_mov_b32 v{p+2}, 0")
            a(f"v_mov_b32 v{p+3}, 0")
        else:
            x1 = tiles[qt][1][1]
            a(f"v_cvt_pk_bf16_f32 v{p+2}, v{x1}, v{x1+1}")
            a(f"v_cvt_pk_bf16_f32 v{p+3}, v{x1+2}, v{x1+3}")
        a(f"v_cvt_pk_bf16_f32 v{p+4}, v{md}, v{md+1}")
        a(f"v_cvt_pk_bf16_f32 v{p+5}, v{md+2}, v{md+3}")
    a(f"""
    s_lshl_b32 s19, s{s_seg}, 18
    s_lshl_b32 s20, s{s_head}, 12
    s_add_u32 s19, s19, s20
    s_add_u32 s19, s19, {WS_OF:#x}
    """)
    for qt in (0, 1):
        p = P + qt * 6
        for et in range(8):
            d = 24 + (qt * 8 + et) * 4
            a(f"v_mfma_f32_16x16x32_bf16 v[{d}:{d+3}], v[{V+4*et}:{V+4*et+3}], v[{p}:{p+3}], 0")
        for et in range(8):
            d = 24 + (qt * 8 + et) * 4
            a(f"v_mfma_f32_16x16x16_bf16 v[{d}:{d+3}], v[{VM+2*et}:{VM+2*et+1}], v[{p+4}:{p+5}], v[{d}:{d+3}]")
    for qt in (0, 1):
        for k4 in range(4):
            d0 = 24 + (qt * 8 + 2 * k4) * 4
            d1 = d0 + 4
            a(f"""
            v_cvt_pk_bf16_f32 v{d0}, v{d0}, v{d0+1}
            v_cvt_pk_bf16_f32 v{d0+1}, v{d0+2}, v{d0+3}
            v_cvt_pk_bf16_f32 v{d0+2}, v{d1}, v{d1+1}
            v_cvt_pk_bf16_f32 v{d0+3}, v{d1+2}, v{d1+3}
            buffer_store_dwordx4 v[{d0}:{d0+3}], v4, s[8:11], s19 offen offset:{k4*1024} {sc}
            """)
        if qt == 0:
            a("s_add_u32 s19, s19, 0x20000")


def gen_attn_kernel(a, name):
    kernel_header(a, name)
    ex = name + "_exit"
    common_prologue(a, 512, ex)
    a("""
    s_lshr_b32 s40, s2, 3
    s_and_b32 s41, s2, 7
    s_lshl_b32 s41, s41, 2
    s_add_u32 s41, s41, s17
    """)
    gen_attn_consts(a)
    gen_attn_load(a, 40, 41)
    gen_attn_loadm(a, 40, 41)
    a("s_waitcnt vmcnt(0)")
    gen_attn_compute(a, 40, 41)
    a(f"{ex}:")
    a("s_endpgm")


L_RED = 0x20000
ACC7 = 216
GST = 232

def gen_out_consts(a, s_nsl):
    a(f"""
    s_lshl_b32 s36, s17, 15
    v_lshrrev_b32 v5, 2, v1
    v_lshlrev_b32 v5, 10, v5
    v_bfe_u32 v6, v1, 1, 1
    v_bfe_u32 v7, v1, 4, 1
    v_xor_b32 v6, v6, v7
    v_lshl_add_u32 v5, v6, 5, v5
    v_and_b32 v6, 1, v1
    v_lshl_add_u32 v5, v6, 4, v5
    s_lshl_b32 s19, s{s_nsl}, 6
    v_add_u32 v5, s19, v5
    v_lshl_add_u32 v6, v121, 2, v122
    v_lshlrev_b32 v6, 6, v6
    v_and_b32 v7, 1, v121
    v_lshl_add_u32 v6, v7, 5, v6
    v_lshl_add_u32 v6, v123, 3, v6
    v_add_u32 v6, s36, v6
    v_xor_b32 v7, 32, v6
    s_lshl_b32 s19, s17, 12
    v_add_u32 v8, s19, v4
    v_add_u32 v8, {L_RED:#x}, v8
    s_lshl_b32 s19, s17, 10
    v_add_u32 v9, s19, v4
    v_add_u32 v9, {L_RED:#x}, v9
    """)
    a(f"""
    s_lshr_b32 s19, s17, 1
    s_lshl_b32 s19, s19, 14
    s_and_b32 s20, s17, 1
    s_lshl_b32 s20, s20, 5
    s_lshl_b32 s21, s{s_nsl}, 6
    s_add_u32 s20, s20, s21
    v_lshlrev_b32 v11, 3, v121
    v_add_u32 v11, s20, v11
    v_lshl_add_u32 v10, v120, 10, v11
    v_add_u32 v10, s19, v10
    """)


def gen_stage_weights(a, srd, s_rowbytes, nks, dest):
    pieces = [list(range(i, min(i + 8, nks))) for i in range(0, nks, 8)]

    def issue(pi):
        for ks in pieces[pi]:
            for h in range(2):
                a(f"s_add_u32 m0, s36, {(pi & 1)*16384 + (ks % 8)*2048 + h*1024}")
                a(f"buffer_load_dwordx4 v5, s[{srd}:{srd+3}], s{s_rowbytes} offen lds")
                a(f"s_add_u32 s{s_rowbytes}, s{s_rowbytes}, 16384")

    issue(0)
    if len(pieces) > 1:
        issue(1)
    for pi in range(len(pieces)):
        nxt = 2 * len(pieces[pi + 1]) if pi + 1 < len(pieces) else 0
        a(f"s_waitcnt vmcnt({nxt})")
        for ks in pieces[pi]:
            for ct in range(2):
                for u in range(2):
                    off = (pi & 1) * 16384 + (ks % 8) * 2048 + u * 1024
                    a(f"ds_read_b64_tr_b16 {dest(ks, ct, u)}, v{6+ct} offset:{off}")
            if ks % 2 == 1:
                a("s_waitcnt lgkmcnt(0)")
        a("s_waitcnt lgkmcnt(0)")
        if pi + 2 < len(pieces):
            issue(pi + 2)


def gen_reduce4(a, dst):
    a("s_barrier")
    for t in range(4):
        a(f"ds_write_b128 v8, v[{ACC7+4*t}:{ACC7+4*t+3}] offset:{t*1024}")
    a("s_waitcnt lgkmcnt(0)")
    a("s_barrier")
    for w in range(4):
        a(f"ds_read_b128 v[{ACC7+4*w}:{ACC7+4*w+3}], v9 offset:{w*4096}")
    a("s_waitcnt lgkmcnt(0)")
    a(f"""
    v_pk_add_f32 v[{ACC7}:{ACC7+1}], v[{ACC7}:{ACC7+1}], v[{ACC7+4}:{ACC7+5}]
    v_pk_add_f32 v[{ACC7+2}:{ACC7+3}], v[{ACC7+2}:{ACC7+3}], v[{ACC7+6}:{ACC7+7}]
    v_pk_add_f32 v[{ACC7+8}:{ACC7+9}], v[{ACC7+8}:{ACC7+9}], v[{ACC7+12}:{ACC7+13}]
    v_pk_add_f32 v[{ACC7+10}:{ACC7+11}], v[{ACC7+10}:{ACC7+11}], v[{ACC7+14}:{ACC7+15}]
    v_pk_add_f32 v[{dst}:{dst+1}], v[{ACC7}:{ACC7+1}], v[{ACC7+8}:{ACC7+9}]
    v_pk_add_f32 v[{dst+2}:{dst+3}], v[{ACC7+2}:{ACC7+3}], v[{ACC7+10}:{ACC7+11}]
    """)


def round4(a, r):
    for j in range(2):
        a(f"""
        v_cvt_pk_bf16_f32 v{r+2*j+1}, v{r+2*j}, v{r+2*j+1}
        v_lshlrev_b32 v{r+2*j}, 16, v{r+2*j+1}
        v_and_b32 v{r+2*j+1}, 0xffff0000, v{r+2*j+1}
        """)


W2F = 128
def gen_gate_setup(a):
    srd_from_arg(a, 44, ARG_W2, 1376 * 512 * 2)
    srd_from_arg(a, 48, ARG_B2, 1024)
    a(f"s_mul_i32 s22, s17, {11*32*1024}")
    a("buffer_load_dwordx2 v[14:15], v11, s[48:51], 0 offen")
    gen_stage_weights(a, 44, 22, 11, lambda ks, ct, u: f"v[{W2F+(ks*2+ct)*4+2*u}:{W2F+(ks*2+ct)*4+2*u+1}]")
    a("""
    v_lshlrev_b32 v12, 16, v14
    v_and_b32 v13, 0xffff0000, v14
    v_lshlrev_b32 v14, 16, v15
    v_and_b32 v15, 0xffff0000, v15
    """)


def gen_gate(a, s_seg, gdst, ldsc=""):
    H = 24
    a(f"""
    s_mul_i32 s19, s{s_seg}, {2*43*1024}
    s_mul_i32 s20, s17, {11*1024}
    s_add_u32 s19, s19, s20
    s_add_u32 s19, s19, {WS_HF:#x}
    """)
    for tt in range(2):
        for ks in range(11):
            if ks % 4 == 0:
                a(f"s_add_u32 s20, s19, {tt*43*1024 + ks*1024}")
            so = "s20"
            if ks == 10:
                a("s_cmp_eq_u32 s17, 3")
                a("s_cselect_b32 s21, 0x7ff00000, s20")
                so = "s21"
            r = H + (tt * 11 + ks) * 4
            a(f"buffer_load_dwordx4 v[{r}:{r+3}], v4, s[8:11], {so} offen offset:{(ks%4)*1024} {ldsc}")
    for tt in range(2):
        for ks in range(11):
            a(f"s_waitcnt vmcnt({21 - (tt*11+ks)})")
            for ct in range(2):
                d = ACC7 + (tt * 2 + ct) * 4
                w = W2F + (ks * 2 + ct) * 4
                r = H + (tt * 11 + ks) * 4
                c = "0" if ks == 0 else f"v[{d}:{d+3}]"
                a(f"v_mfma_f32_16x16x32_bf16 v[{d}:{d+3}], v[{w}:{w+3}], v[{r}:{r+3}], {c}")
    gen_reduce4(a, gdst)
    round4(a, gdst)
    for i in range(4):
        a(f"v_add_f32 v{gdst+i}, v{gdst+i}, v{12+i}")
    round4(a, gdst)
    for i in range(4):
        a(f"v_mul_f32 v{24+i}, {f2u(-LOG2E):#x}, v{gdst+i}")
    for i in range(4):
        a(f"v_exp_f32 v{24+i}, v{24+i}")
    for i in range(4):
        a(f"v_add_f32 v{24+i}, 1.0, v{24+i}")
    for i in range(4):
        a(f"v_rcp_f32 v{24+i}, v{24+i}")
    for i in range(4):
        a(f"v_mul_f32 v{gdst+i}, v{gdst+i}, v{24+i}")
    round4(a, gdst)


def gen_wo_setup(a):
    srd_from_arg(a, 44, ARG_WO, 4 << 20)
    srd_from_arg(a, 48, ARG_X, 2 << 20)
    srd_from_arg(a, 52, ARG_OUT, 2 << 20)
    a("s_lshl_b32 s22, s17, 20")
    gen_stage_weights(a, 44, 22, 32, lambda ks, ct, u: f"a[{(ks*2+ct)*4+2*u}:{(ks*2+ct)*4+2*u+1}]")


def gen_out_task(a, s_seg, gsrc, ldsc=""):
    NW = 48
    a(f"""
    s_lshl_b32 s23, s{s_seg}, 15
    buffer_load_dwordx2 v[16:17], v10, s[48:51], s23 offen
    s_lshl_b32 s19, s{s_seg}, 18
    s_lshl_b32 s20, s17, 15
    s_add_u32 s19, s19, s20
    s_add_u32 s19, s19, {WS_OF:#x}
    s_add_u32 s20, s19, 0x20000
    """)
    order = [(ks, tt) for ks in range(32) for tt in range(2)]

    def ld(i):
        ks, tt = order[i]
        r = 24 + (i % NW) * 4
        if ks % 4 == 0 and tt == 0 and ks:
            a("s_add_u32 s19, s19, 4096")
            a("s_add_u32 s20, s20, 4096")
        a(f"buffer_load_dwordx4 v[{r}:{r+3}], v4, s[8:11], s{19+tt} offen offset:{(ks%4)*1024} {ldsc}")

    for i in range(NW):
        ld(i)
    issued = NW
    for i, (ks, tt) in enumerate(order):
        a(f"s_waitcnt vmcnt({issued - 1 - i})")
        r = 24 + (i % NW) * 4
        for ct in range(2):
            d = ACC7 + (tt * 2 + ct) * 4
            w = (ks * 2 + ct) * 4
            c = "0" if ks == 0 else f"v[{d}:{d+3}]"
            a(f"v_mfma_f32_16x16x32_bf16 v[{d}:{d+3}], a[{w}:{w+3}], v[{r}:{r+3}], {c}")
        if issued < 64:
            ld(issued)
            issued += 1
    gen_reduce4(a, 24)
    round4(a, 24)
    for i in range(4):
        a(f"v_mul_f32 v{24+i}, v{24+i}, v{gsrc+i}")
    round4(a, 24)
    a("""
    v_lshlrev_b32 v28, 16, v16
    v_and_b32 v29, 0xffff0000, v16
    v_lshlrev_b32 v30, 16, v17
    v_and_b32 v31, 0xffff0000, v17
    """)
    for i in range(4):
        a(f"v_add_f32 v{24+i}, v{24+i}, v{28+i}")
    a("""
    v_cvt_pk_bf16_f32 v24, v24, v25
    v_cvt_pk_bf16_f32 v25, v26, v27
    buffer_store_dwordx2 v[24:25], v10, s[52:55], s23 offen
    """)


def gen_out_kernel(a, name):
    kernel_header(a, name)
    ex = name + "_exit"
    common_prologue(a, 256, ex)
    a("""
    s_lshr_b32 s40, s2, 3
    s_and_b32 s40, s40, 15
    s_and_b32 s41, s2, 7
    s_lshr_b32 s19, s2, 7
    s_lshl_b32 s19, s19, 3
    s_add_u32 s41, s41, s19
    """)
    gen_out_consts(a, 40)
    gen_gate_setup(a)
    for i in range(4):
        a(f"s_add_u32 s42, s41, {16*i}")
        gen_gate(a, 42, GST + 4 * i)
    gen_wo_setup(a)
    for i in range(4):
        a(f"s_add_u32 s42, s41, {16*i}")
        gen_out_task(a, 42, GST + 4 * i)
    a(f"{ex}:")
    a("s_endpgm")
```

```python
import sys
sys.path.insert(0, "gen")
from asmlib import *
import hazard, chain, workers
HDR = open("recurrent_scan__memory_aug_recurrent_mem_tr__dense_activation_squared_relu__prompt.s.ref").read().split("; Override launch")[0]
opt = {}
for kv in sys.argv[2:]:
    k, v = kv.split("=")
    opt[k] = v if k == "sc" else int(v)
a = Asm()
for ln in HDR.strip().split("\n"):
    a.raw(ln)
a.raw("; @launch kernel=ln_kernel grid=(128,1,1) block=(256,1,1) lds=1024")
a.raw("; @launch kernel=gemm1_kernel grid=(256,1,1) block=(256,1,1) lds=131072")
a.raw(f"; @launch kernel=chain_kernel grid=(256,1,1) block=(256,1,1) lds={chain.LDS_BYTES}")
a.raw("; @launch kernel=attn_kernel grid=(512,1,1) block=(256,1,1) lds=0")
a.raw("; @launch kernel=out_kernel grid=(256,1,1) block=(256,1,1) lds=147456")
a.raw('.amdgcn_target "amdgcn-amd-amdhsa--gfx950"')
a.raw(".text")
workers.gen_ln_kernel(a, "ln_kernel")
workers.gen_gemm1_kernel(a, "gemm1_kernel")
chain.gen_chain_kernel(a, "chain_kernel", opt)
workers.gen_attn_kernel(a, "attn_kernel")
workers.gen_out_kernel(a, "out_kernel")
a.lines = hazard.fix(a.lines, True)
a.raw('.section .rodata,"a"')
for nm, vg, acc in (("ln_kernel", 128, 128), ("gemm1_kernel", 512, 256), ("chain_kernel", 512, 256), ("attn_kernel", 208, 208), ("out_kernel", 512, 256)):
    a.raw(".p2align 6")
    a.raw(kernel_desc(nm, vg, acc))
open(sys.argv[1], "w").write(a.text())
```

```python
class Asm:
    def __init__(self):
        self.lines = []
        self._uid = 0

    def __call__(self, s):
        for ln in s.strip("\n").split("\n"):
            ln = ln.strip()
            if ln:
                self.lines.append("    " + ln)

    def raw(self, s):
        self.lines.append(s)

    def label(self, name):
        self.lines.append(name + ":")

    def uid(self, prefix="L"):
        self._uid += 1
        return f"{prefix}_{self._uid}"

    def comment(self, s):
        self.lines.append("    ; " + s)

    def text(self):
        return "\n".join(self.lines) + "\n"


def vr(base, n=1):
    return f"v{base}" if n == 1 else f"v[{base}:{base+n-1}]"


def ar(base, n=1):
    return f"a{base}" if n == 1 else f"a[{base}:{base+n-1}]"


def sr(base, n=1):
    return f"s{base}" if n == 1 else f"s[{base}:{base+n-1}]"


def kernel_header(a, name):
    a.raw(f".globl {name}")
    a.raw(".p2align 8")
    a.raw(f".type {name},@function")
    a.label(name)


def kernel_desc(name, vgpr, accum, sgpr=102):
    return f""".amdhsa_kernel {name}
  .amdhsa_next_free_vgpr {vgpr}
  .amdhsa_next_free_sgpr {sgpr}
  .amdhsa_accum_offset {accum}
  .amdhsa_group_segment_fixed_size 0
  .amdhsa_kernarg_size 120
  .amdhsa_user_sgpr_count 2
  .amdhsa_user_sgpr_kernarg_segment_ptr 1
  .amdhsa_system_sgpr_workgroup_id_x 1
.end_amdhsa_kernel
"""


def make_srd(a, d, base, nbytes):
    a(f"s_mov_b32 s{d}, s{base}")
    a(f"s_and_b32 s{d+1}, s{base+1}, 0xffff")
    a(f"s_mov_b32 s{d+2}, {nbytes:#x}")
    a(f"s_mov_b32 s{d+3}, 0x00020000")


class Track:
    def __init__(self, a):
        self.a = a
        self.ds = []
        self.vm = []

    def dsop(self, text, tag=None):
        self.a(text)
        self.ds.append(tag)
        assert len(self.ds) <= 15 or True

    def vmop(self, text, tag=None):
        self.a(text)
        self.vm.append(tag)

    def wait_ds(self, *tags):
        idx = -1
        for t in tags:
            for i, x in enumerate(self.ds):
                if x == t:
                    idx = max(idx, i)
        if idx < 0:
            return
        n = len(self.ds) - 1 - idx
        assert n <= 15, n
        self.a(f"s_waitcnt lgkmcnt({n})")
        self.ds = self.ds[idx + 1:]

    def wait_ds_all(self):
        if self.ds:
            self.a("s_waitcnt lgkmcnt(0)")
        self.ds = []

    def wait_vm(self, *tags):
        idx = -1
        for t in tags:
            for i, x in enumerate(self.vm):
                if x == t:
                    idx = max(idx, i)
        if idx < 0:
            return
        n = len(self.vm) - 1 - idx
        assert n <= 63
        self.a(f"s_waitcnt vmcnt({n})")
        self.vm = self.vm[idx + 1:]

    def reset(self):
        self.ds = []
        self.vm = []
```

```python
import sys, struct, math
sys.path.insert(0, "gen")
from asmlib import *
from layout import *

TIMEOUT = 400000
WREG = 36 * 1024
L_MIR = 4 * WREG
L_QL = L_MIR + 0x2000
L_KL = L_QL + 0x1000
LDS_BYTES = 163840
assert L_KL + 0x1000 == LDS_BYTES


def f2u(f):
    return struct.unpack("<I", struct.pack("<f", f))[0]


C_SCALE = f2u(128 ** -0.5 * math.log2(math.e))

CONST, LANE16, MW, MR1, SPR, IDX, PS, PUB, QW, KW, TR, WL, KXA, TG, SPW = 0, 1, 2, 3, 6, 7, 8, 9, 10, 11, 12, 16, 17, 18, 19
MA, A1, A2, A3, X0, X1, X2, KX, KXN, VXN, H, PVB = 20, 52, 60, 68, 76, 84, 92, 100, 108, 116, 124, 128
P, MISC = X2, X2 + 4
WV0 = 144

LDS_BLOCKS = [("q", 0), ("q", 1), ("k", 0), ("q", 6), ("q", 7), ("k", 5), ("v", 5), ("o", (2, 1)), ("o", (3, 1))]
REG_BLOCKS = [b for b in ([(k, j) for k in "qkv" for j in range(8)] + [("o", (p, jp)) for p in range(4) for jp in range(2)])
              if b not in LDS_BLOCKS]
assert len(REG_BLOCKS) == 23


def wreg(blk, t):
    i = REG_BLOCKS.index(blk) * 2 + t
    if i < 32:
        return "a", i * 8
    return "v", WV0 + (i - 32) * 8


def wop(blk, t):
    f, b = wreg(blk, t)
    return f"{f}[{b}:{b+7}]"


NB = len(REG_BLOCKS) + len(LDS_BLOCKS)
ORDER = REG_BLOCKS + LDS_BLOCKS


def slot_of(i):
    return i % 9


def lds_frag_off(blk, t):
    i = ORDER.index(blk)
    return slot_of(i) * 4096 + t * 2048


L_FREE = lds_frag_off(("q", 1), 1) + 1024


def gen_setup(a, opt):
    SC = opt.get("sc", "")
    N, G, R, C, L = 116, 117, 118, 119, 120
    a(f"""
    v_and_b32 v{L}, 63, v0
    v_and_b32 v{N}, 15, v{L}
    v_lshrrev_b32 v{G}, 4, v{L}
    v_lshrrev_b32 v{R}, 2, v{N}
    v_and_b32 v{C}, 3, v{N}
    v_lshlrev_b32 v{LANE16}, 4, v{L}
    s_mul_i32 s36, s17, {WREG}
    v_add_u32 v{WL}, s36, v{LANE16}
    """)

    def srd_from_arg(d, arg, nbytes):
        a(f"s_load_dwordx2 s[20:21], s[0:1], {arg}")
        a("s_waitcnt lgkmcnt(0)")
        make_srd(a, d, 20, nbytes)

    srd_from_arg(44, ARG_WQ, 4 << 20)
    srd_from_arg(48, ARG_WK, 4 << 20)
    srd_from_arg(52, ARG_WV, 4 << 20)
    srd_from_arg(56, ARG_WO, 4 << 20)
    srd_from_arg(60, ARG_MEM0, 8192)
    a(f"""
    v_and_b32 v26, 1, v{G}
    v_lshlrev_b32 v27, 1, v26
    v_xor_b32 v27, v27, v{C}
    v_lshlrev_b32 v27, 4, v27
    v_lshrrev_b32 v28, 1, v{R}
    v_and_b32 v29, 1, v{R}
    v_lshl_add_u32 v24, v{G}, 2, v28
    v_lshl_add_u32 v24, v29, 4, v24
    v_lshl_add_u32 v24, v24, 13, v27
    s_lshl_b32 s19, s16, 8
    s_lshl_b32 s20, s17, 6
    s_add_u32 s19, s19, s20
    v_add_u32 v24, s19, v24
    s_and_b32 s19, s17, 1
    v_lshrrev_b32 v25, 5, v27
    v_xor_b32 v25, s19, v25
    v_lshlrev_b32 v25, 5, v25
    v_lshl_add_u32 v25, v26, 4, v25
    v_lshrrev_b32 v30, 1, v{G}
    v_lshl_add_u32 v25, v30, 2, v25
    v_add_u32 v25, v25, v29
    v_lshlrev_b32 v25, 10, v25
    v_lshl_add_u32 v25, v28, 5, v25
    v_and_b32 v30, 16, v27
    v_add_u32 v25, v25, v30
    s_lshl_b32 s19, s17, 8
    v_add_u32 v25, s19, v25
    """)
    a(f"""
    v_lshl_add_u32 v27, v{G}, 2, v{R}
    v_lshlrev_b32 v27, 6, v27
    v_lshl_add_u32 v27, v26, 5, v27
    v_lshl_add_u32 v27, v{C}, 3, v27
    v_add_u32 v27, s36, v27
    v_xor_b32 v28, 32, v27
    """)
    for c in range(4):
        a(f"s_xor_b32 s19, s17, {c}")
        a(f"s_and_b32 s20, s19, 1")
        a(f"s_lshl_b32 s20, s20, 21")
        a(f"s_lshr_b32 s19, s19, 1")
        a(f"s_lshl_b32 s19, s19, 18")
        a(f"s_add_u32 s{40+c}, s19, s20")
    a("""
    s_lshr_b32 s19, s17, 1
    s_lshl_b32 s19, s19, 16
    s_lshl_b32 s38, s16, 17
    s_add_u32 s38, s38, s19
    s_xor_b32 s39, s38, 0x10000
    """)
    srd_of = {"q": 44, "k": 48, "v": 52, "o": 56}

    def issue(i):
        kind, idx = ORDER[i]
        srd = srd_of[kind]
        for ip in range(4):
            a(f"s_add_u32 m0, s36, {slot_of(i)*4096 + ip*1024}")
            if kind == "o":
                p, u = idx
                a(f"s_add_u32 s19, s{38+u}, {(8*(ip>>1) + 2*(ip&1))*1024 + p*64}")
                a(f"buffer_load_dwordx4 v25, s[{srd}:{srd+3}], s19 offen lds")
            else:
                a(f"s_add_u32 s19, s{40+(idx>>1)}, {(64*(idx&1) + 128*(ip>>1) + 2*(ip&1))*8192}")
                a(f"buffer_load_dwordx4 v24, s[{srd}:{srd+3}], s19 offen lds")

    def consume(i):
        blk = ORDER[i]
        so = slot_of(i) * 4096
        for t in range(2):
            if blk in REG_BLOCKS:
                f, b = wreg(blk, t)
            else:
                f, b = "v", 32 + 8 * t
            for ip in range(4):
                r = b + 2 * ip
                if blk == ("q", 1) and t == 1 and ip >= 2:
                    r = H + 2 * (ip - 2)
                a(f"ds_read_b64_tr_b16 {f}[{r}:{r+1}], v{27+t} offset:{so + ip*1024}")
        a("s_waitcnt lgkmcnt(0)")
        if blk not in REG_BLOCKS:
            for q in range(4):
                r = 32 + 4 * q
                if blk == ("q", 1) and q == 3:
                    r = 48
                a(f"ds_write_b128 v{WL}, v[{r}:{r+3}] offset:{so + q*1024}")
            a("s_waitcnt lgkmcnt(0)")

    for i in range(9):
        issue(i)
    a(f"""
    s_lshl_b32 s19, s17, 11
    s_add_u32 s19, s19, {L_MIR:#x}
    v_add_u32 v{MW}, s19, v{LANE16}
    v_xor_b32 v{MR1}, 0x800, v{MW}
    v_xor_b32 v{MR1+1}, 0x1000, v{MW}
    v_xor_b32 v{MR1+2}, 0x1800, v{MW}
    v_bfe_u32 v30, v{L}, 1, 1
    v_mov_b32 v{IDX}, 0x44444444
    v_mov_b32 v31, 0xeeeeeeee
    v_cmp_ne_u32 vcc, 0, v30
    v_cndmask_b32 v{IDX}, v{IDX}, v31, vcc
    """)
    assert L_MIR % 0x2000 == 0 and L_QL % 0x1000 == 0
    a(f"""
    v_and_b32 v32, 1, v{N}
    v_lshl_add_u32 v31, v{R}, 1, v32
    v_lshrrev_b32 v35, 1, v{G}
    v_lshlrev_b32 v33, 3, v{N}
    v_add_u32 v33, {L_MIR:#x}, v33
    v_lshl_add_u32 v{SPR}, v{G}, 9, v33
    v_lshl_add_u32 v{SPR}, v30, 7, v{SPR}
    v_lshl_add_u32 v{SPW}, v{G}, 7, v33
    s_lshl_b32 s19, s17, 9
    v_add_u32 v{SPW}, s19, v{SPW}
    v_lshlrev_b32 v{KXA}, 10, v30
    v_lshl_add_u32 v{KXA}, v{G}, 8, v{KXA}
    v_lshl_add_u32 v{KXA}, v31, 4, v{KXA}
    """)
    a(f"""
    v_lshrrev_b32 v30, 3, v{N}
    v_lshlrev_b32 v{PS}, 13, v30
    v_lshl_add_u32 v{PS}, v{G}, 11, v{PS}
    v_and_b32 v33, 7, v{N}
    v_lshl_add_u32 v{PS}, v33, 3, v{PS}
    """)
    a(f"""
    s_lshl_b32 s19, s17, 10
    s_add_u32 s19, s19, {L_QL:#x}
    v_lshlrev_b32 v33, 3, v33
    v_lshl_add_u32 v33, v30, 8, v33
    v_add_u32 v33, s19, v33
    v_xor_b32 v36, v{G}, v30
    v_lshl_add_u32 v{QW}, v36, 6, v33
    v_lshl_add_u32 v36, v26, 1, v35
    v_xor_b32 v36, v36, v30
    v_lshl_add_u32 v33, v36, 6, v33
    v_add_u32 v{KW}, {L_KL-L_QL+512:#x}, v33
    v_lshlrev_b32 v33, 8, v35
    v_xor_b32 v36, v{C}, v35
    v_lshl_add_u32 v33, v36, 6, v33
    v_lshl_add_u32 v33, v26, 5, v33
    v_lshl_add_u32 v33, v{R}, 3, v33
    v_add_u32 v{TG}, {L_KL:#x}, v33
    v_add_u32 v{TR}, s19, v33
    v_xor_b32 v{TR+1}, 0x400, v{TR}
    v_xor_b32 v{TR+2}, 0x800, v{TR}
    v_xor_b32 v{TR+3}, 0xc00, v{TR}
    v_mov_b32 v{CONST}, {WREG + L_FREE:#x}
    """)
    a(f"""
    v_bfe_u32 v30, v{N}, 1, 1
    v_bfe_u32 v31, v{N}, 2, 1
    v_bfe_u32 v33, v{N}, 1, 2
    v_lshlrev_b32 v{PUB}, 4, v33
    v_lshl_add_u32 v{PUB}, v{G}, 2, v{PUB}
    s_lshl_b32 s19, s16, 8
    s_lshl_b32 s20, s17, 6
    s_add_u32 s19, s19, s20
    v_add_u32 v{PUB}, s19, v{PUB}
    v_and_b32 v33, 9, v{N}
    v_cmp_ne_u32 vcc, 0, v33
    v_mov_b32 v33, 0x7fffff00
    v_cndmask_b32 v{PUB}, v{PUB}, v33, vcc
    v_lshlrev_b32 v33, 10, v30
    v_lshl_add_u32 v33, v31, 1, v33
    v_lshl_add_u32 v33, v32, 5, v33
    v_lshl_add_u32 v33, v{G}, 2, v33
    s_bfe_u32 s19, s16, 0x20001
    s_lshl_b32 s19, s19, 8
    s_lshr_b32 s20, s16, 3
    s_lshl_b32 s20, s20, 6
    s_add_u32 s19, s19, s20
    s_and_b32 s20, s16, 1
    s_lshl_b32 s20, s20, 4
    s_add_u32 s19, s19, s20
    s_lshl_b32 s20, s17, 11
    s_add_u32 s19, s19, s20
    buffer_load_ushort v34, v33, s[60:63], s19 offen
    """)
    a(f"""
    v_lshlrev_b32 v35, 2, v31
    v_lshl_add_u32 v35, v32, 1, v35
    v_add_u32 v35, v35, v30
    """)
    for d in range(4):
        a(f"""
        v_mov_b32 v{48+d}, 0
        v_cmp_eq_u32 vcc, {2*d}, v35
        v_mov_b32 v36, 0x3f80
        v_cndmask_b32 v{48+d}, v{48+d}, v36, vcc
        v_cmp_eq_u32 vcc, {2*d+1}, v35
        v_mov_b32 v36, 0x3f800000
        v_cndmask_b32 v{48+d}, v{48+d}, v36, vcc
        """)
    lab = a.uid("C_sel")
    a(f"""
    s_cmp_eq_u32 s17, 0
    s_cbranch_scc1 {lab}
    v_cmp_eq_u32 vcc, 1, v{L}
    v_mov_b32 v35, 0
    v_mov_b32 v36, 0x3f803f80
    v_mov_b32 v37, 0x3e803e80
    v_cndmask_b32 v48, v35, v36, vcc
    v_cndmask_b32 v49, v35, v36, vcc
    v_cndmask_b32 v50, v35, v37, vcc
    v_cndmask_b32 v51, v35, v37, vcc
    {lab}:
    """)
    a(f"""
    s_lshl_b32 s19, s16, 13
    s_lshl_b32 s20, s17, 11
    s_add_u32 s19, s19, s20
    s_add_u32 s25, s19, {WS_MB1:#x}
    s_add_u32 s26, s25, 0x40000
    s_add_u32 s32, s19, {WS_VF:#x}              ; Vx
    s_lshl_b32 s19, s17, 14
    s_lshl_b32 s20, s16, 6
    s_add_u32 s19, s19, s20
    s_add_u32 s27, s19, {WS_MB1:#x}
    s_lshl_b32 s19, s16, 13
    s_lshr_b32 s20, s17, 1
    s_lshl_b32 s20, s20, 12
    s_add_u32 s19, s19, s20
    s_and_b32 s20, s17, 1
    s_lshl_b32 s20, s20, 7
    s_add_u32 s19, s19, s20
    s_add_u32 s31, s19, {WS_KF:#x}              ; Kx
    s_lshl_b32 s19, s16, 12
    s_lshl_b32 s20, s17, 10
    s_add_u32 s19, s19, s20
    s_add_u32 s33, s19, {WS_KM:#x}              ; k/v export
    s_mov_b32 s34, 0x0000ffff
    s_mov_b32 s35, 0x0000ffff
    s_mov_b32 s64, {C_SCALE:#x}
    """)
    for i in range(4):
        a(f"v_mov_b32 v{P+i}, -1")
    for so in (25, 26):
        for i in range(2):
            a(f"buffer_store_dwordx4 v[{P}:{P+3}], v{LANE16}, s[8:11], s{so} offen offset:{i*1024} {SC}")
    for r in range(1, 4):
        a(f"s_mov_b32 s19, {WS_MB2 + r*8192:#x}")
        a(f"buffer_store_dword v{P}, v{PUB}, s[8:11], s19 offen {SC}")
    a(f"""
    s_waitcnt vmcnt(7)
    v_mov_b32_dpp v35, v34 quad_perm:[1,0,3,2] row_mask:0xf bank_mask:0xf
    v_lshl_or_b32 v34, v35, 16, v34
    s_mov_b32 s19, {WS_MB2:#x}
    buffer_store_dword v34, v{PUB}, s[8:11], s19 offen {SC}
    """)
    for i in range(NB):
        if i >= 9:
            a(f"s_waitcnt vmcnt({4*min(8, NB-1-i)})")
        consume(i)
        if i + 9 < NB:
            issue(i + 9)


def gen_prefetch0(a, ldsc=""):
    a(f"""
    buffer_load_dwordx4 v[{KXN}:{KXN+3}], v{KXA}, s[8:11], s31 offen {ldsc}
    buffer_load_dwordx4 v[{KXN+4}:{KXN+7}], v{KXA}, s[8:11], s31 offen offset:2048 {ldsc}
    buffer_load_dwordx4 v[{VXN}:{VXN+3}], v{LANE16}, s[8:11], s32 offen {ldsc}
    buffer_load_dwordx4 v[{VXN+4}:{VXN+7}], v{LANE16}, s[8:11], s32 offen offset:1024 {ldsc}
    """)


def gen_kvwait(a, lab, fail, t0, t1):
    a(f"""
    v_lshrrev_b32 v{t0}, 2, v{LANE16}
    v_and_b32 v{t0}, 63, v{t0}
    s_mov_b32 s21, 0
    {lab}:
    buffer_load_dword v{t1}, v{t0}, s[8:11], s29 offen sc1
    s_add_u32 s21, s21, 1
    s_cmp_gt_u32 s21, {TIMEOUT}
    s_cbranch_scc1 {fail}
    s_waitcnt vmcnt(0)
    v_min_u32_dpp v{t1}, v{t1}, v{t1} row_ror:8 row_mask:0xf bank_mask:0xf
    v_min_u32_dpp v{t1}, v{t1}, v{t1} row_ror:4 row_mask:0xf bank_mask:0xf
    v_min_u32_dpp v{t1}, v{t1}, v{t1} row_ror:2 row_mask:0xf bank_mask:0xf
    v_min_u32_dpp v{t1}, v{t1}, v{t1} row_ror:1 row_mask:0xf bank_mask:0xf
    v_readfirstlane_b32 s37, v{t1}
    s_lshl_b32 s37, s37, 2
    s_cmp_ge_u32 s19, s37
    s_cbranch_scc1 {lab}
    s_cmp_ge_u32 s37, 64
    s_cselect_b32 s37, 1000, s37
    """)


def gen_loop(a, opt, pfx="C"):
    D1 = opt.get("d1", 4)
    D2 = opt.get("d2", 4)
    NSTEP = opt.get("nstep", 64)
    SC = opt.get("sc", "")
    XSC = opt.get("xsc", "")
    ST = opt.get("stamps", 0)
    o = lambda k, d: opt.get(k, d)
    T = Track(a)

    sq = [0, 1, 2, 3, 11, 4, 5, 6, 7, 8, 9, 10]
    def stamp(i):
        if ST == 1:
            a(f"s_memtime s[{70+2*i}:{71+2*i}]")

    n2 = [0]
    def stampn(mode):
        if ST == mode:
            i = sq[n2[0]]
            n2[0] += 1
            a(f"s_memtime s[{70+2*i}:{71+2*i}]")

    def smf(d, areg, b):
        a(f"v_smfmac_f32_16x16x64_bf16 v[{d}:{d+3}], v[{areg}:{areg+3}], {b}, v{IDX}")

    def vwin(r):
        return f"v[{r}:{r+7}]"

    def ldwin(r, blk, t, tag, half=False):
        of = lds_frag_off(blk, t)
        T.dsop(f"ds_read_b128 v[{r}:{r+3}], v{WL} offset:{of}", tag)
        if not half:
            T.dsop(f"ds_read_b128 v[{r+4}:{r+7}], v{WL} offset:{of+1024}", tag)

    def zero(r, n):
        for i in range(0, n, 2):
            a(f"v_mov_b64 v[{r+i}:{r+i+1}], 0")

    def nops(n):
        for _ in range(n):
            a("s_nop 0")

    ool = []

    def pl(r, so):
        a(f"buffer_load_dwordx4 v[{r}:{r+3}], v{LANE16}, s[8:11], s{so} offen sc1")
        if so == 22:
            a(f"buffer_load_dwordx4 v[{r+4}:{r+7}], v{LANE16}, s[8:11], s30 offen sc1")
        else:
            a(f"buffer_load_dwordx4 v[{r+4}:{r+7}], v{LANE16}, s[8:11], s{so} offen offset:1024 sc1")

    def poll(name, r, so, work, pre, gap, depth, spec, undo):
        work = list(work)
        def run(n):
            for _ in range(n):
                if work:
                    work.pop(0)()
                else:
                    a("s_nop 0")
        run(pre)
        for d in range(depth):
            pl(r, so)
            run(gap if d < depth - 1 else len(work))
        a(f"""
        s_waitcnt lgkmcnt(0)
        {pfx}_{name}:
        s_waitcnt vmcnt({2*(depth-1)})
        v_max3_u32 v{MISC}, v{r}, v{r+1}, v{r+2}
        v_max3_u32 v{MISC+1}, v{r+3}, v{r+4}, v{r+5}
        v_max3_u32 v{MISC}, v{MISC}, v{r+6}, v{r+7}
        """)
        T.reset()
        spec(0)
        a(f"v_max_u32 v{MISC}, v{MISC}, v{MISC+1}")
        a(f"v_cmp_eq_u32 vcc, -1, v{MISC}")
        spec(1)
        a(f"s_cbranch_vccnz {pfx}_{name}_re")

        def re():
            a(f"{pfx}_{name}_re:")
            a("s_mov_b64 exec, vcc")
            pl(r, so)
            a(f"""
            s_mov_b64 exec, -1
            s_add_u32 s21, s21, 1
            s_cmp_gt_u32 s21, {TIMEOUT}
            s_cbranch_scc1 {pfx}_fail
            s_nop 2
            """)
            undo()
            a(f"s_branch {pfx}_{name}")
        ool.append(re)

    W1 = {(("q", 0), 0): MA + 8, (("q", 0), 1): MA + 16, (("q", 1), 0): MA + 24, (("q", 1), 1): VXN + 4,
          (("k", 0), 0): KXN, (("k", 0), 1): X0, (("q", 6), 0): X1}
    W2 = {(("q", 6), 1): (X2,), (("q", 7), 0): (X0,), (("q", 7), 1): (MA,),
          (("k", 5), 0): (X1,), (("k", 5), 1): (MA,), (("v", 5), 0): (X2,), (("v", 5), 1): (A1,)}
    SEL = A2
    QB = X0
    S = X1

    def I(x):
        return lambda: a(x)

    def idle1():
        w = [I(f"ds_read_b128 v[{SEL}:{SEL+3}], v{LANE16} offset:{L_FREE}")]
        for i in range(0, 8, 2):
            w.append(I(f"v_mov_b64 v[{MA+i}:{MA+i+1}], -1"))
        w.append(I(f"v_mov_b64 v[{P}:{P+1}], -1"))
        w.append(I(f"v_mov_b64 v[{P+2}:{P+3}], -1"))
        w += [I(x) for x in f"""s_add_u32 s19, s18, 1
        s_and_b32 s19, s19, 3
        s_lshl_b32 s23, s19, 13
        s_add_u32 s23, s23, {WS_MB2:#x}
        s_lshl_b32 s19, s17, 10
        s_add_u32 s22, s23, s19
        s_add_u32 s30, s22, 0x1000""".split("\n")]
        for (blk, t), r in W1.items():
            if r == KXN:
                for i in range(0, 8, 2):
                    w.append(I(f"v_mov_b64 v[{KX+i}:{KX+i+1}], v[{KXN+i}:{KXN+i+1}]"))
            if r != VXN + 4:
                of = lds_frag_off(blk, t)
                w.append(I(f"ds_read_b128 v[{r}:{r+3}], v{WL} offset:{of}"))
                w.append(I(f"ds_read_b128 v[{r+4}:{r+7}], v{WL} offset:{of+1024}"))
        for t in range(2):
            w.append(I(f"v_mov_b64 v[{PVB+8*t}:{PVB+8*t+1}], v[{VXN+4*t}:{VXN+4*t+1}]"))
            w.append(I(f"v_mov_b64 v[{PVB+8*t+4}:{PVB+8*t+5}], v[{VXN+4*t+2}:{VXN+4*t+3}]"))
        w.append(I(f"ds_read_b128 v[{VXN+4}:{VXN+7}], v{WL} offset:{lds_frag_off(('q', 1), 1)}"))
        return w

    def idle2():
        w = [I(f"v_mov_b64 v[{A1+i}:{A1+i+1}], 0") for i in range(0, 16, 2)]
        w += [I(x) for x in f"""s_add_u32 s19, s18, 3
        s_and_b32 s19, s19, 3
        s_lshl_b32 s24, s19, 13
        s_add_u32 s24, s24, {WS_MB2:#x}
        s_add_u32 s31, s31, 0x40000
        s_add_u32 s32, s32, 0x40000
        s_mov_b32 s21, 1""".split("\n")]
        return w

    a("s_mov_b32 s18, -1")
    zero(PVB, 16)
    for fn in idle1():
        fn()
    a("s_mov_b32 s18, 0")
    a("s_waitcnt lgkmcnt(0)")
    if ST:
        for i in range(40, 56):
            a(f"s_mov_b32 s{i}, 0")
        for i in range(12):
            a(f"s_mov_b32 s{70+2*i}, 0")
        a("s_mov_b32 s56, 0")
    a(f"{pfx}_step:")
    FUSED = o("fused", 0)
    if FUSED:
        a(f"""
        s_add_u32 s19, s18, 1
        s_cmp_ge_u32 s19, s37
        s_cbranch_scc1 {pfx}_kvw
        {pfx}_kvok:
        """)

        def kvw():
            a(f"{pfx}_kvw:")
            gen_kvwait(a, f"{pfx}_kvl", f"{pfx}_fail", MISC + 2, MISC + 3)
            a(f"s_branch {pfx}_kvok")
        ool.append(kvw)
    w2 = idle2()
    if ST:
        def acc():
            a("s_waitcnt lgkmcnt(0)")
            lab = a.uid("C_st")
            a("s_cmp_lt_u32 s18, 2")
            a(f"s_cbranch_scc1 {lab}")
            for i in range(1, 11):
                a(f"s_sub_u32 s19, s{70+2*sq[i+1]}, s{70+2*sq[i]}")
                a(f"s_add_u32 s{40+i}, s{40+i}, s19")
            a("s_sub_u32 s19, s72, s56")
            a("s_add_u32 s40, s40, s19")
            a("s_add_u32 s53, s53, s57")
            a(f"{lab}:")
            a("s_mov_b32 s56, s90")
        a("s_mov_b32 s57, s21")
        w2.append(acc)

    def gemv(kind, j, t):
        blk = (kind, j)
        acc = {"q": A1, "k": A2, "v": A3}[kind] + 4 * t
        tags = []
        if j >= 2:
            tags.append(f"ma{j}")
        if (blk, t) in W1:
            b = vwin(W1[(blk, t)])
        elif (blk, t) in W2:
            tags.append(f"w2{kind}{j}{t}")
            b = vwin(W2[(blk, t)][0])
        else:
            b = wop(blk, t)
        T.wait_ds(*tags)
        smf(acc, MA + 4 * j, b)

    own = [(0, 0), (0, 1), (1, 0), (1, 1)]
    rest = [(j, t) for t in range(2) for j in range(2, 8)]
    seq = [(k, j, t) for k in "qkv" for j, t in own] + [(k, j, t) for k in "qkv" for j, t in rest]
    acts = {i: [] for i in range(0, 50)}

    def at(slot, fn):
        acts[slot].append(fn if callable(fn) else (lambda s=fn: a(s)))

    if not o("nopf", 0):
        at(2, f"buffer_load_dwordx4 v[{VXN}:{VXN+3}], v{LANE16}, s[8:11], s32 offen {XSC}")
        at(5, f"buffer_load_dwordx4 v[{VXN+4}:{VXN+7}], v{LANE16}, s[8:11], s32 offen offset:1024 {XSC}")
        at(7, f"buffer_load_dwordx4 v[{KXN}:{KXN+3}], v{KXA}, s[8:11], s31 offen {XSC}")
        at(9, f"buffer_load_dwordx4 v[{KXN+4}:{KXN+7}], v{KXA}, s[8:11], s31 offen offset:2048 {XSC}")
    at(11, f"buffer_store_dwordx4 v[{P}:{P+3}], v{LANE16}, s[8:11], s26 offen {SC}")
    at(14, f"buffer_store_dwordx4 v[{P}:{P+3}], v{LANE16}, s[8:11], s26 offen offset:1024 {SC}")
    at(3, f"buffer_store_dword v{P}, v{PUB}, s[8:11], s24 offen {SC}")
    for i in range(4):
        at(3 + i, lambda i=i: zero(A3 + 2 * i, 2))
    if FUSED:
        at(8, f"v_mov_b32 v{MISC+2}, s18")
        at(10, "s_mov_b64 exec, 1")
        at(10, f"buffer_store_dword v{MISC+2}, v{LANE16}, s[8:11], s28 offen sc1")
        at(10, "s_mov_b64 exec, -1")
    at(16, f"s_waitcnt vmcnt({3 if o('nopf', 0) else 7 + FUSED})")
    b1 = o("b1", 7)

    def bar(tag, st):
        T.wait_ds(tag)
        a(f"s_barrier ; bar_{tag}")
        stamp(st)

    at(b1, lambda: bar("mw", 2))
    for j in range(2, 8):
        at(b1 + j - 2, lambda j=j: T.dsop(
            f"ds_read_b128 v[{MA+4*j}:{MA+4*j+3}], v{MR1+(j>>1)-1} offset:{(j&1)*1024}", f"ma{j}"))
    at(24, lambda: stamp(3))
    b2 = o("b2", 31)

    def ldhalf(blk, t, hf):
        r = W2[(blk, t)][0] + 4 * hf
        T.dsop(f"ds_read_b128 v[{r}:{r+3}], v{WL} offset:{lds_frag_off(blk, t) + 1024*hf}", f"w2{blk[0]}{blk[1]}{t}")

    for blk, t, sl in ((("q", 7), 0, 12), (("q", 6), 1, 15), (("q", 7), 1, 17), (("k", 5), 0, 19), (("k", 5), 1, 25),
                       (("v", 5), 0, 28), (("v", 5), 1, b2 + 2)):
        for hf in range(2):
            at(sl + hf, lambda blk=blk, t=t, hf=hf: ldhalf(blk, t, hf))
    at(21, lambda: nops(2))
    at(21, f"v_add_f32 v{A1}, v{A1}, v{A1+2}")
    at(22, f"v_add_f32 v{A1+1}, v{A1+1}, v{A1+3}")
    at(23, f"v_cvt_pk_bf16_f32 v{A1+2}, v{A1}, v{A1+1}")
    at(24, lambda: nops(3))
    at(25, lambda: nops(2))
    at(26, f"v_add_f32 v{A1+4}, v{A1+4}, v{A1+6}")
    at(26, f"v_add_f32 v{A1+5}, v{A1+5}, v{A1+7}")
    at(26, f"v_cvt_pk_bf16_f32 v{A1+3}, v{A1+4}, v{A1+5}")
    at(27, lambda: T.dsop(f"ds_write_b64 v{QW}, v[{A1+2}:{A1+3}] offset:{L_KL-L_QL}", "qw"))
    at(b2, lambda: bar("qw", 11))
    for i, sl in enumerate((0, 0, 1, 1)):
        at(b2 + sl, lambda i=i: T.dsop(f"ds_read_b64_tr_b16 v[{QB+2*i}:{QB+2*i+1}], v{TG} offset:{i*1024}", f"qb{i>>1}"))
    sx = o("sx", 35)

    def s_x(i):
        T.wait_ds(f"qb{i}")
        c = "0" if i == 0 else f"v[{S}:{S+3}]"
        a(f"v_mfma_f32_16x16x32_bf16 v[{S}:{S+3}], v[{KX+4*i}:{KX+4*i+3}], v[{QB+4*i}:{QB+4*i+3}], {c}")

    def presum(d, src):
        return [f"v_mov_b32_dpp v{d}, v{src} quad_perm:[0,1,0,1] row_mask:0xf bank_mask:0xf",
                f"v_mov_b32_dpp v{d+1}, v{src+1} quad_perm:[0,1,0,1] row_mask:0xf bank_mask:0xf",
                f"v_add_f32_dpp v{d}, v{src+2}, v{d} quad_perm:[2,3,2,3] row_mask:0xf bank_mask:0xf",
                f"v_add_f32_dpp v{d+1}, v{src+3}, v{d+1} quad_perm:[2,3,2,3] row_mask:0xf bank_mask:0xf"]

    at(33, f"v_add_f32 v{A2}, v{A2}, v{A2+2}")
    at(34, f"v_add_f32 v{A2+1}, v{A2+1}, v{A2+3}")
    at(sx, lambda: s_x(0))
    at(sx, f"v_cvt_pk_bf16_f32 v{A2}, v{A2}, v{A2+1}")
    at(sx, lambda: s_x(1))
    at(sx, lambda: nops(2))
    at(36, lambda: stamp(4))
    ps = presum(S + 4, S)
    at(36, lambda: nops(3))
    at(37, lambda: nops(1))
    at(37, ps[0])
    at(37, ps[1])
    at(38, f"v_add_f32 v{A2+4}, v{A2+4}, v{A2+6}")
    at(38, f"v_add_f32 v{A2+5}, v{A2+5}, v{A2+7}")
    at(38, f"v_cvt_pk_bf16_f32 v{A2+1}, v{A2+4}, v{A2+5}")
    at(39, lambda: T.dsop(f"ds_write_b64 v{KW}, v[{A2}:{A2+1}]", "kw"))
    at(39, ps[2])
    at(39, ps[3])
    at(40, lambda: T.dsop(f"ds_write_b64 v{SPW}, v[{S+4}:{S+5}]", "kw"))
    KA = MA
    b3 = o("b3", 44)
    at(b3, lambda: bar("kw", 5))
    for i, sl in enumerate((0, 0, 1, 1)):
        at(b3 + sl, lambda i=i: T.dsop(f"ds_read_b64_tr_b16 v[{KA+2*i}:{KA+2*i+1}], v{TG} offset:{i*1024+512}", f"ka{i>>1}"))
    at(b3 + 2, lambda: T.dsop(f"ds_read2_b64 v[{S}:{S+3}], v{SPR} offset0:0 offset1:32", "sr"))
    SM = P
    TM = S + 4
    M0, M1 = S + 6, S + 7
    WO = {(2, 0): MA, (2, 1): MA + 16, (3, 0): MA + 24, (3, 1): A1}
    ONES = A1
    PVA = [MA + 16, A2 + 4, MISC]
    PA = SM
    WA = [KX, KX + 4, MA + 8, MA + 12]

    def ldwo(p, t, hf):
        r = WO[(p, t)] + 4 * hf
        T.dsop(f"ds_read_b128 v[{r}:{r+3}], v{WL} offset:{lds_frag_off(('o', (p, 1)), t) + 1024*hf}", f"wo{p}{t}")

    def ldc(r, tag, off=0):
        T.dsop(f"ds_read_b128 v[{r}:{r+3}], v{CONST} offset:{off}", tag)

    def s_m(j):
        T.wait_ds(f"ka{j}")
        c = "0" if j == 0 else f"v[{SM}:{SM+3}]"
        a(f"v_mfma_f32_16x16x32_bf16 v[{SM}:{SM+3}], v[{KA+4*j}:{KA+4*j+3}], v[{QB+4*j}:{QB+4*j+3}], {c}")

    def vpost(t):
        d = A3 + 4 * t
        return [f"v_add_f32 v{d}, v{d}, v{d+2}", f"v_add_f32 v{d+1}, v{d+1}, v{d+3}",
                f"v_cvt_pk_bf16_f32 v{A2+2+t}, v{d}, v{d+1}",
                f"v_cndmask_b32 v{PVB+8*t+2}, 0, v{A2+2+t}, s[34:35]",
                f"v_cndmask_b32 v{PVB+8*t+6}, v{A2+2+t}, 0, s[34:35]"]

    at(41, lambda: ldc(PVA[2], "pva"))
    at(42, lambda: ldc(PVA[1], "pva"))
    for i in range(4):
        at(40 + i, lambda i=i: zero(KX + 2 * i, 2))
    v0, v1 = vpost(0), vpost(1)
    at(45, v0[0])
    at(46, v0[1])
    at(47, lambda: ldc(ONES, "pva", 16))
    at(47, v0[2])
    at(48, lambda: ldc(ONES + 4, "pva", 16))
    at(48, v0[3])
    at(48, lambda: s_m(0))
    at(48, lambda: T.wait_ds("sr"))
    at(48, v0[4])
    at(48, f"v_max3_f32 v{M0}, v{S}, v{S+1}, v{S+2}")
    at(48, lambda: s_m(1))
    at(48, lambda: stamp(6))
    pm = presum(TM, SM)
    tail = [
        lambda: ldc(PVA[0], "pva"),
        f"v_max_f32 v{M0}, v{M0}, v{S+3}",
        v1[0], v1[1],
        f"v_max_f32_dpp v{M0}, v{M0}, v{M0} quad_perm:[2,3,0,1] row_mask:0xf bank_mask:0xf",
        v1[2],
        "s_mov_b32 s19, s27",
        "s_xor_b32 s27, s27, 0x40000",
        pm[0], pm[1], v1[3], pm[2], pm[3],
        f"v_max3_f32 v{M1}, v{M0}, v{TM}, v{TM+1}",
        f"v_max3_f32 v{M0}, v{M0}, v{TM}, v{TM+1}",
        v1[4],
        f"s_cmp_eq_u32 s18, {NSTEP-1}",
        f"v_permlane32_swap_b32 v{M0}, v{M1}",
        f"v_max_f32 v{SM}, v{M0}, v{M1}",
        f"v_max_f32 v{M0}, v{M0}, v{M1}",
        (f"buffer_store_dwordx4 v[{A2}:{A2+3}], v{LANE16}, s[8:11], s33 offen {XSC}" if not o("noex", 0) else "s_nop 0"),
        f"s_cbranch_scc1 {pfx}_done",
        f"v_permlane16_swap_b32 v{M0}, v{SM}",
        f"v_max_f32 v{M0}, v{M0}, v{SM}",
        f"v_mul_f32 v{M0}, s64, v{M0}",
    ]
    for x in tail:
        at(48, x)
    NSP = o("nsp", 2)

    def spec2(i):
        if i == 0:
            T.dsop(f"ds_write_b128 v{MW}, v[{MA}:{MA+3}]", "mw")
            if NSP:
                gemv(*seq[0])
            T.dsop(f"ds_write_b128 v{MW}, v[{MA+4}:{MA+7}] offset:1024", "mw")
        elif NSP:
            gemv(*seq[1])

    poll("p2", MA, 22, w2, o("pre2", 0), o("gap2", 16), o("dp2", 2), spec2, lambda: zero(A1, 8) if NSP else None)
    stamp(1)
    for i, (k, j, t) in enumerate(seq):
        if i >= NSP:
            gemv(k, j, t)
        for fn in acts[i + 1]:
            fn()
    sv = [S, S + 1, S + 2, S + 3, TM, TM + 1]
    for r in sv:
        a(f"v_fma_f32 v{r}, v{r}, s64, -v{M0}")
    for r in sv:
        a(f"v_exp_f32 v{r}, v{r}")
    a(f"v_cvt_pk_bf16_f32 v{PA}, v{S}, v{S+1}")
    a(f"v_cvt_pk_bf16_f32 v{PA+2}, v{S+2}, v{S+3}")
    a(f"v_cvt_pk_bf16_f32 v{PA+1}, v{TM}, v{TM+1}")
    a(f"v_cvt_pk_bf16_f32 v{PA+3}, v{TM}, v{TM+1}")
    T.wait_ds("pva")
    smf(PVA[0], PA, vwin(ONES))
    stampn(2)
    stamp(7)
    ldc(WA[3], "wa")
    a(f"v_mov_b64 v[{A3}:{A3+1}], -1")
    smf(PVA[1], PA, vwin(PVB))
    ldc(WA[2], "wa")
    a(f"v_mov_b64 v[{A3+2}:{A3+3}], -1")
    smf(PVA[2], PA, vwin(PVB + 8))
    nops(2)
    Z = PVA[0]
    a(f"v_add_f32 v{Z}, v{Z}, v{Z+2}")
    a(f"v_add_f32 v{Z+1}, v{Z+1}, v{Z+3}")
    a(f"v_rcp_f32 v{Z}, v{Z}")
    a(f"v_rcp_f32 v{Z+1}, v{Z+1}")
    OA = [X0, X0 + 4, X1, X1 + 4]
    stampn(2)

    def ldoa(j, u):
        T.dsop(f"ds_read_b64_tr_b16 v[{OA[j]+2*u}:{OA[j]+2*u+1}], v{TR+j} offset:{u*512}", f"oa{j}")

    for t in range(2):
        d = PVA[1 + t]
        a(f"v_add_f32 v{d}, v{d}, v{d+2}")
        a(f"v_add_f32 v{d+1}, v{d+1}, v{d+3}")
        a(f"v_mul_f32 v{d}, v{d}, v{Z}")
        a(f"v_mul_f32 v{d+1}, v{d+1}, v{Z+1}")
        a(f"v_cvt_pk_bf16_f32 v{d+2}, v{d}, v{d+1}")
        a(f"v_cvt_pk_bf16_f32 v{d+3}, v{d}, v{d+1}")
        T.dsop(f"ds_write_b64 v{QW}, v[{d+2}:{d+3}] offset:{512*t}", "ow")
    ldoa(0, 0)
    ldoa(0, 1)
    stampn(2)
    for i in range(4, 8, 2):
        a(f"v_mov_b64 v[{A3+i}:{A3+i+1}], -1")
    stampn(2)
    T.wait_ds("ow")
    a("s_barrier ; bar_ow")
    stampn(2)
    stamp(8)

    def wo(p, j):
        tags = [f"oa{j}"]
        if p >= 2 and j >= 2:
            tags.append(f"wo{p}{j-2}")
            b = vwin(WO[(p, j - 2)])
        else:
            b = wop(("o", (p, j >> 1)), j & 1)
        T.wait_ds(*tags)
        smf(WA[p], OA[j], b)

    def epi_c(p, i):
        d = WA[p]
        a(f"v_cvt_pk_bf16_f32 v{d+i}, v{d+2*i}, v{d+2*i+1}")

    def epi_s(p):
        d = WA[p]
        a(f"buffer_store_dwordx2 v[{d}:{d+1}], v{PS}, s[8:11], s19 offen {SC}")
        if p < 3:
            a("s_add_u32 s19, s19, 0x10000")

    ldoa(1, 0)
    ldoa(1, 1)
    wo(0, 0)
    stampn(2)
    ldoa(2, 0)
    wo(1, 0)
    ldoa(2, 1)
    wo(2, 0)
    ldoa(3, 0)
    wo(3, 0)
    ldoa(3, 1)
    stampn(2)
    lw = iter([(2, 0, 0), (2, 0, 1), (2, 1, 0), (2, 1, 1), (3, 0, 0), (3, 0, 1), (3, 1, 0), (3, 1, 1)])

    def nlw():
        x = next(lw, None)
        if x:
            ldwo(*x)
        else:
            nops(1)

    for p in range(4):
        wo(p, 1)
        nlw()
        if p:
            nops(2)
        wo(p, 2)
        nlw()
        if p:
            epi_c(p - 1, 0)
            epi_c(p - 1, 1)
        wo(p, 3)
        stampn(2)
        if p:
            epi_s(p - 1)
        else:
            nlw()
            nlw()
    a("""
    s_add_u32 s33, s33, 0x20000
    """)
    if ST:
        a("s_add_u32 s52, s52, s21")
    a("s_mov_b32 s21, 1")
    epi_c(3, 0)
    epi_c(3, 1)
    epi_s(3)
    stampn(2)
    stamp(9)
    R = A1
    a(f"s_waitcnt vmcnt({4 if o('noex', 0) else 5})")

    def spec1(i):
        c = "0" if i == 0 else f"v[{R}:{R+3}]"
        a(f"v_mfma_f32_16x16x32_bf16 v[{R}:{R+3}], v[{A3+4*i}:{A3+4*i+3}], v[{SEL}:{SEL+3}], {c}")
        if i == 1:
            nops(5)

    poll("p1", A3, 25, idle1(), o("pre1", 0), o("gap1", 16), o("dp1", 2), spec1, lambda: None)
    a(f"""
    s_xor_b32 s25, s25, 0x40000
    s_xor_b32 s26, s26, 0x40000
    v_permlane32_swap_b32 v{R}, v{R+2}
    v_permlane32_swap_b32 v{R+1}, v{R+3}
    v_add_f32 v{R}, v{R}, v{R+2}
    v_add_f32 v{R+1}, v{R+1}, v{R+3}
    s_add_u32 s18, s18, 1
    v_permlane16_swap_b32 v{R}, v{R+1}
    v_add_f32 v{R}, v{R}, v{R+1}
    v_mov_b32_dpp v{R+1}, v{R} quad_perm:[1,0,3,2] row_mask:0xf bank_mask:0xf
    v_cvt_pk_bf16_f32 v{MISC}, v{R}, v{R+1}
    buffer_store_dword v{MISC}, v{PUB}, s[8:11], s23 offen {SC}
    """)
    T.reset()
    stamp(10)
    a(f"s_branch {pfx}_step")
    for fn in ool:
        fn()


def hoist_waits(lines):
    out = list(lines)
    mn = lambda i: out[i].split()[0] if out[i].strip() else ""
    ism = lambda m: m.startswith("v_mfma") or m.startswith("v_smfmac")
    for i in range(len(out) - 1):
        if mn(i) == "s_waitcnt" and "lgkmcnt" in out[i] and ism(mn(i + 1)):
            j = i
            while j > 0 and mn(j - 1).startswith("v_") and not ism(mn(j - 1)):
                j -= 1
            if j < i and i - j <= 3:
                out.insert(j, out.pop(i))
    return out


def gen_chain_kernel(a, name, opt):
    ST = opt.get("stamps", 0)
    kernel_header(a, name)
    a(f"""
    s_memrealtime s[66:67]
    s_cmp_ge_u32 s2, 256
    s_cbranch_scc1 C_exit
    s_load_dwordx2 s[4:5], s[0:1], {ARG_DBG}
    s_load_dwordx2 s[6:7], s[0:1], {ARG_WS}
    s_getreg_b32 s3, hwreg(HW_REG_XCC_ID)
    s_and_b32 s3, s3, 0xf
    v_lshrrev_b32 v2, 6, v0
    v_readfirstlane_b32 s17, v2
    s_waitcnt lgkmcnt(0)
    s_mov_b32 s65, s66
    """)
    make_srd(a, 8, 6, WS_SIZE)
    make_srd(a, 12, 4, 256)
    a(f"""
    s_cmp_lg_u32 s3, 0
    s_cbranch_scc1 C_exit
    v_mov_b32 v3, {L_KL:#x}
    v_mov_b32 v4, 1
    v_mov_b32 v5, 0
    s_cmp_lg_u32 s17, 0
    s_cbranch_scc1 C_noticket
    s_mov_b64 exec, 1
    buffer_atomic_add v4, v5, s[12:15], 0 offen sc0 sc1
    s_waitcnt vmcnt(0)
    ds_write_b32 v3, v4
    s_mov_b64 exec, -1
    s_waitcnt lgkmcnt(0)
    C_noticket:
    s_barrier
    ds_read_b32 v4, v3
    s_waitcnt lgkmcnt(0)
    v_readfirstlane_b32 s16, v4
    s_cmp_ge_u32 s16, 32
    s_cbranch_scc1 C_exit
    """)
    gen_setup(a, opt)
    gen_prefetch0(a)
    a(f"""
    s_waitcnt vmcnt(0)
    s_barrier
    s_cmp_lg_u32 s17, 0
    s_cbranch_scc1 C_nobar
    v_mov_b32 v32, 4
    v_mov_b32 v33, 1
    s_mov_b64 exec, 1
    buffer_atomic_add v33, v32, s[12:15], 0 offen sc1
    s_mov_b32 s21, 0
    C_barpoll:
    buffer_load_dword v33, v32, s[12:15], 0 offen sc1
    s_waitcnt vmcnt(0)
    v_readfirstlane_b32 s19, v33
    s_add_u32 s21, s21, 1
    s_cmp_gt_u32 s21, {TIMEOUT}
    s_cbranch_scc1 C_fail
    s_cmp_lt_u32 s19, 32
    s_cbranch_scc1 C_barpoll
    s_mov_b64 exec, -1
    C_nobar:
    s_barrier
    s_memrealtime s[68:69]
    s_memtime s[28:29]
    """)
    gen_loop(a, opt)
    a(f"""
    C_done:
    s_memrealtime s[30:31]
    s_memtime s[32:33]
    s_waitcnt lgkmcnt(0)
    s_sub_u32 s30, s30, s68
    s_sub_u32 s32, s32, s28
    """)
    if ST:
        a(f"""
        s_lshl_b32 s19, s16, 8
        s_lshl_b32 s20, s17, 6
        s_add_u32 s19, s19, s20
        s_add_u32 s19, s19, {WS_DBG:#x}
        v_mov_b32 v36, 0
        s_mov_b64 exec, 1
        """)
        for i in range(14):
            a(f"v_mov_b32 v32, s{40+i}")
            a(f"buffer_store_dword v32, v36, s[8:11], s19 offen offset:{4*i}")
        a("s_mov_b64 exec, -1")
    a(f"""
    s_cmp_lg_u32 s16, 0
    s_cbranch_scc1 C_exit
    s_cmp_lg_u32 s17, 0
    s_cbranch_scc1 C_exit
    v_mov_b32 v32, s30
    v_mov_b32 v33, s32
    v_mov_b32 v34, s65
    v_mov_b32 v35, s68
    v_mov_b32 v36, 16
    s_mov_b64 exec, 1
    buffer_store_dwordx4 v[32:35], v36, s[12:15], 0 offen
    s_waitcnt vmcnt(0)
    s_endpgm
    C_fail:
    v_mov_b32 v32, 0xdead
    v_mov_b32 v33, 8
    s_mov_b64 exec, 1
    buffer_store_dword v32, v33, s[12:15], 0 offen
    s_waitcnt vmcnt(0)
    C_exit:
    s_endpgm
    """)


if __name__ == "__main__":
    import hazard
    opt = {}
    for kv in sys.argv[2:]:
        k, v = kv.split("=")
        opt[k] = v if k in ("sc", "xsc", "drop") else int(v)
    a = Asm()
    a.raw(f"; @launch kernel=chain_kernel grid=(256,1,1) block=(256,1,1) lds={LDS_BYTES}")
    a.raw('.amdgcn_target "amdgcn-amd-amdhsa--gfx950"')
    a.raw(".text")
    gen_chain_kernel(a, "chain_kernel", opt)
    a.lines = hoist_waits(a.lines)
    a.lines = hazard.fix(a.lines, True)
    if opt.get("drop"):
        import re
        pats = opt["drop"].split(",")
        out, inloop = [], False
        for ln in a.lines:
            if ln.strip() == "C_step:":
                inloop = True
            if ln.strip() == "C_done:":
                inloop = False
            if inloop and any(re.search(p, ln) for p in pats):
                continue
            out.append(ln)
        a.lines = out
    a.raw('.section .rodata,"a"')
    a.raw(".p2align 6")
    a.raw(kernel_desc("chain_kernel", 512, 256))
    open(sys.argv[1], "w").write(a.text())
```

```python
WS_MB1 = 0x0000000
WS_MB2 = 0x0080000
WS_FLAGS = 0x0090000
F_PG = WS_FLAGS
F_LN = WS_FLAGS + 0x1000
F_HP = WS_FLAGS + 0x1200
F_OF = WS_FLAGS + 0x2000
F_G1 = WS_FLAGS + 0x6000
FLAG_BYTES = 0x7000
WS_XN = 0x0100000
WS_KF = 0x0400000
WS_VF = 0x1400000
WS_QF = 0x2400000
WS_KM = 0x3400000
WS_VM = 0x3C00000
WS_OF = 0x4000000
WS_HF = 0x5000000
WS_DBG = 0x6000000
WS_SIZE = 0x10000000

ARG_X, ARG_MEM0, ARG_WQ, ARG_WK, ARG_WV, ARG_WO = 0, 8, 16, 24, 32, 40
ARG_W1, ARG_B1, ARG_W2, ARG_B2 = 64, 72, 80, 88
ARG_OUT, ARG_DBG, ARG_WS = 96, 104, 112
D_TICKET = 0
D_CBAR = 32
D_SLOW = 36
D_READY = 64
D_FAIL = 128
```

```python
import sys, struct, math
sys.path.insert(0, "gen")
from asmlib import *
from layout import *


def f2u(f):
    return struct.unpack("<I", struct.pack("<f", f))[0]


def srd_from_arg(a, d, arg, nbytes, tmp=20):
    a(f"s_load_dwordx2 s[{tmp}:{tmp+1}], s[0:1], {arg}")
    a("s_waitcnt lgkmcnt(0)")
    make_srd(a, d, tmp, nbytes)


def common_prologue(a, nwg, exit_label):
    a(f"""
    s_cmp_ge_u32 s2, {nwg}
    s_cbranch_scc1 {exit_label}
    s_load_dwordx2 s[6:7], s[0:1], {ARG_WS}
    v_and_b32 v1, 63, v0
    v_lshrrev_b32 v2, 6, v0
    v_readfirstlane_b32 s17, v2
    v_and_b32 v120, 15, v1
    v_lshrrev_b32 v121, 4, v1
    v_lshrrev_b32 v122, 2, v120
    v_and_b32 v123, 3, v120
    v_lshlrev_b32 v4, 4, v1
    s_waitcnt lgkmcnt(0)
    """)
    make_srd(a, 8, 6, WS_SIZE)


def xreduce_add(a, v, t):
    a(f"""
    v_mov_b32 v{t}, v{v}
    v_permlane32_swap_b32 v{v}, v{t}
    v_add_f32 v{v}, v{v}, v{t}
    v_mov_b32 v{t}, v{v}
    v_permlane16_swap_b32 v{v}, v{t}
    v_add_f32 v{v}, v{v}, v{t}
    """)


def xreduce_max(a, v, t):
    a(f"""
    v_mov_b32 v{t}, v{v}
    v_permlane32_swap_b32 v{v}, v{t}
    v_max_f32 v{v}, v{v}, v{t}
    v_mov_b32 v{t}, v{v}
    v_permlane16_swap_b32 v{v}, v{t}
    v_max_f32 v{v}, v{v}, v{t}
    """)


def round_bf16(a, v):
    a(f"v_cvt_pk_bf16_f32 v{v}, v{v}, v{v}")
    a(f"v_lshlrev_b32 v{v}, 16, v{v}")


def gen_ln(a, s_tile, srd_x, lds_base, sc="", part="both", pending=0):
    X, F = 24, 40
    if part != "compute":
        a(f"""
        s_lshl_b32 s19, s{s_tile}, 14
        s_lshl_b32 s20, s17, 8
        s_add_u32 s19, s19, s20
        v_lshlrev_b32 v72, 10, v120
        v_lshl_add_u32 v72, v121, 4, v72
        """)
        for k in range(4):
            a(f"buffer_load_dwordx4 v[{X+4*k}:{X+4*k+3}], v72, s[{srd_x}:{srd_x+3}], s19 offen offset:{k*64}")
    if part == "load":
        return
    a(f"""
    s_lshl_b32 s20, s17, 6
    v_lshlrev_b32 v73, 2, v120
    v_add_u32 v73, {lds_base:#x}, v73
    v_add_u32 v74, s20, v73
    s_waitcnt vmcnt({pending})
    """)
    for i in range(16):
        a(f"v_lshlrev_b32 v{F+2*i}, 16, v{X+i}")
        a(f"v_and_b32 v{F+2*i+1}, 0xffff0000, v{X+i}")
    a(f"v_pk_add_f32 v[{X}:{X+1}], v[{F}:{F+1}], v[{F+2}:{F+3}]")
    for i in range(2, 16):
        a(f"v_pk_add_f32 v[{X}:{X+1}], v[{X}:{X+1}], v[{F+2*i}:{F+2*i+1}]")
    a(f"v_add_f32 v{X}, v{X}, v{X+1}")
    xreduce_add(a, X, X + 1)
    a(f"""
    ds_write_b32 v74, v{X}
    s_waitcnt lgkmcnt(0)
    s_barrier
    ds_read_b32 v{X}, v73
    ds_read_b32 v{X+1}, v73 offset:64
    ds_read_b32 v{X+2}, v73 offset:128
    ds_read_b32 v{X+3}, v73 offset:192
    s_waitcnt lgkmcnt(0)
    v_add_f32 v{X}, v{X}, v{X+1}
    v_add_f32 v{X+2}, v{X+2}, v{X+3}
    v_add_f32 v{X}, v{X}, v{X+2}
    v_mul_f32 v{X}, {f2u(1.0/512):#x}, v{X}
    v_mov_b32 v{X+2}, 0
    v_mov_b32 v{X+3}, 0
    """)
    for i in range(32):
        a(f"v_sub_f32 v{X+4}, v{F+i}, v{X}")
        a(f"v_fmac_f32 v{X+2+(i&1)}, v{X+4}, v{X+4}")
    a(f"v_add_f32 v{X+2}, v{X+2}, v{X+3}")
    xreduce_add(a, X + 2, X + 3)
    a(f"""
    ds_write_b32 v74, v{X+2} offset:256
    s_waitcnt lgkmcnt(0)
    s_barrier
    ds_read_b32 v{X+2}, v73 offset:256
    ds_read_b32 v{X+3}, v73 offset:320
    ds_read_b32 v{X+4}, v73 offset:384
    ds_read_b32 v{X+5}, v73 offset:448
    s_waitcnt lgkmcnt(0)
    v_add_f32 v{X+2}, v{X+2}, v{X+3}
    v_add_f32 v{X+4}, v{X+4}, v{X+5}
    v_add_f32 v{X+2}, v{X+2}, v{X+4}
    v_mul_f32 v{X+2}, {f2u(1.0/512):#x}, v{X+2}
    """)
    round_bf16(a, X)
    round_bf16(a, X + 2)
    a(f"v_add_f32 v{X+2}, {f2u(1e-5):#x}, v{X+2}")
    round_bf16(a, X + 2)
    a(f"v_sqrt_f32 v{X+2}, v{X+2}")
    round_bf16(a, X + 2)
    a(f"v_rcp_f32 v{X+2}, v{X+2}")
    for i in range(16):
        f0, f1 = F + 2 * i, F + 2 * i + 1
        a(f"""
        v_sub_f32 v{f0}, v{f0}, v{X}
        v_sub_f32 v{f1}, v{f1}, v{X}
        v_cvt_pk_bf16_f32 v{f1}, v{f0}, v{f1}
        v_lshlrev_b32 v{f0}, 16, v{f1}
        v_and_b32 v{f1}, 0xffff0000, v{f1}
        v_mul_f32 v{f0}, v{f0}, v{X+2}
        v_mul_f32 v{f1}, v{f1}, v{X+2}
        v_cvt_pk_bf16_f32 v{F+i}, v{f0}, v{f1}
        """)
    a(f"""
    s_lshl_b32 s19, s{s_tile}, 14
    s_lshl_b32 s20, s17, 12
    s_add_u32 s19, s19, s20
    s_add_u32 s19, s19, {WS_XN:#x}
    """)
    for k in range(4):
        a(f"buffer_store_dwordx4 v[{F+4*k}:{F+4*k+3}], v4, s[8:11], s19 offen offset:{k*1024} {sc}")


def gen_ln_kernel(a, name):
    kernel_header(a, name)
    ex = name + "_exit"
    common_prologue(a, 128, ex)
    srd_from_arg(a, 44, ARG_X, 2 << 20)
    gen_ln(a, 2, 44, 0)
    a(f"{ex}:")
    a("s_endpgm")


NCHUNK = 214
def gen_gemm1(a, s_rb, s_j, nj, pfx, sc="", ldsc="", after_chunk=None):
    srd_from_arg(a, 44, ARG_WK, 4 << 20)
    srd_from_arg(a, 48, ARG_WV, 4 << 20)
    srd_from_arg(a, 52, ARG_WQ, 4 << 20)
    srd_from_arg(a, 56, ARG_W1, 512 * 1376 * 2)
    srd_from_arg(a, 60, ARG_B1, 1376 * 2)
    a("s_mov_b32 s67, 0x00020000")
    a(f"""
    v_bfe_u32 v5, v1, 1, 2
    v_bfe_u32 v6, v1, 4, 1
    v_xor_b32 v5, v5, v6
    v_lshlrev_b32 v5, 5, v5
    v_and_b32 v6, 1, v1
    v_lshl_add_u32 v5, v6, 4, v5
    v_xor_b32 v6, 64, v5
    v_lshrrev_b32 v7, 3, v1
    v_lshl_add_u32 v8, v7, 13, v5
    v_lshl_add_u32 v9, v7, 13, v6
    v_mul_u32_u24 v7, 2752, v7
    v_add_u32 v10, v7, v5
    v_add_u32 v11, v7, v6
    """)
    a(f"""
    v_lshl_add_u32 v14, v121, 3, v122
    v_lshlrev_b32 v14, 7, v14
    v_lshrrev_b32 v5, 1, v122
    v_and_b32 v6, 1, v121
    v_lshl_add_u32 v5, v6, 1, v5
    v_lshl_add_u32 v14, v5, 5, v14
    v_lshl_add_u32 v14, v123, 3, v14
    v_xor_b32 v15, 32, v14
    v_xor_b32 v16, 64, v14
    v_xor_b32 v17, 96, v14
    v_lshlrev_b32 v18, 3, v121
    """)

    def setup_next():
        l1, l2 = a.uid(pfx + "_n"), a.uid(pfx + "_n")
        a(f"""
        s_min_u32 s19, s69, {NCHUNK-1}
        s_cmp_ge_u32 s19, 192
        s_cbranch_scc1 {l1}
        s_cmp_lt_u32 s19, 64
        s_cselect_b32 s64, s44, s48
        s_cselect_b32 s65, s45, s49
        s_cmp_ge_u32 s19, 128
        s_cselect_b32 s64, s52, s64
        s_cselect_b32 s65, s53, s65
        s_mov_b32 s66, {4 << 20:#x}
        s_and_b32 s19, s19, 63
        s_lshl_b32 s70, s19, 7
        s_lshl_b32 s20, s17, 20
        s_add_u32 s70, s70, s20
        s_mov_b32 s71, {8*8192}
        v_mov_b32 v12, v8
        v_mov_b32 v13, v9
        s_branch {l2}
        {l1}:
        s_mov_b32 s64, s56
        s_mov_b32 s65, s57
        s_mov_b32 s66, {512*1376*2:#x}
        s_sub_u32 s19, s19, 192
        s_lshl_b32 s70, s19, 7
        s_mul_i32 s20, s17, {128*2752}
        s_add_u32 s70, s70, s20
        s_mov_b32 s71, {8*2752}
        v_mov_b32 v12, v10
        v_mov_b32 v13, v11
        {l2}:
        """)

    def dma(m):
        a(f"s_add_u32 m0, s72, {m*1024}")
        a(f"buffer_load_dwordx4 v{12+(m&1)}, s[64:67], s70 offen lds")
        a("s_add_u32 s70, s70, s71")

    a(f"s_mov_b32 s69, s{s_j}")
    setup_next()
    a("s_lshl_b32 s72, s17, 14")
    for m in range(16):
        dma(m)
    return setup_next, dma


def gen_gemm1_loadA(a, s_rb, ldsc=""):
    a(f"""
    s_lshl_b32 s19, s{s_rb}, 18
    s_lshl_b32 s20, s17, 16
    s_add_u32 s19, s19, s20
    s_add_u32 s19, s19, {WS_XN:#x}
    """)
    for i in range(64):
        if i % 4 == 0 and i:
            a("s_add_u32 s19, s19, 4096")
        if i == 40:
            a("s_waitcnt vmcnt(30)")
        a(f"buffer_load_dwordx4 a[{4*i}:{4*i+3}], v4, s[8:11], s19 offen offset:{(i%4)*1024} {ldsc}")


def gen_gemm1_loop(a, s_rb, s_j, nj, pfx, setup_next, dma, sc="", after_chunk=None):
    WF, ACC = 24, 56
    a(f"""
    s_mov_b32 s68, s{s_j}
    s_waitcnt vmcnt(0)
    {pfx}_loop:
    s_waitcnt vmcnt(8)
    s_barrier
    s_add_u32 s69, s68, {nj}
    """)
    setup_next()
    a("s_xor_b32 s72, s72, 0x10000")

    def rd(ks, buf):
        for ct in range(4):
            for u in range(2):
                r = WF + buf * 16 + ct * 4 + u * 2
                a(f"ds_read_b64_tr_b16 v[{r}:{r+1}], v{14+ct} offset:{ks*4096+u*512}")

    def body(vtype):
        rd(0, 0)
        for ks in range(16):
            b = ks & 1
            if ks < 15:
                rd(ks + 1, b ^ 1)
                a("s_waitcnt lgkmcnt(8)")
            else:
                a("s_waitcnt lgkmcnt(0)")
            k = 0
            for ct in range(4):
                for tt in range(4):
                    d = ACC + (tt * 4 + ct) * 4
                    w = WF + b * 16 + ct * 4
                    x = (tt * 16 + ks) * 4
                    c = "0" if ks == 0 else f"v[{d}:{d+3}]"
                    if vtype:
                        a(f"v_mfma_f32_16x16x32_bf16 v[{d}:{d+3}], a[{x}:{x+3}], v[{w}:{w+3}], {c}")
                    else:
                        a(f"v_mfma_f32_16x16x32_bf16 v[{d}:{d+3}], v[{w}:{w+3}], a[{x}:{x+3}], {c}")
                    k += 1
                    if k == 4:
                        dma(ks)

    a(f"""
    s_cmp_lt_u32 s68, 64
    s_cbranch_scc1 {pfx}_kq
    s_cmp_ge_u32 s68, 128
    s_cbranch_scc1 {pfx}_kq
    """)
    body(True)
    a(f"""
    s_lshl_b32 s19, s{s_rb}, 21
    s_lshl_b32 s20, s17, 19
    s_add_u32 s19, s19, s20
    s_and_b32 s20, s68, 63
    s_lshl_b32 s20, s20, 12
    s_add_u32 s19, s19, s20
    s_add_u32 s19, s19, {WS_VF:#x}
    """)
    for sp in range(2):
        for ct in range(4):
            d0 = ACC + ((2 * sp) * 4 + ct) * 4
            d1 = ACC + ((2 * sp + 1) * 4 + ct) * 4
            a(f"""
            v_cvt_pk_bf16_f32 v{d0}, v{d0}, v{d0+1}
            v_cvt_pk_bf16_f32 v{d0+1}, v{d0+2}, v{d0+3}
            v_cvt_pk_bf16_f32 v{d0+2}, v{d1}, v{d1+1}
            v_cvt_pk_bf16_f32 v{d0+3}, v{d1+2}, v{d1+3}
            buffer_store_dwordx4 v[{d0}:{d0+3}], v4, s[8:11], s19 offen offset:{ct*1024} {sc}
            """)
        if sp == 0:
            a("s_add_u32 s19, s19, 0x40000")
    a(f"s_branch {pfx}_next")
    a(f"{pfx}_kq:")
    a(f"""
    s_sub_u32 s19, s68, 192
    s_lshl_b32 s19, s19, 7
    s_cmp_lt_u32 s68, 192
    s_cselect_b32 s19, 0, s19
    buffer_load_dwordx2 v[20:21], v18, s[60:63], s19 offen
    buffer_load_dwordx2 v[22:23], v18, s[60:63], s19 offen offset:32
    buffer_load_dwordx2 v[124:125], v18, s[60:63], s19 offen offset:64
    buffer_load_dwordx2 v[126:127], v18, s[60:63], s19 offen offset:96
    """)
    body(False)
    a(f"""
    s_cmp_ge_u32 s68, 192
    s_cbranch_scc1 {pfx}_h
    s_lshl_b32 s19, s{s_rb}, 21
    s_lshl_b32 s20, s17, 19
    s_add_u32 s19, s19, s20
    s_and_b32 s20, s68, 62
    s_lshl_b32 s20, s20, 12
    s_add_u32 s19, s19, s20
    s_and_b32 s20, s68, 1
    s_lshl_b32 s20, s20, 11
    s_add_u32 s19, s19, s20
    s_mov_b32 s20, {WS_KF:#x}
    s_cmp_ge_u32 s68, 128
    s_cselect_b32 s20, {WS_QF:#x}, s20
    s_add_u32 s19, s19, s20
    """)
    for tt in range(4):
        for p in range(2):
            d0 = ACC + (tt * 4 + 2 * p) * 4
            d1 = d0 + 4
            a(f"""
            v_cvt_pk_bf16_f32 v{d0}, v{d0}, v{d0+1}
            v_cvt_pk_bf16_f32 v{d0+1}, v{d0+2}, v{d0+3}
            v_cvt_pk_bf16_f32 v{d0+2}, v{d1}, v{d1+1}
            v_cvt_pk_bf16_f32 v{d0+3}, v{d1+2}, v{d1+3}
            buffer_store_dwordx4 v[{d0}:{d0+3}], v4, s[8:11], s19 offen offset:{p*1024} {sc}
            """)
        if tt < 3:
            a(f"s_add_u32 s19, s19, {0x1000 if tt != 1 else 0x40000 - 0x1000:#x}")
    a(f"s_branch {pfx}_next")
    a(f"{pfx}_h:")
    a("s_waitcnt vmcnt(16)")
    BI = [20, 22, 124, 126]
    for ct in range(4):
        for j in range(2):
            a(f"v_lshlrev_b32 v{24+ct*4+2*j}, 16, v{BI[ct]+j}")
            a(f"v_and_b32 v{24+ct*4+2*j+1}, 0xffff0000, v{BI[ct]+j}")
    a(f"""
    s_lshl_b32 s19, s{s_rb}, 4
    s_lshl_b32 s20, s17, 2
    s_add_u32 s19, s19, s20
    s_mul_i32 s19, s19, {43*1024}
    s_sub_u32 s20, s68, 192
    s_lshl_b32 s20, s20, 11
    s_add_u32 s19, s19, s20
    s_add_u32 s19, s19, {WS_HF:#x}
    v_mov_b32 v19, v4
    s_cmp_eq_u32 s68, {NCHUNK-1}
    s_cselect_b32 s20, 0x7ffff000, 0
    v_add_u32 v19, s20, v4
    """)
    for tt in range(4):
        for p in range(2):
            d0 = ACC + (tt * 4 + 2 * p) * 4
            for j in range(4):
                r0 = d0 + 2 * j
                bi = 24 + (2 * p + (j >> 1)) * 4 + (j & 1) * 2
                a(f"""
                v_cvt_pk_bf16_f32 v{r0+1}, v{r0}, v{r0+1}
                v_lshlrev_b32 v{r0}, 16, v{r0+1}
                v_and_b32 v{r0+1}, 0xffff0000, v{r0+1}
                v_add_f32 v{r0}, v{r0}, v{bi}
                v_add_f32 v{r0+1}, v{r0+1}, v{bi+1}
                v_cvt_pk_bf16_f32 v{r0+1}, v{r0}, v{r0+1}
                v_lshlrev_b32 v{r0}, 16, v{r0+1}
                v_and_b32 v{r0+1}, 0xffff0000, v{r0+1}
                v_max_f32 v{r0}, 0, v{r0}
                v_max_f32 v{r0+1}, 0, v{r0+1}
                v_mul_f32 v{r0}, v{r0}, v{r0}
                v_mul_f32 v{r0+1}, v{r0+1}, v{r0+1}
                v_cvt_pk_bf16_f32 v{d0+j}, v{r0}, v{r0+1}
                """)
            va = 4 if p == 0 else 19
            a(f"buffer_store_dwordx4 v[{d0}:{d0+3}], v{va}, s[8:11], s19 offen offset:{p*1024} {sc}")
        if tt < 3:
            a(f"s_add_u32 s19, s19, {43*1024}")
    a(f"{pfx}_next:")
    if after_chunk:
        after_chunk()
    a(f"""
    v_xor_b32 v14, 0x10000, v14
    v_xor_b32 v15, 0x10000, v15
    v_xor_b32 v16, 0x10000, v16
    v_xor_b32 v17, 0x10000, v17
    s_mov_b32 s68, s69
    s_cmp_lt_u32 s68, {NCHUNK}
    s_cbranch_scc1 {pfx}_loop
    """)


def gen_gemm1_kernel(a, name):
    kernel_header(a, name)
    ex = name + "_exit"
    common_prologue(a, 256, ex)
    a("""
    s_lshr_b32 s40, s2, 3
    s_and_b32 s40, s40, 7
    s_and_b32 s41, s2, 7
    s_lshr_b32 s19, s2, 6
    s_lshl_b32 s19, s19, 3
    s_add_u32 s41, s41, s19
    """)
    sn, dma = gen_gemm1(a, 40, 41, 32, "G1")
    gen_gemm1_loadA(a, 40)
    gen_gemm1_loop(a, 40, 41, 32, "G1", sn, dma)
    a("s_waitcnt vmcnt(0)")
    a(f"{ex}:")
    a("s_endpgm")


C_SCALE = 128 ** -0.5
LOG2E = math.log2(math.e)
def gen_attn_consts(a):
    a(f"""
    v_and_b32 v2, 31, v1
    v_lshlrev_b32 v2, 3, v2
    v_lshlrev_b32 v3, 2, v121
    s_mov_b32 s73, {f2u(C_SCALE):#x}
    s_mov_b32 s82, {f2u(LOG2E):#x}
    """)
    for i in range(4):
        a(f"v_add_u32 v5, {i}, v3")
        a(f"v_cmp_le_u32 s[{74+2*i}:{75+2*i}], v5, v120")
    a("v_cmp_gt_u32 s[84:85], 32, v1")


def gen_attn_load(a, s_seg, s_head, ldsc=""):
    Q, K, V = 24, 56, 88
    a(f"""
    s_lshl_b32 s19, s{s_seg}, 18
    s_lshl_b32 s20, s{s_head}, 13
    s_add_u32 s19, s19, s20
    """)
    for base, ws in ((Q, WS_QF), (K, WS_KF), (V, WS_VF)):
        for hh in range(2):
            a(f"s_add_u32 s20, s19, {ws + hh*4096:#x}")
            for i in range(4):
                r = base + (hh * 4 + i) * 4
                a(f"buffer_load_dwordx4 v[{r}:{r+3}], v4, s[8:11], s20 offen offset:{i*1024} {ldsc}")


def gen_attn_loadm(a, s_seg, s_head, ldsc=""):
    KM, VM = 128, 144
    a(f"""
    s_lshl_b32 s19, s{s_seg}, 17
    s_lshl_b32 s20, s{s_head}, 12
    s_add_u32 s19, s19, s20
    s_lshr_b32 s20, s19, 1
    s_add_u32 s19, s19, {WS_KM:#x}
    s_add_u32 s20, s20, {WS_VM:#x}
    """)
    for i in range(4):
        a(f"buffer_load_dwordx4 v[{KM+4*i}:{KM+4*i+3}], v4, s[8:11], s19 offen offset:{i*1024} {ldsc}")
    for et in range(8):
        a(f"buffer_load_dwordx2 v[{VM+2*et}:{VM+2*et+1}], v2, s[8:11], s20 offen offset:{et*256} {ldsc}")


def gen_attn_compute(a, s_seg, s_head, sc=""):
    Q, K, V, KM, VM = 24, 56, 88, 128, 144
    S = 160
    T0, T1 = 180, 181
    P = 184
    O = 196
    NEG = 183
    tiles = {0: [("x0", S), ("m", S + 4)], 1: [("x0", S + 8), ("x1", S + 12), ("m", S + 16)]}
    for qt in (0, 1):
        for kind, d in tiles[qt]:
            for ks in range(4):
                ab = {"x0": K + ks * 4, "x1": K + 16 + ks * 4, "m": KM + ks * 4}[kind]
                qb = Q + (qt * 4 + ks) * 4
                c = "0" if ks == 0 else f"v[{d}:{d+3}]"
                a(f"v_mfma_f32_16x16x32_bf16 v[{d}:{d+3}], v[{ab}:{ab+3}], v[{qb}:{qb+3}], {c}")
    a(f"v_mov_b32 v{NEG}, {f2u(-1e30):#x}")
    for qt in (0, 1):
        regs = [d + i for _, d in tiles[qt] for i in range(4)]
        for j in range(0, len(regs), 2):
            r0, r1 = regs[j], regs[j + 1]
            a(f"""
            v_cvt_pk_bf16_f32 v{r1}, v{r0}, v{r1}
            v_lshlrev_b32 v{r0}, 16, v{r1}
            v_and_b32 v{r1}, 0xffff0000, v{r1}
            v_mul_f32 v{r0}, s73, v{r0}
            v_mul_f32 v{r1}, s73, v{r1}
            v_cvt_pk_bf16_f32 v{r1}, v{r0}, v{r1}
            v_lshlrev_b32 v{r0}, 16, v{r1}
            v_and_b32 v{r1}, 0xffff0000, v{r1}
            """)
        diag = tiles[qt][0][1] if qt == 0 else tiles[qt][1][1]
        for i in range(4):
            a(f"v_cndmask_b32 v{diag+i}, v{NEG}, v{diag+i}, s[{74+2*i}:{75+2*i}]")
        md = tiles[qt][-1][1]
        for i in range(4):
            a(f"v_cndmask_b32 v{md+i}, v{NEG}, v{md+i}, s[84:85]")
        a(f"v_max3_f32 v{T0}, v{regs[0]}, v{regs[1]}, v{regs[2]}")
        j = 3
        while j < len(regs):
            if j + 1 < len(regs):
                a(f"v_max3_f32 v{T0}, v{T0}, v{regs[j]}, v{regs[j+1]}")
                j += 2
            else:
                a(f"v_max_f32 v{T0}, v{T0}, v{regs[j]}")
                j += 1
        xreduce_max(a, T0, T1)
        for r in regs:
            a(f"v_sub_f32 v{r}, v{r}, v{T0}")
        for r in regs:
            a(f"v_mul_f32 v{r}, s82, v{r}")
        for r in regs:
            a(f"v_exp_f32 v{r}, v{r}")
        a(f"v_add_f32 v{T0}, v{regs[0]}, v{regs[1]}")
        for r in regs[2:]:
            a(f"v_add_f32 v{T0}, v{T0}, v{r}")
        xreduce_add(a, T0, T1)
        a(f"v_rcp_f32 v{T0}, v{T0}")
        for r in regs:
            a(f"v_mul_f32 v{r}, v{r}, v{T0}")
        p = P + qt * 6
        x0 = tiles[qt][0][1]
        a(f"v_cvt_pk_bf16_f32 v{p}, v{x0}, v{x0+1}")
        a(f"v_cvt_pk_bf16_f32 v{p+1}, v{x0+2}, v{x0+3}")
        if qt == 0:
            a(f"v_mov_b32 v{p+2}, 0")
            a(f"v_mov_b32 v{p+3}, 0")
        else:
            x1 = tiles[qt][1][1]
            a(f"v_cvt_pk_bf16_f32 v{p+2}, v{x1}, v{x1+1}")
            a(f"v_cvt_pk_bf16_f32 v{p+3}, v{x1+2}, v{x1+3}")
        a(f"v_cvt_pk_bf16_f32 v{p+4}, v{md}, v{md+1}")
        a(f"v_cvt_pk_bf16_f32 v{p+5}, v{md+2}, v{md+3}")
    a(f"""
    s_lshl_b32 s19, s{s_seg}, 18
    s_lshl_b32 s20, s{s_head}, 12
    s_add_u32 s19, s19, s20
    s_add_u32 s19, s19, {WS_OF:#x}
    """)
    for qt in (0, 1):
        p = P + qt * 6
        for et in range(8):
            d = 24 + (qt * 8 + et) * 4
            a(f"v_mfma_f32_16x16x32_bf16 v[{d}:{d+3}], v[{V+4*et}:{V+4*et+3}], v[{p}:{p+3}], 0")
        for et in range(8):
            d = 24 + (qt * 8 + et) * 4
            a(f"v_mfma_f32_16x16x16_bf16 v[{d}:{d+3}], v[{VM+2*et}:{VM+2*et+1}], v[{p+4}:{p+5}], v[{d}:{d+3}]")
    for qt in (0, 1):
        for k4 in range(4):
            d0 = 24 + (qt * 8 + 2 * k4) * 4
            d1 = d0 + 4
            a(f"""
            v_cvt_pk_bf16_f32 v{d0}, v{d0}, v{d0+1}
            v_cvt_pk_bf16_f32 v{d0+1}, v{d0+2}, v{d0+3}
            v_cvt_pk_bf16_f32 v{d0+2}, v{d1}, v{d1+1}
            v_cvt_pk_bf16_f32 v{d0+3}, v{d1+2}, v{d1+3}
            buffer_store_dwordx4 v[{d0}:{d0+3}], v4, s[8:11], s19 offen offset:{k4*1024} {sc}
            """)
        if qt == 0:
            a("s_add_u32 s19, s19, 0x20000")


def gen_attn_kernel(a, name):
    kernel_header(a, name)
    ex = name + "_exit"
    common_prologue(a, 512, ex)
    a("""
    s_lshr_b32 s40, s2, 3
    s_and_b32 s41, s2, 7
    s_lshl_b32 s41, s41, 2
    s_add_u32 s41, s41, s17
    """)
    gen_attn_consts(a)
    gen_attn_load(a, 40, 41)
    gen_attn_loadm(a, 40, 41)
    a("s_waitcnt vmcnt(0)")
    gen_attn_compute(a, 40, 41)
    a(f"{ex}:")
    a("s_endpgm")


L_RED = 0x20000
ACC7 = 216
GST = 232

def gen_out_consts(a, s_nsl):
    a(f"""
    s_lshl_b32 s36, s17, 15
    v_lshrrev_b32 v5, 2, v1
    v_lshlrev_b32 v5, 10, v5
    v_bfe_u32 v6, v1, 1, 1
    v_bfe_u32 v7, v1, 4, 1
    v_xor_b32 v6, v6, v7
    v_lshl_add_u32 v5, v6, 5, v5
    v_and_b32 v6, 1, v1
    v_lshl_add_u32 v5, v6, 4, v5
    s_lshl_b32 s19, s{s_nsl}, 6
    v_add_u32 v5, s19, v5
    v_lshl_add_u32 v6, v121, 2, v122
    v_lshlrev_b32 v6, 6, v6
    v_and_b32 v7, 1, v121
    v_lshl_add_u32 v6, v7, 5, v6
    v_lshl_add_u32 v6, v123, 3, v6
    v_add_u32 v6, s36, v6
    v_xor_b32 v7, 32, v6
    s_lshl_b32 s19, s17, 12
    v_add_u32 v8, s19, v4
    v_add_u32 v8, {L_RED:#x}, v8
    s_lshl_b32 s19, s17, 10
    v_add_u32 v9, s19, v4
    v_add_u32 v9, {L_RED:#x}, v9
    """)
    a(f"""
    s_lshr_b32 s19, s17, 1
    s_lshl_b32 s19, s19, 14
    s_and_b32 s20, s17, 1
    s_lshl_b32 s20, s20, 5
    s_lshl_b32 s21, s{s_nsl}, 6
    s_add_u32 s20, s20, s21
    v_lshlrev_b32 v11, 3, v121
    v_add_u32 v11, s20, v11
    v_lshl_add_u32 v10, v120, 10, v11
    v_add_u32 v10, s19, v10
    """)


def gen_stage_weights(a, srd, s_rowbytes, nks, dest):
    pieces = [list(range(i, min(i + 8, nks))) for i in range(0, nks, 8)]

    def issue(pi):
        for ks in pieces[pi]:
            for h in range(2):
                a(f"s_add_u32 m0, s36, {(pi & 1)*16384 + (ks % 8)*2048 + h*1024}")
                a(f"buffer_load_dwordx4 v5, s[{srd}:{srd+3}], s{s_rowbytes} offen lds")
                a(f"s_add_u32 s{s_rowbytes}, s{s_rowbytes}, 16384")

    issue(0)
    if len(pieces) > 1:
        issue(1)
    for pi in range(len(pieces)):
        nxt = 2 * len(pieces[pi + 1]) if pi + 1 < len(pieces) else 0
        a(f"s_waitcnt vmcnt({nxt})")
        for ks in pieces[pi]:
            for ct in range(2):
                for u in range(2):
                    off = (pi & 1) * 16384 + (ks % 8) * 2048 + u * 1024
                    a(f"ds_read_b64_tr_b16 {dest(ks, ct, u)}, v{6+ct} offset:{off}")
            if ks % 2 == 1:
                a("s_waitcnt lgkmcnt(0)")
        a("s_waitcnt lgkmcnt(0)")
        if pi + 2 < len(pieces):
            issue(pi + 2)


def gen_reduce4(a, dst):
    a("s_barrier")
    for t in range(4):
        a(f"ds_write_b128 v8, v[{ACC7+4*t}:{ACC7+4*t+3}] offset:{t*1024}")
    a("s_waitcnt lgkmcnt(0)")
    a("s_barrier")
    for w in range(4):
        a(f"ds_read_b128 v[{ACC7+4*w}:{ACC7+4*w+3}], v9 offset:{w*4096}")
    a("s_waitcnt lgkmcnt(0)")
    a(f"""
    v_pk_add_f32 v[{ACC7}:{ACC7+1}], v[{ACC7}:{ACC7+1}], v[{ACC7+4}:{ACC7+5}]
    v_pk_add_f32 v[{ACC7+2}:{ACC7+3}], v[{ACC7+2}:{ACC7+3}], v[{ACC7+6}:{ACC7+7}]
    v_pk_add_f32 v[{ACC7+8}:{ACC7+9}], v[{ACC7+8}:{ACC7+9}], v[{ACC7+12}:{ACC7+13}]
    v_pk_add_f32 v[{ACC7+10}:{ACC7+11}], v[{ACC7+10}:{ACC7+11}], v[{ACC7+14}:{ACC7+15}]
    v_pk_add_f32 v[{dst}:{dst+1}], v[{ACC7}:{ACC7+1}], v[{ACC7+8}:{ACC7+9}]
    v_pk_add_f32 v[{dst+2}:{dst+3}], v[{ACC7+2}:{ACC7+3}], v[{ACC7+10}:{ACC7+11}]
    """)


def round4(a, r):
    for j in range(2):
        a(f"""
        v_cvt_pk_bf16_f32 v{r+2*j+1}, v{r+2*j}, v{r+2*j+1}
        v_lshlrev_b32 v{r+2*j}, 16, v{r+2*j+1}
        v_and_b32 v{r+2*j+1}, 0xffff0000, v{r+2*j+1}
        """)


W2F = 128
def gen_gate_setup(a):
    srd_from_arg(a, 44, ARG_W2, 1376 * 512 * 2)
    srd_from_arg(a, 48, ARG_B2, 1024)
    a(f"s_mul_i32 s22, s17, {11*32*1024}")
    a("buffer_load_dwordx2 v[14:15], v11, s[48:51], 0 offen")
    gen_stage_weights(a, 44, 22, 11, lambda ks, ct, u: f"v[{W2F+(ks*2+ct)*4+2*u}:{W2F+(ks*2+ct)*4+2*u+1}]")
    a("""
    v_lshlrev_b32 v12, 16, v14
    v_and_b32 v13, 0xffff0000, v14
    v_lshlrev_b32 v14, 16, v15
    v_and_b32 v15, 0xffff0000, v15
    """)


def gen_gate(a, s_seg, gdst, ldsc="", mul=2, dt=1):
    H = 24
    a(f"""
    s_mul_i32 s19, s{s_seg}, {mul*43*1024}
    s_mul_i32 s20, s17, {11*1024}
    s_add_u32 s19, s19, s20
    s_add_u32 s19, s19, {WS_HF:#x}
    """)
    for tt in range(2):
        for ks in range(11):
            if ks % 4 == 0:
                a(f"s_add_u32 s20, s19, {tt*dt*43*1024 + ks*1024}")
            so = "s20"
            if ks == 10:
                a("s_cmp_eq_u32 s17, 3")
                a("s_cselect_b32 s21, 0x7ff00000, s20")
                so = "s21"
            r = H + (tt * 11 + ks) * 4
            a(f"buffer_load_dwordx4 v[{r}:{r+3}], v4, s[8:11], {so} offen offset:{(ks%4)*1024} {ldsc}")
    for tt in range(2):
        for ks in range(11):
            a(f"s_waitcnt vmcnt({21 - (tt*11+ks)})")
            for ct in range(2):
                d = ACC7 + (tt * 2 + ct) * 4
                w = W2F + (ks * 2 + ct) * 4
                r = H + (tt * 11 + ks) * 4
                c = "0" if ks == 0 else f"v[{d}:{d+3}]"
                a(f"v_mfma_f32_16x16x32_bf16 v[{d}:{d+3}], v[{w}:{w+3}], v[{r}:{r+3}], {c}")
    gen_reduce4(a, gdst)
    round4(a, gdst)
    for i in range(4):
        a(f"v_add_f32 v{gdst+i}, v{gdst+i}, v{12+i}")
    round4(a, gdst)
    for i in range(4):
        a(f"v_mul_f32 v{24+i}, {f2u(-LOG2E):#x}, v{gdst+i}")
    for i in range(4):
        a(f"v_exp_f32 v{24+i}, v{24+i}")
    for i in range(4):
        a(f"v_add_f32 v{24+i}, 1.0, v{24+i}")
    for i in range(4):
        a(f"v_rcp_f32 v{24+i}, v{24+i}")
    for i in range(4):
        a(f"v_mul_f32 v{gdst+i}, v{gdst+i}, v{24+i}")
    round4(a, gdst)


def gen_wo_setup(a):
    srd_from_arg(a, 44, ARG_WO, 4 << 20)
    srd_from_arg(a, 48, ARG_X, 2 << 20)
    srd_from_arg(a, 52, ARG_OUT, 2 << 20)
    a("s_lshl_b32 s22, s17, 20")
    gen_stage_weights(a, 44, 22, 32, lambda ks, ct, u: f"a[{(ks*2+ct)*4+2*u}:{(ks*2+ct)*4+2*u+1}]")


def gen_out_task(a, s_seg, gsrc, ldsc=""):
    NW = 48
    a(f"""
    s_lshl_b32 s23, s{s_seg}, 15
    buffer_load_dwordx2 v[16:17], v10, s[48:51], s23 offen
    s_lshl_b32 s19, s{s_seg}, 18
    s_lshl_b32 s20, s17, 15
    s_add_u32 s19, s19, s20
    s_add_u32 s19, s19, {WS_OF:#x}
    s_add_u32 s20, s19, 0x20000
    """)
    order = [(ks, tt) for ks in range(32) for tt in range(2)]

    def ld(i):
        ks, tt = order[i]
        r = 24 + (i % NW) * 4
        if ks % 4 == 0 and tt == 0 and ks:
            a("s_add_u32 s19, s19, 4096")
            a("s_add_u32 s20, s20, 4096")
        a(f"buffer_load_dwordx4 v[{r}:{r+3}], v4, s[8:11], s{19+tt} offen offset:{(ks%4)*1024} {ldsc}")

    for i in range(NW):
        ld(i)
    issued = NW
    for i, (ks, tt) in enumerate(order):
        a(f"s_waitcnt vmcnt({issued - 1 - i})")
        r = 24 + (i % NW) * 4
        for ct in range(2):
            d = ACC7 + (tt * 2 + ct) * 4
            w = (ks * 2 + ct) * 4
            c = "0" if ks == 0 else f"v[{d}:{d+3}]"
            a(f"v_mfma_f32_16x16x32_bf16 v[{d}:{d+3}], a[{w}:{w+3}], v[{r}:{r+3}], {c}")
        if issued < 64:
            ld(issued)
            issued += 1
    gen_reduce4(a, 24)
    round4(a, 24)
    for i in range(4):
        a(f"v_mul_f32 v{24+i}, v{24+i}, v{gsrc+i}")
    round4(a, 24)
    a("""
    v_lshlrev_b32 v28, 16, v16
    v_and_b32 v29, 0xffff0000, v16
    v_lshlrev_b32 v30, 16, v17
    v_and_b32 v31, 0xffff0000, v17
    """)
    for i in range(4):
        a(f"v_add_f32 v{24+i}, v{24+i}, v{28+i}")
    a("""
    v_cvt_pk_bf16_f32 v24, v24, v25
    v_cvt_pk_bf16_f32 v25, v26, v27
    buffer_store_dwordx2 v[24:25], v10, s[52:55], s23 offen
    """)


def gen_out_kernel(a, name):
    kernel_header(a, name)
    ex = name + "_exit"
    common_prologue(a, 256, ex)
    a("""
    s_lshr_b32 s40, s2, 3
    s_and_b32 s40, s40, 15
    s_and_b32 s41, s2, 7
    s_lshr_b32 s19, s2, 7
    s_lshl_b32 s19, s19, 3
    s_add_u32 s41, s41, s19
    """)
    gen_out_consts(a, 40)
    gen_gate_setup(a)
    for i in range(4):
        a(f"s_add_u32 s42, s41, {16*i}")
        gen_gate(a, 42, GST + 4 * i)
    gen_wo_setup(a)
    for i in range(4):
        a(f"s_add_u32 s42, s41, {16*i}")
        gen_out_task(a, 42, GST + 4 * i)
    a(f"{ex}:")
    a("s_endpgm")
```

```python
import sys, math
sys.path.insert(0, "gen")
from asmlib import *
from layout import *
import hazard, chain4 as ch, workers as wk
from workers import f2u, srd_from_arg, xreduce_add, xreduce_max

TIMEOUT = 400000
L_TK = 0x27000


def tstamp(a, opt, idx):
    if not opt.get("tl"):
        return
    lab = a.uid("TS")
    a(f"""
    s_cmp_lg_u32 s17, 0
    s_cbranch_scc1 {lab}
    s_memrealtime s[98:99]
    s_waitcnt lgkmcnt(0)
    s_mov_b64 s[100:101], exec
    s_mov_b64 exec, 1
    v_mov_b32 v254, s98
    v_mov_b32 v255, 0
    buffer_store_dword v254, v255, s[8:11], s97 offen offset:{idx*4}
    s_mov_b64 exec, s[100:101]
    {lab}:
    """)


def poll_ge(a, vaddr, soff, thr, vtmp, sleep=2, x2=False, srd=8):
    lab = a.uid("PL")
    a("s_mov_b32 s21, 0")
    a(f"{lab}:")
    if x2:
        a(f"buffer_load_dwordx2 v[{vtmp}:{vtmp+1}], v{vaddr}, s[{srd}:{srd+3}], {soff} offen sc1")
    else:
        a(f"buffer_load_dword v{vtmp}, v{vaddr}, s[{srd}:{srd+3}], {soff} offen sc1")
    a(f"""
    s_add_u32 s21, s21, 1
    s_cmp_gt_u32 s21, {TIMEOUT}
    s_cbranch_scc1 F_fail
    s_waitcnt vmcnt(0)
    """)
    if x2:
        a(f"v_min_u32 v{vtmp}, v{vtmp}, v{vtmp+1}")
    a(f"""
    v_cmp_gt_u32 vcc, {thr}, v{vtmp}
    s_cbranch_vccz {lab}_ok
    s_sleep {sleep}
    s_branch {lab}
    {lab}_ok:
    """)


def flag_store(a, sval, soff, t0):
    a(f"""
    v_mov_b32 v{t0}, {sval}
    s_mov_b64 exec, 1
    buffer_store_dword v{t0}, v4, s[8:11], {soff} offen sc1
    s_mov_b64 exec, -1
    """)


def wait_ready(a):
    a(f"v_mov_b32 v252, {D_READY}")
    poll_ge(a, 252, 0, 1, 253, sleep=2, srd=12)


def prologue(a, opt):
    a(f"""
    s_cmp_ge_u32 s2, 256
    s_cbranch_scc1 F_exit
    s_load_dwordx2 s[4:5], s[0:1], {ARG_DBG}
    s_load_dwordx2 s[6:7], s[0:1], {ARG_WS}
    s_getreg_b32 s3, hwreg(HW_REG_XCC_ID)
    s_and_b32 s3, s3, 7
    v_and_b32 v1, 63, v0
    v_lshrrev_b32 v2, 6, v0
    v_readfirstlane_b32 s17, v2
    v_lshlrev_b32 v4, 4, v1
    s_waitcnt lgkmcnt(0)
    """)
    if opt.get("fakexcc"):
        a(f"s_lshr_b32 s3, s2, {opt['fakexcc']}")
        a("s_and_b32 s3, s3, 7")
    make_srd(a, 8, 6, WS_SIZE)
    make_srd(a, 12, 4, 256)
    if opt.get("tl"):
        a(f"s_lshl_b32 s97, s2, 7")
        a(f"s_add_u32 s97, s97, {WS_DBG:#x}")
    tstamp(a, opt, 0)
    a(f"""
    s_cmp_lg_u32 s2, 255
    s_cbranch_scc1 F_nozero
    v_lshlrev_b32 v5, 4, v0
    v_mov_b32 v8, 0
    v_mov_b32 v9, 0
    v_mov_b32 v10, 0
    v_mov_b32 v11, 0
    """)
    for i in range(FLAG_BYTES // 4096):
        a(f"s_mov_b32 s19, {WS_FLAGS + i*4096:#x}")
        a(f"buffer_store_dwordx4 v[8:11], v5, s[8:11], s19 offen sc1")
    a(f"""
    F_nozero:
    v_mov_b32 v3, {L_TK:#x}
    s_cmp_lg_u32 s17, 0
    s_cbranch_scc1 F_noticket
    s_lshl_b32 s19, s3, 2
    v_mov_b32 v5, s19
    v_mov_b32 v6, 1
    s_mov_b64 exec, 1
    buffer_atomic_add v6, v5, s[12:15], 0 offen sc0 sc1
    s_waitcnt vmcnt(0)
    s_mov_b64 exec, -1
    v_readfirstlane_b32 s16, v6
    s_cmp_lt_u32 s16, 32
    s_cbranch_scc1 F_have
    """)
    a(f"""
    v_and_b32 v5, 7, v1
    v_lshlrev_b32 v5, 2, v5
    s_mov_b32 s21, 0
    F_ovf:
    buffer_load_dword v6, v5, s[12:15], 0 offen sc1
    s_add_u32 s21, s21, 1
    s_cmp_gt_u32 s21, {TIMEOUT}
    s_cbranch_scc1 F_fail
    s_waitcnt vmcnt(0)
    s_mov_b32 s19, 0
    """)
    for x in range(8):
        a(f"v_readlane_b32 s{40+x}, v6, {x}")
        a("s_nop 3")
        a(f"s_add_u32 s19, s19, s{40+x}")
    a(f"""
    s_cmp_lt_u32 s19, 256
    s_cbranch_scc1 F_ovf
    s_sub_u32 s16, s16, 32
    """)
    for x in range(8):
        a(f"""
        s_max_u32 s19, s{40+x}, 32
        s_sub_u32 s19, s19, 32
        s_cmp_gt_u32 s3, {x}
        s_cselect_b32 s19, s19, 0
        s_add_u32 s16, s16, s19
        """)
    for x in range(8):
        a(f"""
        s_min_u32 s19, s{40+x}, 32
        s_sub_u32 s20, 32, s19
        s_mov_b32 s3, {x}
        s_cmp_lt_u32 s16, s20
        s_cbranch_scc1 F_ovf_done
        s_sub_u32 s16, s16, s20
        """)
    a(f"""
    s_branch F_fail
    F_ovf_done:
    s_add_u32 s16, s16, s19
    s_cmp_lg_u32 s3, 0
    s_cbranch_scc1 F_have
    v_mov_b32 v5, {D_SLOW}
    v_mov_b32 v6, 1
    s_mov_b64 exec, 1
    buffer_store_dword v6, v5, s[12:15], 0 offen sc1
    s_waitcnt vmcnt(0)
    s_mov_b64 exec, -1
    F_have:
    s_lshl_b32 s19, s3, 5
    s_add_u32 s19, s19, s16
    v_mov_b32 v6, s19
    ds_write_b32 v3, v6
    F_noticket:
    s_waitcnt vmcnt(0) lgkmcnt(0)
    s_barrier
    ds_read_b32 v6, v3
    s_cmp_lg_u32 s2, 255
    s_cbranch_scc1 F_noready
    s_cmp_lg_u32 s17, 0
    s_cbranch_scc1 F_noready
    v_mov_b32 v5, {D_READY}
    v_mov_b32 v7, 1
    s_mov_b64 exec, 1
    buffer_store_dword v7, v5, s[12:15], 0 offen sc1
    s_mov_b64 exec, -1
    F_noready:
    s_waitcnt lgkmcnt(0)
    v_readfirstlane_b32 s16, v6
    """)
    if opt.get("tl"):
        a("v_mov_b32 v7, 0")
        a("buffer_store_dword v6, v7, s[8:11], s97 offen offset:124")
    a("""
    s_cmp_ge_u32 s16, 32
    s_cbranch_scc1 F_worker
    """)


def chain_role(a, opt):
    o2 = dict(opt)
    o2["sc"] = "sc1"
    ch.gen_setup(a, o2)
    L16 = ch.LANE16
    a(f"""
    s_lshl_b32 s29, s16, 7
    s_add_u32 s29, s29, {F_PG:#x}
    s_lshl_b32 s28, s17, 2
    s_add_u32 s28, s28, s29
    s_add_u32 s28, s28, 96
    s_waitcnt vmcnt(0)
    s_barrier
    s_cmp_lg_u32 s17, 0
    s_cbranch_scc1 C_noarr
    v_mov_b32 v32, {D_CBAR}
    v_mov_b32 v33, 1
    s_mov_b64 exec, 1
    buffer_atomic_add v33, v32, s[12:15], 0 offen sc1
    s_mov_b64 exec, -1
    C_noarr:
    v_mov_b32 v32, {D_READY}
    """)
    if opt.get("tl"):
        a("v_mov_b32 v40, v254\nv_mov_b32 v41, v255")
        tstamp(a, opt, 1)
        a("v_mov_b32 v254, v40\nv_mov_b32 v255, v41")
    poll_ge(a, 32, 0, 1, 33, sleep=1, srd=12)
    a("s_mov_b32 s19, 0")
    ch.gen_kvwait(a, "C_kv0", "F_fail", 32, 33)
    ch.gen_prefetch0(a, "sc1")
    a(f"v_mov_b32 v32, {D_CBAR}")
    poll_ge(a, 32, 0, 32, 33, sleep=1, srd=12)
    a(f"""
    v_mov_b32 v32, {D_SLOW}
    buffer_load_dword v33, v32, s[12:15], 0 offen sc1
    s_waitcnt vmcnt(0)
    v_readfirstlane_b32 s19, v33
    """)
    if opt.get("tl"):
        a("v_mov_b32 v40, v254\nv_mov_b32 v41, v255")
        tstamp(a, opt, 2)
        a("v_mov_b32 v254, v40\nv_mov_b32 v255, v41")
    a(f"""
    s_cmp_lg_u32 s19, 0
    s_cbranch_scc1 CS_entry
    """)
    for pfx, sc in (("C", ""), ("CS", "sc1")):
        if pfx == "CS":
            a("CS_entry:")
        o3 = dict(opt)
        o3.update(sc=sc, xsc="sc1", fused=1)
        ch.gen_loop(a, o3, pfx)
        a(f"{pfx}_fail:")
        a("s_branch F_fail")
        a(f"""
        {pfx}_done:
        v_mov_b32 v32, 64
        s_waitcnt vmcnt(0)
        s_mov_b64 exec, 1
        buffer_store_dword v32, v{L16}, s[8:11], s28 offen sc1
        s_mov_b64 exec, -1
        """)
        tstamp(a, opt, 3)
        a("s_endpgm")


XR, ACC = 24, 152


def gemm1_issue_weights(a):
    sn, dma = wk.gen_gemm1(a, None, 40, 0, "G1")


def gemm1_main(a, opt):
    a("s_waitcnt vmcnt(0)")
    a("s_barrier")
    for ks in range(16):
        for ct in range(4):
            for u in range(2):
                r = (ks * 4 + ct) * 4 + u * 2
                a(f"ds_read_b64_tr_b16 a[{r}:{r+1}], v{14+ct} offset:{ks*4096+u*512}")
        a("s_waitcnt lgkmcnt(0)")
    a(f"""
    s_and_b32 s19, s40, 63
    s_lshr_b32 s20, s19, 1                 ; head
    s_and_b32 s21, s40, 1                  ; half
    s_lshl_b32 s42, s17, 18
    s_lshl_b32 s22, s20, 13
    s_add_u32 s42, s42, s22                ; w*256K + h*8K
    s_lshl_b32 s44, s20, 7
    s_lshl_b32 s22, s21, 2
    s_add_u32 s44, s44, s22
    s_add_u32 s44, s44, {F_PG:#x}
    s_mov_b32 s43, 0x100000
    s_cmp_ge_u32 s40, 192
    s_cbranch_scc1 G_bH
    s_cmp_ge_u32 s40, 128
    s_cbranch_scc1 G_bQ
    s_lshl_b32 s22, s17, 4
    s_add_u32 s44, s44, s22
    s_cmp_ge_u32 s40, 64
    s_cbranch_scc1 G_bV
    s_lshl_b32 s22, s21, 11
    s_add_u32 s42, s42, s22
    s_add_u32 s42, s42, {WS_KF:#x}
    s_branch G_bdone
    G_bV:
    s_add_u32 s44, s44, 8
    s_lshl_b32 s22, s21, 12
    s_add_u32 s42, s42, s22
    s_add_u32 s42, s42, {WS_VF:#x}
    s_branch G_bdone
    G_bQ:
    s_lshl_b32 s22, s17, 3
    s_add_u32 s44, s44, s22
    s_add_u32 s44, s44, 64
    s_lshl_b32 s22, s21, 11
    s_add_u32 s42, s42, s22
    s_add_u32 s42, s42, {WS_QF:#x}
    s_branch G_bdone
    G_bH:
    s_sub_u32 s19, s40, 192
    s_lshl_b32 s44, s19, 4
    s_lshl_b32 s22, s17, 2
    s_add_u32 s44, s44, s22
    s_add_u32 s44, s44, {F_HP:#x}
    s_mul_i32 s42, s17, {2*43*1024}
    s_lshl_b32 s19, s19, 11
    s_add_u32 s42, s42, s19
    s_add_u32 s42, s42, {WS_HF:#x}
    s_mov_b32 s43, {8*43*1024}
    G_bdone:
    s_cmp_eq_u32 s40, 213
    s_cselect_b32 s20, 0x7ffff000, 0
    v_add_u32 v19, s20, v4
    v_lshlrev_b32 v20, 3, v1
    """)
    a(f"s_mov_b32 s22, {F_LN:#x}")
    poll_ge(a, 20, "s22", 1, 22, sleep=2, x2=True)
    tstamp(a, opt, 2)
    order = [(ks, tt) for ks in range(16) for tt in range(2)]

    def ld(i):
        ks, tt = order[i]
        if ks % 4 == 0:
            a(f"s_add_u32 s{46+tt}, s45, {tt*16384 + ks*1024}")
        a(f"buffer_load_dwordx4 v[{XR+4*i}:{XR+4*i+3}], v4, s[8:11], s{46+tt} offen offset:{(ks%4)*1024} sc1")

    a(f"""
    s_lshl_b32 s45, s17, 15
    s_add_u32 s45, s45, {WS_XN:#x}
    """)
    for i in range(32):
        ld(i)
    a(f"""
    s_sub_u32 s19, s40, 192
    s_lshl_b32 s19, s19, 7
    s_cmp_lt_u32 s40, 192
    s_cselect_b32 s19, 0, s19
    buffer_load_dwordx2 v[200:201], v18, s[60:63], s19 offen
    buffer_load_dwordx2 v[202:203], v18, s[60:63], s19 offen offset:32
    buffer_load_dwordx2 v[204:205], v18, s[60:63], s19 offen offset:64
    buffer_load_dwordx2 v[206:207], v18, s[60:63], s19 offen offset:96
    buffer_load_dwordx2 v[208:209], v18, s[60:63], s19 offen offset:96
    s_mov_b32 s41, 0
    s_cmp_ge_u32 s40, 192
    s_cbranch_scc1 G_H
    s_cmp_ge_u32 s40, 128
    s_cbranch_scc1 G_K
    s_cmp_ge_u32 s40, 64
    s_cbranch_scc1 G_V
    """)

    def loop(kind):
        a(f"G_{kind}:")
        a("""
        s_add_u32 s45, s45, 0x20000
        s_cmp_eq_u32 s41, 15
        s_cselect_b32 s45, 0x7ff00000, s45
        """)
        for i, (ks, tt) in enumerate(order):
            a("s_waitcnt vmcnt(36)")
            for ct in range(4):
                d = ACC + (tt * 4 + ct) * 4
                w = (ks * 4 + ct) * 4
                x = XR + 4 * i
                c = "0" if ks == 0 else f"v[{d}:{d+3}]"
                if kind == "V":
                    a(f"v_mfma_f32_16x16x32_bf16 v[{d}:{d+3}], v[{x}:{x+3}], a[{w}:{w+3}], {c}")
                else:
                    a(f"v_mfma_f32_16x16x32_bf16 v[{d}:{d+3}], a[{w}:{w+3}], v[{x}:{x+3}], {c}")
            ld(i)
        a("s_waitcnt vmcnt(32)")
        flag_store(a, "s41", "s44", 21)
        if kind == "V":
            for ct in range(4):
                d0 = ACC + ct * 4
                d1 = ACC + (4 + ct) * 4
                a(f"""
                v_cvt_pk_bf16_f32 v{d0}, v{d0}, v{d0+1}
                v_cvt_pk_bf16_f32 v{d0+1}, v{d0+2}, v{d0+3}
                v_cvt_pk_bf16_f32 v{d0+2}, v{d1}, v{d1+1}
                v_cvt_pk_bf16_f32 v{d0+3}, v{d1+2}, v{d1+3}
                buffer_store_dwordx4 v[{d0}:{d0+3}], v4, s[8:11], s42 offen offset:{ct*1024} sc1
                """)
        elif kind == "K":
            a("s_add_u32 s19, s42, 0x1000")
            for tt in range(2):
                for p in range(2):
                    d0 = ACC + (tt * 4 + p) * 4
                    d1 = d0 + 8
                    a(f"""
                    v_cvt_pk_bf16_f32 v{d0}, v{d0}, v{d0+1}
                    v_cvt_pk_bf16_f32 v{d0+1}, v{d0+2}, v{d0+3}
                    v_cvt_pk_bf16_f32 v{d0+2}, v{d1}, v{d1+1}
                    v_cvt_pk_bf16_f32 v{d0+3}, v{d1+2}, v{d1+3}
                    buffer_store_dwordx4 v[{d0}:{d0+3}], v4, s[8:11], s{42 if tt == 0 else 19} offen offset:{p*1024} sc1
                    """)
        else:
            a(f"s_add_u32 s19, s42, {43*1024}")
            for ct in range(4):
                for j in range(2):
                    a(f"v_lshlrev_b32 v{184+ct*4+2*j}, 16, v{200+2*ct+j}")
                    a(f"v_and_b32 v{184+ct*4+2*j+1}, 0xffff0000, v{200+2*ct+j}")
            for tt in range(2):
                for p in range(2):
                    d0 = ACC + (tt * 4 + 2 * p) * 4
                    for j in range(4):
                        r0 = d0 + 2 * j
                        bi = 184 + (2 * p + (j >> 1)) * 4 + (j & 1) * 2
                        a(f"""
                        v_cvt_pk_bf16_f32 v{r0+1}, v{r0}, v{r0+1}
                        v_lshlrev_b32 v{r0}, 16, v{r0+1}
                        v_and_b32 v{r0+1}, 0xffff0000, v{r0+1}
                        v_add_f32 v{r0}, v{r0}, v{bi}
                        v_add_f32 v{r0+1}, v{r0+1}, v{bi+1}
                        v_cvt_pk_bf16_f32 v{r0+1}, v{r0}, v{r0+1}
                        v_lshlrev_b32 v{r0}, 16, v{r0+1}
                        v_and_b32 v{r0+1}, 0xffff0000, v{r0+1}
                        v_max_f32 v{r0}, 0, v{r0}
                        v_max_f32 v{r0+1}, 0, v{r0+1}
                        v_mul_f32 v{r0}, v{r0}, v{r0}
                        v_mul_f32 v{r0+1}, v{r0+1}, v{r0+1}
                        v_cvt_pk_bf16_f32 v{d0+j}, v{r0}, v{r0+1}
                        """)
                    va = 4 if p == 0 else 19
                    a(f"buffer_store_dwordx4 v[{d0}:{d0+3}], v{va}, s[8:11], s{42 if tt == 0 else 19} offen offset:{p*1024} sc1")
        a(f"""
        s_add_u32 s42, s42, s43
        s_add_u32 s41, s41, 1
        s_cmp_lt_u32 s41, 16
        s_cbranch_scc1 G_{kind}
        s_branch G_end
        """)

    for kind in "KVH":
        loop(kind)
    a("G_end:")
    a("s_waitcnt vmcnt(0)")
    flag_store(a, "16", "s44", 21)
    a(f"""
    s_barrier
    s_cmp_lg_u32 s17, 0
    s_cbranch_scc1 G_noadd
    v_lshlrev_b32 v20, 7, v1
    v_mov_b32 v21, 1
    s_mov_b32 s19, {F_G1:#x}
    s_mov_b64 exec, 0xffffffff
    buffer_atomic_add v21, v20, s[8:11], s19 offen sc1
    s_mov_b64 exec, -1
    G_noadd:
    """)


def lane_ids(a):
    a("""
    v_and_b32 v120, 15, v1
    v_lshrrev_b32 v121, 4, v1
    v_lshrrev_b32 v122, 2, v120
    v_and_b32 v123, 3, v120
    """)


L_ATT = wk.L_RED + 0x4000
Q_, K_, V_, KVM_, KA_, S_ = 24, 40, 72, 104, 120, 128


def attn_consts(a):
    a(f"""
    s_lshr_b32 s19, s17, 1
    s_lshl_b32 s24, s43, 1
    s_add_u32 s24, s24, s19
    s_lshl_b32 s25, s24, 7
    s_add_u32 s25, s25, {F_PG:#x}
    s_lshl_b32 s19, s17, 11
    s_add_u32 s19, s19, {L_ATT:#x}
    v_lshrrev_b32 v20, 3, v120
    v_xor_b32 v21, v121, v20
    v_lshlrev_b32 v2, 8, v20
    v_lshl_add_u32 v2, v21, 6, v2
    v_and_b32 v21, 7, v120
    v_lshl_add_u32 v2, v21, 3, v2
    v_add_u32 v2, s19, v2
    v_lshrrev_b32 v20, 1, v121
    v_xor_b32 v21, v123, v20
    v_lshlrev_b32 v3, 8, v20
    v_lshl_add_u32 v3, v21, 6, v3
    v_and_b32 v21, 1, v121
    v_lshl_add_u32 v3, v21, 5, v3
    v_lshl_add_u32 v3, v122, 3, v3
    v_add_u32 v3, s19, v3
    s_mov_b32 s73, {f2u(wk.C_SCALE):#x}
    s_mov_b32 s72, {f2u(wk.LOG2E):#x}
    s_and_b32 s19, s17, 1
    s_lshl_b32 s19, s19, 4
    v_add_u32 v20, s19, v120
    v_lshlrev_b32 v21, 2, v121
    """)
    for t in range(2):
        for i in range(4):
            a(f"v_add_u32 v22, {16*t+i}, v21")
            a(f"v_cmp_le_u32 s[{56+8*t+2*i}:{57+8*t+2*i}], v22, v20")


def round_scale(a, r0, r1):
    a(f"""
    v_cvt_pk_bf16_f32 v{r1}, v{r0}, v{r1}
    v_lshlrev_b32 v{r0}, 16, v{r1}
    v_and_b32 v{r1}, 0xffff0000, v{r1}
    v_mul_f32 v{r0}, s73, v{r0}
    v_mul_f32 v{r1}, s73, v{r1}
    v_cvt_pk_bf16_f32 v{r1}, v{r0}, v{r1}
    v_lshlrev_b32 v{r0}, 16, v{r1}
    v_and_b32 v{r1}, 0xffff0000, v{r1}
    """)


def attn_task(a, opt):
    S0, S1, DE, DO = S_, S_ + 4, S_ + 8, S_ + 12
    T0, T1, NEG = S_ + 16, S_ + 17, S_ + 18
    P, PM = S_ + 20, S_ + 24
    O = 160
    a(f"""
    s_lshl_b32 s19, s42, 18
    s_lshl_b32 s20, s24, 13
    s_add_u32 s19, s19, s20
    s_and_b32 s20, s17, 1
    s_lshl_b32 s20, s20, 12
    s_add_u32 s20, s20, s19
    s_add_u32 s20, s20, {WS_QF:#x}
    """)
    for i in range(4):
        a(f"buffer_load_dwordx4 v[{Q_+4*i}:{Q_+4*i+3}], v4, s[8:11], s20 offen offset:{i*1024} sc1")
    for base, ws in ((K_, WS_KF), (V_, WS_VF)):
        for hh in range(2):
            a(f"s_add_u32 s20, s19, {ws + hh*4096:#x}")
            for i in range(4):
                r = base + (hh * 4 + i) * 4
                a(f"buffer_load_dwordx4 v[{r}:{r+3}], v4, s[8:11], s20 offen offset:{i*1024} sc1")
    a("s_waitcnt vmcnt(8)")
    for t, d in ((0, S0), (1, S1)):
        for f in range(4):
            c = "0" if f == 0 else f"v[{d}:{d+3}]"
            a(f"v_mfma_f32_16x16x32_bf16 v[{d}:{d+3}], v[{K_+16*t+4*f}:{K_+16*t+4*f+3}], v[{Q_+4*f}:{Q_+4*f+3}], {c}")
    a(f"v_mov_b32 v{NEG}, {f2u(-1e30):#x}")
    a(f"v_mov_b32 v{PM}, 0")
    a(f"v_mov_b32 v{PM+3}, 0")
    for j in range(0, 8, 2):
        round_scale(a, S0 + j, S0 + j + 1)
    for j in range(8):
        a(f"v_cndmask_b32 v{S0+j}, v{NEG}, v{S0+j}, s[{56+2*j}:{57+2*j}]")
    a(f"""
    v_max3_f32 v{T0}, v{S0}, v{S0+1}, v{S0+2}
    v_max3_f32 v{T0}, v{T0}, v{S0+3}, v{S0+4}
    v_max3_f32 v{T0}, v{T0}, v{S0+5}, v{S0+6}
    v_max_f32 v{T0}, v{T0}, v{S0+7}
    s_lshl_b32 s19, s42, 17
    s_lshl_b32 s20, s24, 12
    s_add_u32 s19, s19, s20
    s_add_u32 s19, s19, {WS_KM:#x}
    s_add_u32 s22, s42, 1
    s_mov_b32 s21, 0
    """)
    lab = a.uid("CF")
    a(f"""
    {lab}:
    buffer_load_dwordx4 v[20:23], v18, s[8:11], s25 offen offset:96 sc1
    s_add_u32 s21, s21, 1
    s_cmp_gt_u32 s21, {TIMEOUT}
    s_cbranch_scc1 F_fail
    s_waitcnt vmcnt(0)
    v_min_u32 v20, v20, v21
    v_min3_u32 v20, v20, v22, v23
    s_nop 1
    v_readfirstlane_b32 s20, v20
    s_cmp_ge_u32 s20, s22
    s_cbranch_scc1 {lab}_ok
    s_add_u32 s20, s20, 1
    s_cmp_ge_u32 s20, s22
    s_cbranch_scc1 {lab}_s
    s_sleep 16
    s_add_u32 s20, s20, 2
    s_cmp_ge_u32 s20, s22
    s_cbranch_scc1 {lab}
    s_sleep 80
    {lab}_s:
    s_sleep {opt.get('cfs', 2)}
    s_branch {lab}
    {lab}_ok:
    """)
    for w in range(4):
        a(f"buffer_load_dwordx4 v[{KVM_+4*w}:{KVM_+4*w+3}], v4, s[8:11], s19 offen offset:{w*1024} sc1")
    tstamp(a, opt, 6)
    x = 1 if opt.get("tl") else 0
    for w in range(4):
        a(f"s_waitcnt vmcnt({3-w})")
        a(f"ds_write_b64 v2, v[{KVM_+4*w}:{KVM_+4*w+1}] offset:{w*512}")
    for w in range(4):
        a(f"ds_read_b64_tr_b16 v[{KA_+2*w}:{KA_+2*w+1}], v3 offset:{w*512}")
    a(f"""
    s_lshl_b32 s19, s42, 18
    s_lshl_b32 s20, s24, 12
    s_add_u32 s19, s19, s20
    s_and_b32 s20, s17, 1
    s_lshl_b32 s20, s20, 17
    s_add_u32 s19, s19, s20
    s_add_u32 s19, s19, {WS_OF:#x}
    s_waitcnt lgkmcnt(2)
    v_mfma_f32_16x16x32_bf16 v[{DE}:{DE+3}], v[{KA_}:{KA_+3}], v[{Q_}:{Q_+3}], 0
    v_mfma_f32_16x16x32_bf16 v[{DO}:{DO+3}], v[{KA_}:{KA_+3}], v[{Q_+4}:{Q_+7}], 0
    s_waitcnt lgkmcnt(0)
    v_mfma_f32_16x16x32_bf16 v[{DE}:{DE+3}], v[{KA_+4}:{KA_+7}], v[{Q_+8}:{Q_+11}], v[{DE}:{DE+3}]
    v_mfma_f32_16x16x32_bf16 v[{DO}:{DO+3}], v[{KA_+4}:{KA_+7}], v[{Q_+12}:{Q_+15}], v[{DO}:{DO+3}]
    v_add_f32 v{DE}, v{DE}, v{DO+2}
    v_add_f32 v{DE+1}, v{DE+1}, v{DO+3}
    """)
    round_scale(a, DE, DE + 1)
    a(f"v_max3_f32 v{T0}, v{T0}, v{DE}, v{DE+1}")
    xreduce_max(a, T0, T1)
    regs = list(range(S0, S0 + 10))
    for r in regs:
        a(f"v_sub_f32 v{r}, v{r}, v{T0}")
    for r in regs:
        a(f"v_mul_f32 v{r}, s72, v{r}")
    for r in regs:
        a(f"v_exp_f32 v{r}, v{r}")
    a(f"v_add_f32 v{T0}, v{regs[0]}, v{regs[1]}")
    for r in regs[2:]:
        a(f"v_add_f32 v{T0}, v{T0}, v{r}")
    xreduce_add(a, T0, T1)
    a(f"v_rcp_f32 v{T0}, v{T0}")
    for r in regs:
        a(f"v_mul_f32 v{r}, v{r}, v{T0}")
    for j in range(4):
        a(f"v_cvt_pk_bf16_f32 v{P+j}, v{S0+2*j}, v{S0+2*j+1}")
    a(f"v_cvt_pk_bf16_f32 v{PM+1}, v{DE}, v{DE+1}")
    a(f"v_cvt_pk_bf16_f32 v{PM+2}, v{DE}, v{DE+1}")
    for et in range(8):
        d = O + 4 * et
        a(f"v_mfma_f32_16x16x32_bf16 v[{d}:{d+3}], v[{V_+4*et}:{V_+4*et+3}], v[{P}:{P+3}], 0")
    for et in range(8):
        d = O + 4 * et
        vm = KVM_ + 4 * (et >> 1) + 2
        b = PM + 2 if et % 2 == 0 else PM
        a(f"v_mfma_f32_16x16x16_bf16 v[{d}:{d+3}], v[{vm}:{vm+1}], v[{b}:{b+1}], v[{d}:{d+3}]")
    for k4 in range(4):
        d0 = O + 8 * k4
        d1 = d0 + 4
        a(f"""
        v_cvt_pk_bf16_f32 v{d0}, v{d0}, v{d0+1}
        v_cvt_pk_bf16_f32 v{d0+1}, v{d0+2}, v{d0+3}
        v_cvt_pk_bf16_f32 v{d0+2}, v{d1}, v{d1+1}
        v_cvt_pk_bf16_f32 v{d0+3}, v{d1+2}, v{d1+3}
        buffer_store_dwordx4 v[{d0}:{d0+3}], v4, s[8:11], s19 offen offset:{k4*1024} sc1
        """)
    a(f"""
    s_lshl_b32 s22, s42, 8
    s_add_u32 s22, s22, {F_OF:#x}
    s_lshl_b32 s19, s43, 4
    s_lshl_b32 s20, s17, 2
    s_add_u32 s19, s19, s20
    s_add_u32 s19, s19, s22
    s_waitcnt vmcnt(0)
    """)
    flag_store(a, "1", "s19", 20)


def worker(a, opt):
    GST = wk.GST
    a("F_worker:")
    a("s_sub_u32 s40, s16, 32")
    lane_ids(a)
    a("s_cmp_lt_u32 s40, 214")
    a("s_cbranch_scc1 W_g1")
    wait_ready(a)
    a("s_branch W_c")
    a("W_g1:")
    srd_from_arg(a, 76, ARG_X, 2 << 20)
    a("s_cmp_ge_u32 s40, 128")
    a("s_cbranch_scc1 W_noln")
    wk.gen_ln(a, 40, 76, L_TK + 64, part="load")
    a("W_noln:")
    gemm1_issue_weights(a)
    a("s_cmp_ge_u32 s40, 128")
    a("s_cbranch_scc1 W_noln2")
    wk.gen_ln(a, 40, 76, L_TK + 64, sc="sc1", part="compute", pending=16)
    a("W_noln2:")
    wait_ready(a)
    a(f"""
    s_barrier
    s_cmp_ge_u32 s40, 128
    s_cbranch_scc1 W_noln3
    s_cmp_lg_u32 s17, 0
    s_cbranch_scc1 W_noln3
    s_lshl_b32 s19, s40, 2
    s_add_u32 s19, s19, {F_LN:#x}
    """)
    flag_store(a, "1", "s19", 21)
    a("W_noln3:")
    tstamp(a, opt, 1)
    gemm1_main(a, opt)
    a("W_c:")
    tstamp(a, opt, 3)
    a("""
    s_lshr_b32 s41, s40, 4
    s_and_b32 s43, s40, 15
    """)
    lane_ids(a)
    wk.gen_out_consts(a, 43)
    attn_consts(a)
    a("s_barrier")
    wk.gen_gate_setup(a)
    a(f"""
    s_cmp_lg_u32 s17, 0
    s_cbranch_scc1 W_nopoll
    s_and_b32 s22, s40, 31
    s_lshl_b32 s22, s22, 7
    s_add_u32 s22, s22, {F_G1:#x}
    s_movk_i32 s23, 214
    v_mov_b32 v20, 0
    """)
    poll_ge(a, 20, "s22", "s23", 22, sleep=16)
    a("W_nopoll:")
    a("s_barrier")
    a("s_mov_b32 s42, s41")
    a("W_gate:")
    for i in range(0, 16, 2):
        a(f"v_mov_b64 v[{GST+i}:{GST+i+1}], v[{GST+i+4}:{GST+i+5}]")
    a("s_cmp_ge_u32 s42, 64")
    a("s_cbranch_scc1 W_gdone")
    wk.gen_gate(a, 42, GST + 16, "sc1")
    a(f"""
    s_add_u32 s42, s42, 14
    s_sub_u32 s19, s42, s41
    s_cmp_lt_u32 s19, 70
    s_cbranch_scc1 W_gate
    W_gdone:
    """)
    tstamp(a, opt, 4)
    wk.gen_wo_setup(a)
    a(f"""
    v_mov_b32 v18, 0
    v_and_b32 v19, 15, v1
    v_lshlrev_b32 v19, 2, v19
    s_lshl_b32 s19, s17, 6
    v_add_u32 v19, s19, v19
    s_mov_b32 s42, s41
    """)
    tstamp(a, opt, 5)
    a("W_seg:")
    attn_task(a, opt)
    poll_ge(a, 19, "s22", 1, 20, sleep=opt.get("ofs", 1))
    tstamp(a, opt, 7)
    wk.gen_out_task(a, 42, GST, "sc1")
    tstamp(a, opt, 8)
    if opt.get("tl"):
        a("s_add_u32 s97, s97, 12")
    for i in range(0, 16, 2):
        a(f"v_mov_b64 v[{GST+i}:{GST+i+1}], v[{GST+i+4}:{GST+i+5}]")
    a(f"""
    s_add_u32 s42, s42, 14
    s_cmp_lt_u32 s42, 64
    s_cbranch_scc1 W_seg
    s_endpgm
    F_fail:
    v_mov_b32 v32, 0xdead
    v_mov_b32 v33, {D_FAIL}
    s_mov_b64 exec, 1
    buffer_store_dword v32, v33, s[12:15], 0 offen
    F_exit:
    s_endpgm
    """)


NAME = "recurrent_scan__memory_aug_recurrent_mem_tr__dense_activation_squared_relu__prompt"
DEF = dict(pre1=42, pre2=55, gap1=40, gap2=40)


def build(path, opt):
    o = dict(DEF)
    o.update(opt)
    hdr = open(f"cdna_kernels/{NAME}.s.ref").read().split("; Override launch")[0]
    a = Asm()
    for ln in hdr.strip().split("\n"):
        a.raw(ln)
    a.raw(f"; @launch kernel=fused_kernel grid=(256,1,1) block=(256,1,1) lds={ch.LDS_BYTES}")
    a.raw('.amdgcn_target "amdgcn-amd-amdhsa--gfx950"')
    a.raw(".text")
    kernel_header(a, "fused_kernel")
    prologue(a, o)
    chain_role(a, o)
    worker(a, o)
    a.lines = ch.hoist_waits(a.lines)
    a.lines = hazard.fix(a.lines, True)
    a.raw('.section .rodata,"a"')
    a.raw(".p2align 6")
    a.raw(kernel_desc("fused_kernel", 512, 256))
    open(path, "w").write(a.text())


if __name__ == "__main__":
    opt = {}
    for kv in sys.argv[2:]:
        k, v = kv.split("=")
        opt[k] = v if k in ("sc", "xsc") else int(v)
    build(sys.argv[1], opt)
```

```python
import sys, struct, math
sys.path.insert(0, "gen")
from asmlib import *
from layout import *

TIMEOUT = 400000
WREG = 36 * 1024
L_MIR = 4 * WREG
L_QL = L_MIR + 0x2000
L_KL = L_QL + 0x1000
LDS_BYTES = 163840
assert L_KL + 0x1000 == LDS_BYTES


def f2u(f):
    return struct.unpack("<I", struct.pack("<f", f))[0]


C_SCALE = f2u(128 ** -0.5 * math.log2(math.e))

CONST, LANE16, MW, MR1, SPR, IDX, PS, PUB, QW, KW, TR, WL, KXA, TG, SPW = 0, 1, 2, 3, 6, 7, 8, 9, 10, 11, 12, 16, 17, 18, 19
MA, A1, A2, A3, X0, X1, X2, KX, KXN, VXN, H, PVB = 20, 52, 60, 68, 76, 84, 92, 100, 108, 116, 124, 128
P, MISC = X2, X2 + 4
WV0 = 144

LDS_BLOCKS = [("q", 0), ("q", 1), ("k", 0), ("q", 6), ("q", 7), ("k", 5), ("v", 5), ("o", (2, 1)), ("o", (3, 1))]
REG_BLOCKS = [b for b in ([(k, j) for k in "qkv" for j in range(8)] + [("o", (p, jp)) for p in range(4) for jp in range(2)])
              if b not in LDS_BLOCKS]
assert len(REG_BLOCKS) == 23


def wreg(blk, t):
    i = REG_BLOCKS.index(blk) * 2 + t
    if i < 32:
        return "a", i * 8
    return "v", WV0 + (i - 32) * 8


def wop(blk, t):
    f, b = wreg(blk, t)
    return f"{f}[{b}:{b+7}]"


NB = len(REG_BLOCKS) + len(LDS_BLOCKS)
ORDER = REG_BLOCKS + LDS_BLOCKS


def slot_of(i):
    return i % 9


def lds_frag_off(blk, t):
    i = ORDER.index(blk)
    return slot_of(i) * 4096 + t * 2048


L_FREE = lds_frag_off(("q", 1), 1) + 1024


def gen_setup(a, opt, hook=None):
    SC = opt.get("sc", "")
    N, G, R, C, L = 116, 117, 118, 119, 120
    sn = [0]
    def sst():
        if opt.get("tl"):
            a(f"s_memrealtime s[{66+2*sn[0]}:{67+2*sn[0]}]")
            sn[0] += 1
    sst()
    a(f"""
    v_and_b32 v{L}, 63, v0
    v_and_b32 v{N}, 15, v{L}
    v_lshrrev_b32 v{G}, 4, v{L}
    v_lshrrev_b32 v{R}, 2, v{N}
    v_and_b32 v{C}, 3, v{N}
    v_lshlrev_b32 v{LANE16}, 4, v{L}
    s_mul_i32 s36, s17, {WREG}
    v_add_u32 v{WL}, s36, v{LANE16}
    """)

    a(f"s_load_dwordx8 s[84:91], s[0:1], {ARG_WQ}")
    a(f"s_load_dwordx2 s[92:93], s[0:1], {ARG_MEM0}")
    assert (ARG_WK, ARG_WV, ARG_WO) == (ARG_WQ + 8, ARG_WQ + 16, ARG_WQ + 24)
    a(f"""
    v_and_b32 v26, 1, v{G}
    v_bfe_u32 v28, v{L}, 3, 1
    v_lshrrev_b32 v29, 5, v{L}
    v_and_b32 v27, 7, v{L}
    v_lshlrev_b32 v27, 4, v27
    v_lshl_add_u32 v24, v29, 2, v26
    v_lshl_add_u32 v24, v28, 4, v24
    v_lshl_add_u32 v24, v24, 13, v27
    s_lshl_b32 s19, s16, 8
    s_lshr_b32 s20, s17, 1
    s_lshl_b32 s20, s20, 7
    s_add_u32 s19, s19, s20
    v_add_u32 v24, s19, v24
    v_lshl_add_u32 v25, v29, 2, v28
    v_lshl_add_u32 v25, v26, 4, v25
    v_lshl_add_u32 v25, v25, 10, v27
    s_lshl_b32 s19, s17, 8
    v_add_u32 v25, s19, v25
    s_waitcnt lgkmcnt(0)
    """)
    for d, b in ((44, 84), (48, 86), (52, 88), (56, 90)):
        make_srd(a, d, b, 4 << 20)
    make_srd(a, 60, 92, 8192)
    for c in range(4):
        a(f"s_xor_b32 s19, s17, {c}")
        a(f"s_and_b32 s20, s19, 1")
        a(f"s_lshl_b32 s20, s20, 21")
        a(f"s_lshr_b32 s19, s19, 1")
        a(f"s_lshl_b32 s19, s19, 18")
        a(f"s_add_u32 s{40+c}, s19, s20")
    a("""
    s_lshr_b32 s19, s17, 1
    s_lshl_b32 s19, s19, 16
    s_lshl_b32 s38, s16, 17
    s_add_u32 s38, s38, s19
    s_and_b32 s19, s17, 1
    s_lshl_b32 s19, s19, 15
    s_add_u32 s38, s38, s19
    """)
    srd_of = {"q": 44, "k": 48, "v": 52, "o": 56}

    T = Track(a)
    UNITS = [("k", 1), ("q", 0), ("k", 4), ("q", 1), ("v", 0), ("q", 6), ("v", 1), ("q", 7), ("v", 4), ("k", 0),
             ("o", (0, 0)), ("k", 5), ("o", (0, 1)), ("v", 5), ("o", (2, 0)), ("o", (2, 1))]
    DEPTH = opt.get("depth", 3)
    SPARE = lds_frag_off(("o", (3, 1)), 0)
    pool = [52, 68, 84, 128]
    fresh = []
    regs = {}

    def pair(u):
        kind, idx = u
        return [u, (kind, (idx[0] ^ 1, idx[1]) if kind == "o" else idx ^ 2)]

    def issue(i):
        kind, idx = UNITS[i]
        srd = srd_of[kind]
        for blk in pair(UNITS[i]):
            regs[blk] = wreg(blk, 0) if blk in REG_BLOCKS else ("v", pool.pop(0))
            assert regs[blk] not in fresh
        for x in range(8):
            ip, hh = x >> 1, x & 1
            if kind == "o":
                p, u = idx
                a(f"s_xor_b32 s19, s38, {(u << 16) | (hh << 15):#x}")
                a(f"s_add_u32 s19, s19, {(8*(ip>>1) + 2*(ip&1))*1024 + p*64}")
                va = 25
            else:
                a(f"s_add_u32 s19, s{40+(idx>>1)}, {(64*(idx&1) + 128*(ip>>1) + 2*(ip&1) + 8*hh)*8192}")
                va = 24
            f, b = regs[pair(UNITS[i])[x >> 2]]
            b += 4 * (x & 3)
            T.vmop(f"buffer_load_dwordx4 {f}[{b}:{b+3}], v{va}, s[{srd}:{srd+3}], s19 offen", i)

    def consume(i):
        kind, idx = UNITS[i]
        b0, b1 = pair(UNITS[i])
        fresh.clear()
        if kind == "o":
            o0 = lds_frag_off(b0, 0) if b0 in LDS_BLOCKS else None
            if o0 is None:
                a(f"v_mov_b32 v42, s39")
            else:
                a(f"s_add_u32 s19, s36, {o0}")
                a(f"v_mov_b32 v42, s19")
            a(f"s_add_u32 s19, s36, {SPARE}")
            a(f"v_mov_b32 v43, s19")
            a(f"v_cndmask_b32 v42, v42, v43, s[96:97]" if False else f"v_cndmask_b32 v42, v42, v43, vcc")
            a(f"v_add_u32 v42, v42, v41")
            a(f"v_xor_b32 v43, 32, v42")
            src = [(27, o0) if o0 is not None else (44, 0), (27, SPARE)]
        else:
            o0 = lds_frag_off(b0, 0) if b0 in LDS_BLOCKS else SPARE
            a(f"s_add_u32 s19, s36, {o0}")
            a(f"v_mov_b32 v42, s19")
            a(f"v_mov_b32 v43, s39")
            a(f"v_cndmask_b32 v42, v43, v42, s[94:95]")
            a(f"v_add_u32 v42, v42, v40")
            src = [(27, o0), (38, 0)]
        T.wait_vm(i)
        for x in range(8):
            ip, hh = x >> 1, x & 1
            f, b = regs[pair(UNITS[i])[x >> 2]]
            b += 4 * (x & 3)
            if kind == "o":
                a(f"ds_write_b128 v{42+hh}, {f}[{b}:{b+3}] offset:{ip*1024}")
            else:
                a(f"ds_write_b128 v42, {f}[{b}:{b+3}] offset:{ip*1024 + hh*512}")
        a("s_waitcnt lgkmcnt(0)")
        if kind != "o":
            a("s_barrier")
        for blk, (va, so) in zip((b1, b0), src[::-1]):
            f, b = regs[blk]
            for t in range(2):
                for ip in range(4):
                    r = b + 8 * t + 2 * ip
                    if blk == ("q", 1) and t == 1 and ip >= 2:
                        r = H + 2 * (ip - 2)
                    a(f"ds_read_b64_tr_b16 {f}[{r}:{r+1}], v{va+t} offset:{so + ip*1024}")
        if kind != "o":
            a("s_waitcnt lgkmcnt(8)")
            a("s_barrier")
        a("s_waitcnt lgkmcnt(0)")
        for blk in (b0, b1):
            if blk in LDS_BLOCKS:
                f, b = regs[blk]
                for q in range(4):
                    r = b + 4 * q
                    if blk == ("q", 1) and q == 3:
                        r = 48
                    a(f"ds_write_b128 v{WL}, v[{r}:{r+3}] offset:{lds_frag_off(blk, 0) + q*1024}")
                pool.append(b)
                fresh.append(regs[blk])

    for i in range(DEPTH):
        issue(i)
    a(f"""
    v_lshl_add_u32 v27, v{G}, 2, v{R}
    v_lshlrev_b32 v27, 6, v27
    v_lshl_add_u32 v27, v26, 5, v27
    v_lshl_add_u32 v27, v{C}, 3, v27
    v_add_u32 v27, s36, v27
    v_xor_b32 v28, 32, v27
    """)
    a(f"""
    s_lshl_b32 s39, s17, 12
    s_add_u32 s39, s39, {L_MIR:#x}
    s_sub_u32 s19, s39, s36
    v_add_u32 v44, s19, v27
    v_add_u32 v45, s19, v28
    v_xor_b32 v38, 0x1000, v44
    v_xor_b32 v39, 0x1000, v45
    v_lshrrev_b32 v30, 3, v{L}
    v_lshlrev_b32 v40, 1, v29
    v_xor_b32 v40, v40, v{C}
    v_lshlrev_b32 v40, 4, v40
    v_lshl_add_u32 v40, v30, 6, v40
    v_bfe_u32 v31, v{L}, 2, 1
    s_and_b32 s19, s17, 1
    v_cmp_eq_u32 s[94:95], s19, v31
    v_and_b32 v30, 1, v30
    v_lshl_add_u32 v41, v{G}, 2, v30
    v_and_b32 v30, 2, v{L}
    v_add_u32 v41, v41, v30
    v_lshlrev_b32 v41, 6, v41
    v_lshl_add_u32 v41, v26, 5, v41
    v_and_b32 v30, 1, v{L}
    v_lshl_add_u32 v41, v30, 4, v41
    s_barrier
    """)
    a(f"""
    s_lshl_b32 s19, s17, 11
    s_add_u32 s19, s19, {L_MIR:#x}
    v_add_u32 v{MW}, s19, v{LANE16}
    v_xor_b32 v{MR1}, 0x800, v{MW}
    v_xor_b32 v{MR1+1}, 0x1000, v{MW}
    v_xor_b32 v{MR1+2}, 0x1800, v{MW}
    v_bfe_u32 v30, v{L}, 1, 1
    v_mov_b32 v{IDX}, 0x44444444
    v_mov_b32 v31, 0xeeeeeeee
    v_cmp_ne_u32 vcc, 0, v30
    v_cndmask_b32 v{IDX}, v{IDX}, v31, vcc
    """)
    assert L_MIR % 0x2000 == 0 and L_QL % 0x1000 == 0
    a(f"""
    v_and_b32 v32, 1, v{N}
    v_lshl_add_u32 v31, v{R}, 1, v32
    v_lshrrev_b32 v35, 1, v{G}
    v_lshlrev_b32 v33, 3, v{N}
    v_add_u32 v33, {L_MIR:#x}, v33
    v_lshl_add_u32 v{SPR}, v{G}, 9, v33
    v_lshl_add_u32 v{SPR}, v30, 7, v{SPR}
    v_lshl_add_u32 v{SPW}, v{G}, 7, v33
    s_lshl_b32 s19, s17, 9
    v_add_u32 v{SPW}, s19, v{SPW}
    v_lshlrev_b32 v{KXA}, 10, v30
    v_lshl_add_u32 v{KXA}, v{G}, 8, v{KXA}
    v_lshl_add_u32 v{KXA}, v31, 4, v{KXA}
    """)
    a(f"""
    v_lshrrev_b32 v30, 3, v{N}
    v_lshlrev_b32 v{PS}, 13, v30
    v_lshl_add_u32 v{PS}, v{G}, 11, v{PS}
    v_and_b32 v33, 7, v{N}
    v_lshl_add_u32 v{PS}, v33, 3, v{PS}
    """)
    a(f"""
    s_lshl_b32 s19, s17, 10
    s_add_u32 s19, s19, {L_QL:#x}
    v_lshlrev_b32 v33, 3, v33
    v_lshl_add_u32 v33, v30, 8, v33
    v_add_u32 v33, s19, v33
    v_xor_b32 v36, v{G}, v30
    v_lshl_add_u32 v{QW}, v36, 6, v33
    v_lshl_add_u32 v36, v26, 1, v35
    v_xor_b32 v36, v36, v30
    v_lshl_add_u32 v33, v36, 6, v33
    v_add_u32 v{KW}, {L_KL-L_QL+512:#x}, v33
    v_lshlrev_b32 v33, 8, v35
    v_xor_b32 v36, v{C}, v35
    v_lshl_add_u32 v33, v36, 6, v33
    v_lshl_add_u32 v33, v26, 5, v33
    v_lshl_add_u32 v33, v{R}, 3, v33
    v_add_u32 v{TG}, {L_KL:#x}, v33
    v_add_u32 v{TR}, s19, v33
    v_xor_b32 v{TR+1}, 0x400, v{TR}
    v_xor_b32 v{TR+2}, 0x800, v{TR}
    v_xor_b32 v{TR+3}, 0xc00, v{TR}
    v_mov_b32 v{CONST}, {WREG + L_FREE:#x}
    """)
    a(f"""
    v_bfe_u32 v30, v{N}, 1, 1
    v_bfe_u32 v31, v{N}, 2, 1
    v_bfe_u32 v33, v{N}, 1, 2
    v_lshlrev_b32 v{PUB}, 4, v33
    v_lshl_add_u32 v{PUB}, v{G}, 2, v{PUB}
    s_lshl_b32 s19, s16, 8
    s_lshl_b32 s20, s17, 6
    s_add_u32 s19, s19, s20
    v_add_u32 v{PUB}, s19, v{PUB}
    v_and_b32 v33, 9, v{N}
    v_cmp_ne_u32 vcc, 0, v33
    v_mov_b32 v33, 0x7fffff00
    v_cndmask_b32 v{PUB}, v{PUB}, v33, vcc
    v_lshlrev_b32 v33, 10, v30
    v_lshl_add_u32 v33, v31, 1, v33
    v_lshl_add_u32 v33, v32, 5, v33
    v_lshl_add_u32 v33, v{G}, 2, v33
    s_bfe_u32 s19, s16, 0x20001
    s_lshl_b32 s19, s19, 8
    s_lshr_b32 s20, s16, 3
    s_lshl_b32 s20, s20, 6
    s_add_u32 s19, s19, s20
    s_and_b32 s20, s16, 1
    s_lshl_b32 s20, s20, 4
    s_add_u32 s19, s19, s20
    s_lshl_b32 s20, s17, 11
    s_add_u32 s19, s19, s20
    """)
    T.vmop(f"buffer_load_ushort v34, v33, s[60:63], s19 offen", "m0")
    a(f"""
    v_lshlrev_b32 v35, 2, v31
    v_lshl_add_u32 v35, v32, 1, v35
    v_add_u32 v35, v35, v30
    """)
    for d in range(4):
        a(f"""
        v_mov_b32 v{48+d}, 0
        v_cmp_eq_u32 vcc, {2*d}, v35
        v_mov_b32 v36, 0x3f80
        v_cndmask_b32 v{48+d}, v{48+d}, v36, vcc
        v_cmp_eq_u32 vcc, {2*d+1}, v35
        v_mov_b32 v36, 0x3f800000
        v_cndmask_b32 v{48+d}, v{48+d}, v36, vcc
        """)
    lab = a.uid("C_sel")
    a(f"""
    s_cmp_eq_u32 s17, 0
    s_cbranch_scc1 {lab}
    v_cmp_eq_u32 vcc, 1, v{L}
    v_mov_b32 v35, 0
    v_mov_b32 v36, 0x3f803f80
    v_mov_b32 v37, 0x3e803e80
    v_cndmask_b32 v48, v35, v36, vcc
    v_cndmask_b32 v49, v35, v36, vcc
    v_cndmask_b32 v50, v35, v37, vcc
    v_cndmask_b32 v51, v35, v37, vcc
    {lab}:
    """)
    a(f"""
    s_lshl_b32 s19, s16, 13
    s_lshl_b32 s20, s17, 11
    s_add_u32 s19, s19, s20
    s_add_u32 s25, s19, {WS_MB1:#x}
    s_add_u32 s26, s25, 0x40000
    s_add_u32 s32, s19, {WS_VF:#x}              ; Vx
    s_lshl_b32 s19, s17, 14
    s_lshl_b32 s20, s16, 6
    s_add_u32 s19, s19, s20
    s_add_u32 s27, s19, {WS_MB1:#x}
    s_lshl_b32 s19, s16, 13
    s_lshr_b32 s20, s17, 1
    s_lshl_b32 s20, s20, 12
    s_add_u32 s19, s19, s20
    s_and_b32 s20, s17, 1
    s_lshl_b32 s20, s20, 7
    s_add_u32 s19, s19, s20
    s_add_u32 s31, s19, {WS_KF:#x}              ; Kx
    s_lshl_b32 s19, s16, 12
    s_lshl_b32 s20, s17, 10
    s_add_u32 s19, s19, s20
    s_add_u32 s33, s19, {WS_KM:#x}              ; k/v export
    s_mov_b32 s34, 0x0000ffff
    s_mov_b32 s35, 0x0000ffff
    s_mov_b32 s64, {C_SCALE:#x}
    """)
    def mailbox_init():
        M1 = 20
        for i in range(4):
            a(f"v_mov_b32 v{M1+i}, -1")
        for so in (25, 26):
            for i in range(2):
                T.vmop(f"buffer_store_dwordx4 v[{M1}:{M1+3}], v{LANE16}, s[8:11], s{so} offen offset:{i*1024} {SC}")
        for r in range(1, 4):
            a(f"s_mov_b32 s19, {WS_MB2 + r*8192:#x}")
            T.vmop(f"buffer_store_dword v{M1}, v{PUB}, s[8:11], s19 offen {SC}")

    a(f"v_bfe_u32 v31, v{L}, 2, 1")
    a(f"v_cmp_ne_u32 vcc, 0, v31")
    nxt = DEPTH
    pub = False
    NU = len(UNITS)
    for i in range(NU):
        if i % 2 == 0:
            sst()
        consume(i)
        if not pub and "m0" not in T.vm:
            pub = True
            a(f"""
            v_mov_b32_dpp v35, v34 quad_perm:[1,0,3,2] row_mask:0xf bank_mask:0xf
            v_lshl_or_b32 v34, v35, 16, v34
            s_mov_b32 s19, {WS_MB2:#x}
            """)
            T.vmop(f"buffer_store_dword v34, v{PUB}, s[8:11], s19 offen {SC}", "pub")
        if hook:
            hook(i, T, pub and "pub" not in T.vm and UNITS[i][0] != "o")
        if i == 0:
            assert not pub
            mailbox_init()
        if nxt < NU:
            issue(nxt)
            nxt += 1
    assert pub and nxt == NU
    a("s_waitcnt lgkmcnt(0)")


def gen_prefetch0(a, ldsc="", T=None):
    for x in (f"buffer_load_dwordx4 v[{KXN}:{KXN+3}], v{KXA}, s[8:11], s31 offen {ldsc}",
              f"buffer_load_dwordx4 v[{KXN+4}:{KXN+7}], v{KXA}, s[8:11], s31 offen offset:2048 {ldsc}",
              f"buffer_load_dwordx4 v[{VXN}:{VXN+3}], v{LANE16}, s[8:11], s32 offen {ldsc}",
              f"buffer_load_dwordx4 v[{VXN+4}:{VXN+7}], v{LANE16}, s[8:11], s32 offen offset:1024 {ldsc}"):
        if T:
            T.vmop(x)
        else:
            a(x)


def gen_kvwait(a, lab, fail, t0, t1):
    a(f"""
    v_lshrrev_b32 v{t0}, 2, v{LANE16}
    v_and_b32 v{t0}, 63, v{t0}
    s_mov_b32 s21, 0
    {lab}:
    buffer_load_dword v{t1}, v{t0}, s[8:11], s29 offen sc1
    s_add_u32 s21, s21, 1
    s_cmp_gt_u32 s21, {TIMEOUT}
    s_cbranch_scc1 {fail}
    s_waitcnt vmcnt(0)
    {lab}_chk:
    v_min_u32_dpp v{t1}, v{t1}, v{t1} row_ror:8 row_mask:0xf bank_mask:0xf
    v_min_u32_dpp v{t1}, v{t1}, v{t1} row_ror:4 row_mask:0xf bank_mask:0xf
    v_min_u32_dpp v{t1}, v{t1}, v{t1} row_ror:2 row_mask:0xf bank_mask:0xf
    v_min_u32_dpp v{t1}, v{t1}, v{t1} row_ror:1 row_mask:0xf bank_mask:0xf
    v_readfirstlane_b32 s37, v{t1}
    s_lshl_b32 s37, s37, 2
    s_cmp_ge_u32 s19, s37
    s_cbranch_scc1 {lab}
    s_cmp_ge_u32 s37, 64
    s_cselect_b32 s37, 1000, s37
    """)


def gen_loop(a, opt, pfx="C"):
    D1 = opt.get("d1", 4)
    D2 = opt.get("d2", 4)
    NSTEP = opt.get("nstep", 64)
    SC = opt.get("sc", "")
    XSC = opt.get("xsc", "")
    ST = opt.get("stamps", 0)
    o = lambda k, d: opt.get(k, d)
    T = Track(a)

    sq = [0, 1, 2, 3, 11, 4, 5, 6, 7, 8, 9, 10]
    def stamp(i):
        if ST == 1:
            a(f"s_memtime s[{70+2*i}:{71+2*i}]")

    n2 = [0]
    def stampn(mode):
        if ST == mode:
            i = sq[n2[0]]
            n2[0] += 1
            a(f"s_memtime s[{70+2*i}:{71+2*i}]")

    def smf(d, areg, b):
        a(f"v_smfmac_f32_16x16x64_bf16 v[{d}:{d+3}], v[{areg}:{areg+3}], {b}, v{IDX}")

    def vwin(r):
        return f"v[{r}:{r+7}]"

    def ldwin(r, blk, t, tag, half=False):
        of = lds_frag_off(blk, t)
        T.dsop(f"ds_read_b128 v[{r}:{r+3}], v{WL} offset:{of}", tag)
        if not half:
            T.dsop(f"ds_read_b128 v[{r+4}:{r+7}], v{WL} offset:{of+1024}", tag)

    def zero(r, n):
        for i in range(0, n, 2):
            a(f"v_mov_b64 v[{r+i}:{r+i+1}], 0")

    def nops(n):
        for _ in range(n):
            a("s_nop 0")

    ool = []

    def pl(r, so):
        a(f"buffer_load_dwordx4 v[{r}:{r+3}], v{LANE16}, s[8:11], s{so} offen sc1")
        if so == 22:
            a(f"buffer_load_dwordx4 v[{r+4}:{r+7}], v{LANE16}, s[8:11], s30 offen sc1")
        else:
            a(f"buffer_load_dwordx4 v[{r+4}:{r+7}], v{LANE16}, s[8:11], s{so} offen offset:1024 sc1")

    def poll(name, r, so, work, pre, gap, depth, spec, undo):
        work = list(work)
        def run(n):
            for _ in range(n):
                if work:
                    work.pop(0)()
                else:
                    a("s_nop 0")
        run(pre)
        for d in range(depth):
            pl(r, so)
            run(gap if d < depth - 1 else len(work))
        a(f"""
        s_waitcnt lgkmcnt(0)
        {pfx}_{name}:
        s_waitcnt vmcnt({2*(depth-1)})
        v_max3_u32 v{MISC}, v{r}, v{r+1}, v{r+2}
        v_max3_u32 v{MISC+1}, v{r+3}, v{r+4}, v{r+5}
        v_max3_u32 v{MISC}, v{MISC}, v{r+6}, v{r+7}
        """)
        T.reset()
        spec(0)
        a(f"v_max_u32 v{MISC}, v{MISC}, v{MISC+1}")
        a(f"v_cmp_eq_u32 vcc, -1, v{MISC}")
        spec(1)
        a(f"s_cbranch_vccnz {pfx}_{name}_re")

        def re():
            a(f"{pfx}_{name}_re:")
            a("s_mov_b64 exec, vcc")
            pl(r, so)
            a(f"""
            s_mov_b64 exec, -1
            s_add_u32 s21, s21, 1
            s_cmp_gt_u32 s21, {TIMEOUT}
            s_cbranch_scc1 {pfx}_fail
            s_nop 2
            """)
            undo()
            a(f"s_branch {pfx}_{name}")
        ool.append(re)

    W1 = {(("q", 0), 0): MA + 8, (("q", 0), 1): MA + 16, (("q", 1), 0): MA + 24, (("q", 1), 1): VXN + 4,
          (("k", 0), 0): KXN, (("k", 0), 1): X0, (("q", 6), 0): X1}
    W2 = {(("q", 6), 1): (X2,), (("q", 7), 0): (X0,), (("q", 7), 1): (MA,),
          (("k", 5), 0): (X1,), (("k", 5), 1): (MA,), (("v", 5), 0): (X2,), (("v", 5), 1): (A1,)}
    SEL = A2
    QB = X0
    S = X1

    def I(x):
        return lambda: a(x)

    def idle1():
        w = [I(f"ds_read_b128 v[{SEL}:{SEL+3}], v{LANE16} offset:{L_FREE}")]
        for i in range(0, 8, 2):
            w.append(I(f"v_mov_b64 v[{MA+i}:{MA+i+1}], -1"))
        w.append(I(f"v_mov_b64 v[{P}:{P+1}], -1"))
        w.append(I(f"v_mov_b64 v[{P+2}:{P+3}], -1"))
        w += [I(x) for x in f"""s_add_u32 s19, s18, 1
        s_and_b32 s19, s19, 3
        s_lshl_b32 s23, s19, 13
        s_add_u32 s23, s23, {WS_MB2:#x}
        s_lshl_b32 s19, s17, 10
        s_add_u32 s22, s23, s19
        s_add_u32 s30, s22, 0x1000""".split("\n")]
        for (blk, t), r in W1.items():
            if r == KXN:
                for i in range(0, 8, 2):
                    w.append(I(f"v_mov_b64 v[{KX+i}:{KX+i+1}], v[{KXN+i}:{KXN+i+1}]"))
            if r != VXN + 4:
                of = lds_frag_off(blk, t)
                w.append(I(f"ds_read_b128 v[{r}:{r+3}], v{WL} offset:{of}"))
                w.append(I(f"ds_read_b128 v[{r+4}:{r+7}], v{WL} offset:{of+1024}"))
        for t in range(2):
            w.append(I(f"v_mov_b64 v[{PVB+8*t}:{PVB+8*t+1}], v[{VXN+4*t}:{VXN+4*t+1}]"))
            w.append(I(f"v_mov_b64 v[{PVB+8*t+4}:{PVB+8*t+5}], v[{VXN+4*t+2}:{VXN+4*t+3}]"))
        w.append(I(f"ds_read_b128 v[{VXN+4}:{VXN+7}], v{WL} offset:{lds_frag_off(('q', 1), 1)}"))
        return w

    def idle2():
        w = [I(f"v_mov_b64 v[{A1+i}:{A1+i+1}], 0") for i in range(0, 16, 2)]
        w += [I(x) for x in f"""s_add_u32 s19, s18, 3
        s_and_b32 s19, s19, 3
        s_lshl_b32 s24, s19, 13
        s_add_u32 s24, s24, {WS_MB2:#x}
        s_add_u32 s31, s31, 0x40000
        s_add_u32 s32, s32, 0x40000
        s_mov_b32 s21, 1""".split("\n")]
        return w

    a("s_mov_b32 s18, -1")
    zero(PVB, 16)
    for fn in idle1():
        fn()
    a("s_mov_b32 s18, 0")
    a("s_waitcnt lgkmcnt(0)")
    if ST:
        for i in range(40, 56):
            a(f"s_mov_b32 s{i}, 0")
        for i in range(12):
            a(f"s_mov_b32 s{70+2*i}, 0")
        a("s_mov_b32 s56, 0")
    a(f"{pfx}_step:")
    FUSED = o("fused", 0)
    if o("tl", 0) == 2:
        a(f"""
        s_memrealtime s[98:99]
        s_lshl_b32 s19, s18, 2
        s_lshl_b32 s20, s16, 10
        s_add_u32 s19, s19, s20
        s_lshl_b32 s20, s17, 8
        s_add_u32 s19, s19, s20
        s_add_u32 s19, s19, {WS_DBG + 0x10000:#x}
        s_waitcnt lgkmcnt(0)
        v_mov_b32 v{MISC+2}, s98
        s_mov_b64 exec, 1
        buffer_store_dword v{MISC+2}, v{LANE16}, s[8:11], s19 offen
        s_mov_b64 exec, -1
        """)
    if FUSED:
        a(f"""
        s_add_u32 s19, s18, 1
        s_cmp_ge_u32 s19, s37
        s_cbranch_scc1 {pfx}_kvw
        {pfx}_kvok:
        """)

        def kvw():
            a(f"{pfx}_kvw:")
            gen_kvwait(a, f"{pfx}_kvl", f"{pfx}_fail", MISC + 2, MISC + 3)
            a(f"s_branch {pfx}_kvok")
        ool.append(kvw)
    w2 = idle2()
    if ST:
        def acc():
            a("s_waitcnt lgkmcnt(0)")
            lab = a.uid("C_st")
            a("s_cmp_lt_u32 s18, 2")
            a(f"s_cbranch_scc1 {lab}")
            for i in range(1, 11):
                a(f"s_sub_u32 s19, s{70+2*sq[i+1]}, s{70+2*sq[i]}")
                a(f"s_add_u32 s{40+i}, s{40+i}, s19")
            a("s_sub_u32 s19, s72, s56")
            a("s_add_u32 s40, s40, s19")
            a("s_add_u32 s53, s53, s57")
            a(f"{lab}:")
            a("s_mov_b32 s56, s90")
        a("s_mov_b32 s57, s21")
        w2.append(acc)

    def gemv(kind, j, t):
        blk = (kind, j)
        acc = {"q": A1, "k": A2, "v": A3}[kind] + 4 * t
        tags = []
        if j >= 2:
            tags.append(f"ma{j}")
        if (blk, t) in W1:
            b = vwin(W1[(blk, t)])
        elif (blk, t) in W2:
            tags.append(f"w2{kind}{j}{t}")
            b = vwin(W2[(blk, t)][0])
        else:
            b = wop(blk, t)
        T.wait_ds(*tags)
        smf(acc, MA + 4 * j, b)

    own = [(0, 0), (0, 1), (1, 0), (1, 1)]
    rest = [(j, t) for t in range(2) for j in range(2, 8)]
    seq = [(k, j, t) for k in "qkv" for j, t in own] + [(k, j, t) for k in "qkv" for j, t in rest]
    acts = {i: [] for i in range(0, 50)}

    def at(slot, fn):
        acts[slot].append(fn if callable(fn) else (lambda s=fn: a(s)))

    if not o("nopf", 0):
        at(2, f"buffer_load_dwordx4 v[{VXN}:{VXN+3}], v{LANE16}, s[8:11], s32 offen {XSC}")
        at(5, f"buffer_load_dwordx4 v[{VXN+4}:{VXN+7}], v{LANE16}, s[8:11], s32 offen offset:1024 {XSC}")
        at(7, f"buffer_load_dwordx4 v[{KXN}:{KXN+3}], v{KXA}, s[8:11], s31 offen {XSC}")
        at(9, f"buffer_load_dwordx4 v[{KXN+4}:{KXN+7}], v{KXA}, s[8:11], s31 offen offset:2048 {XSC}")
    at(11, f"buffer_store_dwordx4 v[{P}:{P+3}], v{LANE16}, s[8:11], s26 offen {SC}")
    at(14, f"buffer_store_dwordx4 v[{P}:{P+3}], v{LANE16}, s[8:11], s26 offen offset:1024 {SC}")
    at(3, f"buffer_store_dword v{P}, v{PUB}, s[8:11], s24 offen {SC}")
    for i in range(4):
        at(3 + i, lambda i=i: zero(A3 + 2 * i, 2))
    if FUSED:
        at(8, f"v_mov_b32 v{MISC+2}, s18")
        at(10, "s_mov_b64 exec, 1")
        at(10, f"buffer_store_dword v{MISC+2}, v{LANE16}, s[8:11], s28 offen sc1")
        at(10, "s_mov_b64 exec, -1")
    at(16, f"s_waitcnt vmcnt({3 if o('nopf', 0) else 7 + FUSED})")
    b1 = o("b1", 7)

    def bar(tag, st):
        T.wait_ds(tag)
        a(f"s_barrier ; bar_{tag}")
        stamp(st)

    at(b1, lambda: bar("mw", 2))
    for j in range(2, 8):
        at(b1 + j - 2, lambda j=j: T.dsop(
            f"ds_read_b128 v[{MA+4*j}:{MA+4*j+3}], v{MR1+(j>>1)-1} offset:{(j&1)*1024}", f"ma{j}"))
    at(24, lambda: stamp(3))
    b2 = o("b2", 31)

    def ldhalf(blk, t, hf):
        r = W2[(blk, t)][0] + 4 * hf
        T.dsop(f"ds_read_b128 v[{r}:{r+3}], v{WL} offset:{lds_frag_off(blk, t) + 1024*hf}", f"w2{blk[0]}{blk[1]}{t}")

    for blk, t, sl in ((("q", 7), 0, 12), (("q", 6), 1, 15), (("q", 7), 1, 17), (("k", 5), 0, 19), (("k", 5), 1, 25),
                       (("v", 5), 0, 28), (("v", 5), 1, b2 + 2)):
        for hf in range(2):
            at(sl + hf, lambda blk=blk, t=t, hf=hf: ldhalf(blk, t, hf))
    at(21, lambda: nops(2))
    at(21, f"v_add_f32 v{A1}, v{A1}, v{A1+2}")
    at(22, f"v_add_f32 v{A1+1}, v{A1+1}, v{A1+3}")
    at(23, f"v_cvt_pk_bf16_f32 v{A1+2}, v{A1}, v{A1+1}")
    at(24, lambda: nops(3))
    at(25, lambda: nops(2))
    at(26, f"v_add_f32 v{A1+4}, v{A1+4}, v{A1+6}")
    at(26, f"v_add_f32 v{A1+5}, v{A1+5}, v{A1+7}")
    at(26, f"v_cvt_pk_bf16_f32 v{A1+3}, v{A1+4}, v{A1+5}")
    at(27, lambda: T.dsop(f"ds_write_b64 v{QW}, v[{A1+2}:{A1+3}] offset:{L_KL-L_QL}", "qw"))
    at(b2, lambda: bar("qw", 11))
    for i, sl in enumerate((0, 0, 1, 1)):
        at(b2 + sl, lambda i=i: T.dsop(f"ds_read_b64_tr_b16 v[{QB+2*i}:{QB+2*i+1}], v{TG} offset:{i*1024}", f"qb{i>>1}"))
    sx = o("sx", 35)

    def s_x(i):
        T.wait_ds(f"qb{i}")
        c = "0" if i == 0 else f"v[{S}:{S+3}]"
        a(f"v_mfma_f32_16x16x32_bf16 v[{S}:{S+3}], v[{KX+4*i}:{KX+4*i+3}], v[{QB+4*i}:{QB+4*i+3}], {c}")

    def presum(d, src):
        return [f"v_mov_b32_dpp v{d}, v{src} quad_perm:[0,1,0,1] row_mask:0xf bank_mask:0xf",
                f"v_mov_b32_dpp v{d+1}, v{src+1} quad_perm:[0,1,0,1] row_mask:0xf bank_mask:0xf",
                f"v_add_f32_dpp v{d}, v{src+2}, v{d} quad_perm:[2,3,2,3] row_mask:0xf bank_mask:0xf",
                f"v_add_f32_dpp v{d+1}, v{src+3}, v{d+1} quad_perm:[2,3,2,3] row_mask:0xf bank_mask:0xf"]

    at(33, f"v_add_f32 v{A2}, v{A2}, v{A2+2}")
    at(34, f"v_add_f32 v{A2+1}, v{A2+1}, v{A2+3}")
    at(sx, lambda: s_x(0))
    at(sx, f"v_cvt_pk_bf16_f32 v{A2}, v{A2}, v{A2+1}")
    at(sx, lambda: s_x(1))
    at(sx, lambda: nops(2))
    at(36, lambda: stamp(4))
    ps = presum(S + 4, S)
    at(36, lambda: nops(3))
    at(37, lambda: nops(1))
    at(37, ps[0])
    at(37, ps[1])
    at(38, f"v_add_f32 v{A2+4}, v{A2+4}, v{A2+6}")
    at(38, f"v_add_f32 v{A2+5}, v{A2+5}, v{A2+7}")
    at(38, f"v_cvt_pk_bf16_f32 v{A2+1}, v{A2+4}, v{A2+5}")
    at(39, lambda: T.dsop(f"ds_write_b64 v{KW}, v[{A2}:{A2+1}]", "kw"))
    at(39, ps[2])
    at(39, ps[3])
    at(40, lambda: T.dsop(f"ds_write_b64 v{SPW}, v[{S+4}:{S+5}]", "kw"))
    KA = MA
    b3 = o("b3", 44)
    at(b3, lambda: bar("kw", 5))
    for i, sl in enumerate((0, 0, 1, 1)):
        at(b3 + sl, lambda i=i: T.dsop(f"ds_read_b64_tr_b16 v[{KA+2*i}:{KA+2*i+1}], v{TG} offset:{i*1024+512}", f"ka{i>>1}"))
    at(b3 + 2, lambda: T.dsop(f"ds_read2_b64 v[{S}:{S+3}], v{SPR} offset0:0 offset1:32", "sr"))
    SM = P
    TM = S + 4
    M0, M1 = S + 6, S + 7
    WO = {(2, 0): MA, (2, 1): MA + 16, (3, 0): MA + 24, (3, 1): A1}
    ONES = A1
    PVA = [MA + 16, A2 + 4, MISC]
    PA = SM
    WA = [KX, KX + 4, MA + 8, MA + 12]

    def ldwo(p, t, hf):
        r = WO[(p, t)] + 4 * hf
        T.dsop(f"ds_read_b128 v[{r}:{r+3}], v{WL} offset:{lds_frag_off(('o', (p, 1)), t) + 1024*hf}", f"wo{p}{t}")

    def ldc(r, tag, off=0):
        T.dsop(f"ds_read_b128 v[{r}:{r+3}], v{CONST} offset:{off}", tag)

    def s_m(j):
        T.wait_ds(f"ka{j}")
        c = "0" if j == 0 else f"v[{SM}:{SM+3}]"
        a(f"v_mfma_f32_16x16x32_bf16 v[{SM}:{SM+3}], v[{KA+4*j}:{KA+4*j+3}], v[{QB+4*j}:{QB+4*j+3}], {c}")

    def vpost(t):
        d = A3 + 4 * t
        return [f"v_add_f32 v{d}, v{d}, v{d+2}", f"v_add_f32 v{d+1}, v{d+1}, v{d+3}",
                f"v_cvt_pk_bf16_f32 v{A2+2+t}, v{d}, v{d+1}",
                f"v_cndmask_b32 v{PVB+8*t+2}, 0, v{A2+2+t}, s[34:35]",
                f"v_cndmask_b32 v{PVB+8*t+6}, v{A2+2+t}, 0, s[34:35]"]

    at(41, lambda: ldc(PVA[2], "pva"))
    at(42, lambda: ldc(PVA[1], "pva"))
    for i in range(4):
        at(40 + i, lambda i=i: zero(KX + 2 * i, 2))
    v0, v1 = vpost(0), vpost(1)
    at(45, v0[0])
    at(46, v0[1])
    at(47, lambda: ldc(ONES, "pva", 16))
    at(47, v0[2])
    at(48, lambda: ldc(ONES + 4, "pva", 16))
    at(48, v0[3])
    at(48, lambda: s_m(0))
    at(48, lambda: T.wait_ds("sr"))
    at(48, v0[4])
    at(48, f"v_max3_f32 v{M0}, v{S}, v{S+1}, v{S+2}")
    at(48, lambda: s_m(1))
    at(48, lambda: stamp(6))
    pm = presum(TM, SM)
    tail = [
        lambda: ldc(PVA[0], "pva"),
        f"v_max_f32 v{M0}, v{M0}, v{S+3}",
        v1[0], v1[1],
        f"v_max_f32_dpp v{M0}, v{M0}, v{M0} quad_perm:[2,3,0,1] row_mask:0xf bank_mask:0xf",
        v1[2],
        "s_mov_b32 s19, s27",
        "s_xor_b32 s27, s27, 0x40000",
        pm[0], pm[1], v1[3], pm[2], pm[3],
        f"v_max3_f32 v{M1}, v{M0}, v{TM}, v{TM+1}",
        f"v_max3_f32 v{M0}, v{M0}, v{TM}, v{TM+1}",
        v1[4],
        f"s_cmp_eq_u32 s18, {NSTEP-1}",
        f"v_permlane32_swap_b32 v{M0}, v{M1}",
        f"v_max_f32 v{SM}, v{M0}, v{M1}",
        f"v_max_f32 v{M0}, v{M0}, v{M1}",
        (f"buffer_store_dwordx4 v[{A2}:{A2+3}], v{LANE16}, s[8:11], s33 offen {XSC}" if not o("noex", 0) else "s_nop 0"),
        f"s_cbranch_scc1 {pfx}_done",
        f"v_permlane16_swap_b32 v{M0}, v{SM}",
        f"v_max_f32 v{M0}, v{M0}, v{SM}",
        f"v_mul_f32 v{M0}, s64, v{M0}",
    ]
    for x in tail:
        at(48, x)
    NSP = o("nsp", 2)

    def spec2(i):
        if i == 0:
            T.dsop(f"ds_write_b128 v{MW}, v[{MA}:{MA+3}]", "mw")
            if NSP:
                gemv(*seq[0])
            T.dsop(f"ds_write_b128 v{MW}, v[{MA+4}:{MA+7}] offset:1024", "mw")
        elif NSP:
            gemv(*seq[1])

    poll("p2", MA, 22, w2, o("pre2", 0), o("gap2", 16), o("dp2", 2), spec2, lambda: zero(A1, 8) if NSP else None)
    stamp(1)
    for i, (k, j, t) in enumerate(seq):
        if i >= NSP:
            gemv(k, j, t)
        for fn in acts[i + 1]:
            fn()
    sv = [S, S + 1, S + 2, S + 3, TM, TM + 1]
    for r in sv:
        a(f"v_fma_f32 v{r}, v{r}, s64, -v{M0}")
    for r in sv:
        a(f"v_exp_f32 v{r}, v{r}")
    a(f"v_cvt_pk_bf16_f32 v{PA}, v{S}, v{S+1}")
    a(f"v_cvt_pk_bf16_f32 v{PA+2}, v{S+2}, v{S+3}")
    a(f"v_cvt_pk_bf16_f32 v{PA+1}, v{TM}, v{TM+1}")
    a(f"v_cvt_pk_bf16_f32 v{PA+3}, v{TM}, v{TM+1}")
    T.wait_ds("pva")
    smf(PVA[0], PA, vwin(ONES))
    stampn(2)
    stamp(7)
    ldc(WA[3], "wa")
    a(f"v_mov_b64 v[{A3}:{A3+1}], -1")
    smf(PVA[1], PA, vwin(PVB))
    ldc(WA[2], "wa")
    a(f"v_mov_b64 v[{A3+2}:{A3+3}], -1")
    smf(PVA[2], PA, vwin(PVB + 8))
    nops(2)
    Z = PVA[0]
    a(f"v_add_f32 v{Z}, v{Z}, v{Z+2}")
    a(f"v_add_f32 v{Z+1}, v{Z+1}, v{Z+3}")
    a(f"v_rcp_f32 v{Z}, v{Z}")
    a(f"v_rcp_f32 v{Z+1}, v{Z+1}")
    OA = [X0, X0 + 4, X1, X1 + 4]
    stampn(2)

    def ldoa(j, u):
        T.dsop(f"ds_read_b64_tr_b16 v[{OA[j]+2*u}:{OA[j]+2*u+1}], v{TR+j} offset:{u*512}", f"oa{j}")

    for t in range(2):
        d = PVA[1 + t]
        a(f"v_add_f32 v{d}, v{d}, v{d+2}")
        a(f"v_add_f32 v{d+1}, v{d+1}, v{d+3}")
        a(f"v_mul_f32 v{d}, v{d}, v{Z}")
        a(f"v_mul_f32 v{d+1}, v{d+1}, v{Z+1}")
        a(f"v_cvt_pk_bf16_f32 v{d+2}, v{d}, v{d+1}")
        a(f"v_cvt_pk_bf16_f32 v{d+3}, v{d}, v{d+1}")
        T.dsop(f"ds_write_b64 v{QW}, v[{d+2}:{d+3}] offset:{512*t}", "ow")
    ldoa(0, 0)
    ldoa(0, 1)
    stampn(2)
    for i in range(4, 8, 2):
        a(f"v_mov_b64 v[{A3+i}:{A3+i+1}], -1")
    stampn(2)
    T.wait_ds("ow")
    a("s_barrier ; bar_ow")
    stampn(2)
    stamp(8)

    def wo(p, j):
        tags = [f"oa{j}"]
        if p >= 2 and j >= 2:
            tags.append(f"wo{p}{j-2}")
            b = vwin(WO[(p, j - 2)])
        else:
            b = wop(("o", (p, j >> 1)), j & 1)
        T.wait_ds(*tags)
        smf(WA[p], OA[j], b)

    def epi_c(p, i):
        d = WA[p]
        a(f"v_cvt_pk_bf16_f32 v{d+i}, v{d+2*i}, v{d+2*i+1}")

    def epi_s(p):
        d = WA[p]
        a(f"buffer_store_dwordx2 v[{d}:{d+1}], v{PS}, s[8:11], s19 offen {SC}")
        if p < 3:
            a("s_add_u32 s19, s19, 0x10000")

    ldoa(1, 0)
    ldoa(1, 1)
    wo(0, 0)
    stampn(2)
    ldoa(2, 0)
    wo(1, 0)
    ldoa(2, 1)
    wo(2, 0)
    ldoa(3, 0)
    wo(3, 0)
    ldoa(3, 1)
    stampn(2)
    lw = iter([(2, 0, 0), (2, 0, 1), (2, 1, 0), (2, 1, 1), (3, 0, 0), (3, 0, 1), (3, 1, 0), (3, 1, 1)])

    def nlw():
        x = next(lw, None)
        if x:
            ldwo(*x)
        else:
            nops(1)

    for p in range(4):
        wo(p, 1)
        nlw()
        if p:
            nops(2)
        wo(p, 2)
        nlw()
        if p:
            epi_c(p - 1, 0)
            epi_c(p - 1, 1)
        wo(p, 3)
        stampn(2)
        if p:
            epi_s(p - 1)
        else:
            nlw()
            nlw()
    a("""
    s_add_u32 s33, s33, 0x20000
    """)
    if ST:
        a("s_add_u32 s52, s52, s21")
    a("s_mov_b32 s21, 1")
    epi_c(3, 0)
    epi_c(3, 1)
    epi_s(3)
    stampn(2)
    stamp(9)
    R = A1
    a(f"s_waitcnt vmcnt({4 if o('noex', 0) else 5})")

    def spec1(i):
        c = "0" if i == 0 else f"v[{R}:{R+3}]"
        a(f"v_mfma_f32_16x16x32_bf16 v[{R}:{R+3}], v[{A3+4*i}:{A3+4*i+3}], v[{SEL}:{SEL+3}], {c}")
        if i == 1:
            nops(5)

    poll("p1", A3, 25, idle1(), o("pre1", 0), o("gap1", 16), o("dp1", 2), spec1, lambda: None)
    a(f"""
    s_xor_b32 s25, s25, 0x40000
    s_xor_b32 s26, s26, 0x40000
    v_permlane32_swap_b32 v{R}, v{R+2}
    v_permlane32_swap_b32 v{R+1}, v{R+3}
    v_add_f32 v{R}, v{R}, v{R+2}
    v_add_f32 v{R+1}, v{R+1}, v{R+3}
    s_add_u32 s18, s18, 1
    v_permlane16_swap_b32 v{R}, v{R+1}
    v_add_f32 v{R}, v{R}, v{R+1}
    v_mov_b32_dpp v{R+1}, v{R} quad_perm:[1,0,3,2] row_mask:0xf bank_mask:0xf
    v_cvt_pk_bf16_f32 v{MISC}, v{R}, v{R+1}
    buffer_store_dword v{MISC}, v{PUB}, s[8:11], s23 offen {SC}
    """)
    T.reset()
    stamp(10)
    a(f"s_branch {pfx}_step")
    for fn in ool:
        fn()


def hoist_waits(lines):
    out = list(lines)
    mn = lambda i: out[i].split()[0] if out[i].strip() else ""
    ism = lambda m: m.startswith("v_mfma") or m.startswith("v_smfmac")
    for i in range(len(out) - 1):
        if mn(i) == "s_waitcnt" and "lgkmcnt" in out[i] and ism(mn(i + 1)):
            j = i
            while j > 0 and mn(j - 1).startswith("v_") and not ism(mn(j - 1)):
                j -= 1
            if j < i and i - j <= 3:
                out.insert(j, out.pop(i))
    return out


def gen_chain_kernel(a, name, opt):
    ST = opt.get("stamps", 0)
    kernel_header(a, name)
    a(f"""
    s_memrealtime s[66:67]
    s_cmp_ge_u32 s2, 256
    s_cbranch_scc1 C_exit
    s_load_dwordx2 s[4:5], s[0:1], {ARG_DBG}
    s_load_dwordx2 s[6:7], s[0:1], {ARG_WS}
    s_getreg_b32 s3, hwreg(HW_REG_XCC_ID)
    s_and_b32 s3, s3, 0xf
    v_lshrrev_b32 v2, 6, v0
    v_readfirstlane_b32 s17, v2
    s_waitcnt lgkmcnt(0)
    s_mov_b32 s65, s66
    """)
    make_srd(a, 8, 6, WS_SIZE)
    make_srd(a, 12, 4, 256)
    a(f"""
    s_cmp_lg_u32 s3, 0
    s_cbranch_scc1 C_exit
    v_mov_b32 v3, {L_KL:#x}
    v_mov_b32 v4, 1
    v_mov_b32 v5, 0
    s_cmp_lg_u32 s17, 0
    s_cbranch_scc1 C_noticket
    s_mov_b64 exec, 1
    buffer_atomic_add v4, v5, s[12:15], 0 offen sc0 sc1
    s_waitcnt vmcnt(0)
    ds_write_b32 v3, v4
    s_mov_b64 exec, -1
    s_waitcnt lgkmcnt(0)
    C_noticket:
    s_barrier
    ds_read_b32 v4, v3
    s_waitcnt lgkmcnt(0)
    v_readfirstlane_b32 s16, v4
    s_cmp_ge_u32 s16, 32
    s_cbranch_scc1 C_exit
    """)
    gen_setup(a, opt)
    gen_prefetch0(a)
    a(f"""
    s_waitcnt vmcnt(0)
    s_barrier
    s_cmp_lg_u32 s17, 0
    s_cbranch_scc1 C_nobar
    v_mov_b32 v32, 4
    v_mov_b32 v33, 1
    s_mov_b64 exec, 1
    buffer_atomic_add v33, v32, s[12:15], 0 offen sc1
    s_mov_b32 s21, 0
    C_barpoll:
    buffer_load_dword v33, v32, s[12:15], 0 offen sc1
    s_waitcnt vmcnt(0)
    v_readfirstlane_b32 s19, v33
    s_add_u32 s21, s21, 1
    s_cmp_gt_u32 s21, {TIMEOUT}
    s_cbranch_scc1 C_fail
    s_cmp_lt_u32 s19, 32
    s_cbranch_scc1 C_barpoll
    s_mov_b64 exec, -1
    C_nobar:
    s_barrier
    s_memrealtime s[68:69]
    s_memtime s[28:29]
    """)
    gen_loop(a, opt)
    a(f"""
    C_done:
    s_memrealtime s[30:31]
    s_memtime s[32:33]
    s_waitcnt lgkmcnt(0)
    s_sub_u32 s30, s30, s68
    s_sub_u32 s32, s32, s28
    """)
    if ST:
        a(f"""
        s_lshl_b32 s19, s16, 8
        s_lshl_b32 s20, s17, 6
        s_add_u32 s19, s19, s20
        s_add_u32 s19, s19, {WS_DBG:#x}
        v_mov_b32 v36, 0
        s_mov_b64 exec, 1
        """)
        for i in range(14):
            a(f"v_mov_b32 v32, s{40+i}")
            a(f"buffer_store_dword v32, v36, s[8:11], s19 offen offset:{4*i}")
        a("s_mov_b64 exec, -1")
    a(f"""
    s_cmp_lg_u32 s16, 0
    s_cbranch_scc1 C_exit
    s_cmp_lg_u32 s17, 0
    s_cbranch_scc1 C_exit
    v_mov_b32 v32, s30
    v_mov_b32 v33, s32
    v_mov_b32 v34, s65
    v_mov_b32 v35, s68
    v_mov_b32 v36, 16
    s_mov_b64 exec, 1
    buffer_store_dwordx4 v[32:35], v36, s[12:15], 0 offen
    s_waitcnt vmcnt(0)
    s_endpgm
    C_fail:
    v_mov_b32 v32, 0xdead
    v_mov_b32 v33, 8
    s_mov_b64 exec, 1
    buffer_store_dword v32, v33, s[12:15], 0 offen
    s_waitcnt vmcnt(0)
    C_exit:
    s_endpgm
    """)


if __name__ == "__main__":
    import hazard
    opt = {}
    for kv in sys.argv[2:]:
        k, v = kv.split("=")
        opt[k] = v if k in ("sc", "xsc", "drop") else int(v)
    a = Asm()
    a.raw(f"; @launch kernel=chain_kernel grid=(256,1,1) block=(256,1,1) lds={LDS_BYTES}")
    a.raw('.amdgcn_target "amdgcn-amd-amdhsa--gfx950"')
    a.raw(".text")
    gen_chain_kernel(a, "chain_kernel", opt)
    a.lines = hoist_waits(a.lines)
    a.lines = hazard.fix(a.lines, True)
    if opt.get("drop"):
        import re
        pats = opt["drop"].split(",")
        out, inloop = [], False
        for ln in a.lines:
            if ln.strip() == "C_step:":
                inloop = True
            if ln.strip() == "C_done:":
                inloop = False
            if inloop and any(re.search(p, ln) for p in pats):
                continue
            out.append(ln)
        a.lines = out
    a.raw('.section .rodata,"a"')
    a.raw(".p2align 6")
    a.raw(kernel_desc("chain_kernel", 512, 256))
    open(sys.argv[1], "w").write(a.text())
```

```python
WS_MB1 = 0x0000000
WS_MB2 = 0x0080000
WS_FLAGS = 0x0090000
F_PG = WS_FLAGS
F_LN = WS_FLAGS + 0x1000
F_HP = WS_FLAGS + 0x1200
F_OF = WS_FLAGS + 0x2000
F_G1 = WS_FLAGS + 0x6000
FLAG_BYTES = 0x7000
WS_XN = 0x0100000
WS_KF = 0x0400000
WS_VF = 0x1400000
WS_QF = 0x2400000
WS_KM = 0x3400000
WS_VM = 0x3C00000
WS_OF = 0x4000000
WS_HF = 0x5000000
WS_DBG = 0x6000000
WS_SIZE = 0x10000000

ARG_X, ARG_MEM0, ARG_WQ, ARG_WK, ARG_WV, ARG_WO = 0, 8, 16, 24, 32, 40
ARG_W1, ARG_B1, ARG_W2, ARG_B2 = 64, 72, 80, 88
ARG_OUT, ARG_DBG, ARG_WS = 96, 104, 112
D_MASK = 64
D_LOSE = 96
D_CBAR = 128
D_SLOW = 132
D_READY = 192
D_FAIL = 0
```

```python
import sys, math
sys.path.insert(0, "gen")
from asmlib import *
from layout import *
import hazard, chain4 as ch, workers as wk
from workers import f2u, srd_from_arg, xreduce_add, xreduce_max

TIMEOUT = 400000
L_TK = 0x27000


def tstamp(a, opt, idx, dw=None):
    if opt.get("dbg") and dw is not None:
        lab = a.uid("TD")
        a(f"""
        s_cmp_lg_u32 s17, 0
        s_cbranch_scc1 {lab}
        s_memrealtime s[98:99]
        s_waitcnt lgkmcnt(0)
        s_mov_b64 s[100:101], exec
        s_mov_b64 exec, 1
        v_mov_b32 v254, s98
        v_not_b32 v255, v254
        v_mov_b32 v253, 0
        buffer_atomic_umax v254, v253, s[12:15], 0 offen offset:{dw*8} sc1
        buffer_atomic_umax v255, v253, s[12:15], 0 offen offset:{dw*8+4} sc1
        s_mov_b64 exec, s[100:101]
        {lab}:
        """)
    if not opt.get("tl"):
        return
    lab = a.uid("TS")
    a(f"""
    s_cmp_lg_u32 s17, 0
    s_cbranch_scc1 {lab}
    s_memrealtime s[98:99]
    s_waitcnt lgkmcnt(0)
    s_mov_b64 s[100:101], exec
    s_mov_b64 exec, 1
    v_mov_b32 v254, s98
    v_mov_b32 v255, 0
    buffer_store_dword v254, v255, s[8:11], s97 offen offset:{idx*4}
    s_mov_b64 exec, s[100:101]
    {lab}:
    """)


def poll_ge(a, vaddr, soff, thr, vtmp, sleep=2, x2=False, srd=8):
    lab = a.uid("PL")
    a("s_mov_b32 s21, 0")
    a(f"{lab}:")
    if x2:
        a(f"buffer_load_dwordx2 v[{vtmp}:{vtmp+1}], v{vaddr}, s[{srd}:{srd+3}], {soff} offen sc1")
    else:
        a(f"buffer_load_dword v{vtmp}, v{vaddr}, s[{srd}:{srd+3}], {soff} offen sc1")
    a(f"""
    s_add_u32 s21, s21, 1
    s_cmp_gt_u32 s21, {TIMEOUT}
    s_cbranch_scc1 F_fail
    s_waitcnt vmcnt(0)
    """)
    if x2:
        a(f"v_min_u32 v{vtmp}, v{vtmp}, v{vtmp+1}")
    a(f"""
    v_cmp_gt_u32 vcc, {thr}, v{vtmp}
    s_cbranch_vccz {lab}_ok
    s_sleep {sleep}
    s_branch {lab}
    {lab}_ok:
    """)


def flag_store(a, sval, soff, t0):
    a(f"""
    v_mov_b32 v{t0}, {sval}
    s_mov_b64 exec, 1
    buffer_store_dword v{t0}, v4, s[8:11], {soff} offen sc1
    s_mov_b64 exec, -1
    """)


def wait_ready(a):
    a(f"v_mov_b32 v252, {D_READY}")
    poll_ge(a, 252, 0, 1, 253, sleep=2, srd=12)


def prologue(a, opt):
    a(f"""
    s_cmp_ge_u32 s2, 256
    s_cbranch_scc1 F_exit
    s_load_dwordx2 s[4:5], s[0:1], {ARG_DBG}
    s_load_dwordx2 s[6:7], s[0:1], {ARG_WS}
    s_load_dwordx2 s[20:21], s[0:1], 0
    s_getreg_b32 s3, hwreg(HW_REG_XCC_ID)
    s_and_b32 s3, s3, 7
    v_and_b32 v1, 63, v0
    v_lshrrev_b32 v2, 6, v0
    v_readfirstlane_b32 s17, v2
    v_lshlrev_b32 v4, 4, v1
    s_waitcnt lgkmcnt(0)
    """)
    if opt.get("fakexcc"):
        a(f"s_cmp_lt_u32 s2, {opt['fakexcc']}")
        a("s_cselect_b32 s19, 1, 0")
        a("s_max_u32 s3, s3, s19")
    make_srd(a, 8, 6, WS_SIZE)
    make_srd(a, 12, 4, 256)
    if opt.get("tl"):
        a(f"s_lshl_b32 s97, s2, 7")
        a(f"s_add_u32 s97, s97, {WS_DBG:#x}")
    tstamp(a, opt, 0, 1)
    a(f"""
    s_cmp_lg_u32 s2, 255
    s_cbranch_scc1 F_nozero
    v_lshlrev_b32 v5, 4, v0
    v_mov_b32 v8, 0
    v_mov_b32 v9, 0
    v_mov_b32 v10, 0
    v_mov_b32 v11, 0
    """)
    for i in range(FLAG_BYTES // 4096):
        a(f"s_mov_b32 s19, {WS_FLAGS + i*4096:#x}")
        a(f"buffer_store_dwordx4 v[8:11], v5, s[8:11], s19 offen sc1")
    a(f"""
    F_nozero:
    s_bfe_u32 s16, s2, 0x50003
    s_cmp_lg_u32 s17, 0
    s_cbranch_scc1 F_noclaim
    s_lshl_b32 s19, s3, 2
    v_mov_b32 v5, s19
    s_lshl_b32 s19, 1, s16
    v_mov_b32 v124, s19
    s_mov_b64 exec, 1
    buffer_atomic_or v124, v5, s[12:15], 0 offen offset:{D_MASK} sc0 sc1
    s_mov_b64 exec, -1
    F_noclaim:
    s_lshl_b32 s19, s3, 5
    s_add_u32 s16, s16, s19
    s_mov_b32 s18, 0
    F_dispatch:
    s_cmp_ge_u32 s16, 32
    s_cbranch_scc1 F_worker
    """)


def confirm(a, opt, lds, t0, t1):
    lab = a.uid("CN")
    a(f"""
    s_cmp_lg_u32 s18, 0
    s_cbranch_scc1 {lab}_ok
    v_mov_b32 v{t0}, {lds:#x}
    s_cmp_lg_u32 s17, 0
    s_cbranch_scc1 {lab}_a
    s_mov_b64 exec, 1
    ds_write_b32 v{t0}, v124
    s_mov_b64 exec, -1
    {lab}_a:
    s_waitcnt lgkmcnt(0)
    s_barrier
    ds_read_b32 v{t1}, v{t0}
    s_cmp_lg_u32 s2, 255
    s_cbranch_scc1 {lab}_b
    s_cmp_lg_u32 s17, 0
    s_cbranch_scc1 {lab}_b
    v_mov_b32 v{t0}, {D_READY}
    v_mov_b32 v124, 1
    s_mov_b64 exec, 1
    buffer_store_dword v124, v{t0}, s[12:15], 0 offen sc1
    s_mov_b64 exec, -1
    {lab}_b:
    s_waitcnt lgkmcnt(0)
    v_readfirstlane_b32 s19, v{t1}
    s_bitcmp1_b32 s19, s16
    s_cbranch_scc1 F_loser
    {lab}_ok:
    """)
    if opt.get("tl"):
        a(f"v_mov_b32 v{t0}, s16")
        a(f"v_mov_b32 v{t1}, 0")
        a("s_mov_b64 exec, 1")
        a(f"buffer_store_dword v{t0}, v{t1}, s[8:11], s97 offen offset:124")
        a("s_mov_b64 exec, -1")


def loser(a, opt):
    a(f"""
    F_loser:
    v_mbcnt_lo_u32_b32 v1, -1, 0
    v_mbcnt_hi_u32_b32 v1, -1, v1
    s_lshl_b32 s19, s17, 6
    v_add_u32 v0, s19, v1
    v_lshlrev_b32 v4, 4, v1
    v_mov_b32 v3, {L_TK:#x}
    s_waitcnt vmcnt(0) lgkmcnt(0)
    s_barrier
    s_cmp_lg_u32 s17, 0
    s_cbranch_scc1 F_lwait
    s_lshl_b32 s19, s3, 2
    s_add_u32 s19, s19, {D_LOSE}
    v_mov_b32 v5, s19
    v_mov_b32 v6, 1
    s_mov_b64 exec, 1
    buffer_atomic_add v6, v5, s[12:15], 0 offen sc0 sc1
    s_waitcnt vmcnt(0)
    s_mov_b64 exec, -1
    v_readfirstlane_b32 s16, v6
    v_and_b32 v5, 15, v1
    v_lshlrev_b32 v5, 2, v5
    s_mov_b32 s21, 0
    F_ovf:
    buffer_load_dword v6, v5, s[12:15], 0 offen offset:{D_MASK} sc1
    s_add_u32 s21, s21, 1
    s_cmp_gt_u32 s21, {TIMEOUT}
    s_cbranch_scc1 F_fail
    s_waitcnt vmcnt(0)
    s_mov_b32 s19, 0
    """)
    for x in range(16):
        a(f"v_readlane_b32 s{40+x}, v6, {x}")
    for x in range(8):
        a(f"s_bcnt0_i32_b32 s{56+x}, s{40+x}")
        a(f"s_add_u32 s19, s19, s{48+x}")
        a(f"s_sub_u32 s19, s19, s{56+x}")
    a("""
    s_cmp_lg_u32 s19, 0
    s_cbranch_scc1 F_ovf
    """)
    for x in range(8):
        a(f"s_cmp_eq_u32 s3, {x}")
        a(f"s_cselect_b32 s22, s{40+x}, s22")
    a(f"""
    s_bcnt0_i32_b32 s19, s22
    s_mov_b32 s23, s3
    s_cmp_lt_u32 s16, s19
    s_cbranch_scc1 F_pick
    s_sub_u32 s16, s16, s19
    """)
    for x in range(8):
        a(f"""
        s_max_u32 s19, s{48+x}, s{56+x}
        s_sub_u32 s19, s19, s{56+x}
        s_cmp_gt_u32 s3, {x}
        s_cselect_b32 s19, s19, 0
        s_add_u32 s16, s16, s19
        """)
    for x in range(8):
        a(f"""
        s_max_u32 s20, s{48+x}, s{56+x}
        s_sub_u32 s20, s20, s{48+x}
        s_mov_b32 s19, s{48+x}
        s_mov_b32 s22, s{40+x}
        s_mov_b32 s23, {x}
        s_cmp_lt_u32 s16, s20
        s_cbranch_scc1 F_ovf_done
        s_sub_u32 s16, s16, s20
        """)
    a(f"""
    s_branch F_fail
    F_ovf_done:
    s_add_u32 s16, s16, s19
    s_cmp_lg_u32 s23, 0
    s_cbranch_scc1 F_pick
    v_mov_b32 v5, {D_SLOW}
    v_mov_b32 v6, 1
    s_mov_b64 exec, 1
    buffer_store_dword v6, v5, s[12:15], 0 offen sc1
    s_waitcnt vmcnt(0)
    s_mov_b64 exec, -1
    F_pick:
    s_ff0_i32_b32 s19, s22
    s_bitset1_b32 s22, s19
    s_sub_u32 s16, s16, 1
    s_cbranch_scc0 F_pick
    s_lshl_b32 s23, s23, 5
    s_add_u32 s19, s19, s23
    v_mov_b32 v6, s19
    ds_write_b32 v3, v6
    s_waitcnt lgkmcnt(0)
    F_lwait:
    s_barrier
    ds_read_b32 v6, v3
    s_waitcnt lgkmcnt(0)
    v_readfirstlane_b32 s16, v6
    s_mov_b32 s18, 1
    s_barrier
    s_branch F_dispatch
    """)


def chain_role(a, opt):
    o2 = dict(opt)
    o2["sc"] = "sc1"
    L16 = ch.LANE16
    a(f"""
    s_lshl_b32 s29, s16, 7
    s_add_u32 s29, s29, {F_PG:#x}
    s_lshl_b32 s28, s17, 2
    s_add_u32 s28, s28, s29
    s_add_u32 s28, s28, 96
    """)
    state = {}
    H1, H2, H3 = opt.get("h1", 8), opt.get("h2", 11), opt.get("h3", 14)

    def hook(i, T, arr_ok):
        if i == 0:
            confirm(a, opt, ch.lds_frag_off(("v", 5), 0), 30, 31)
        if arr_ok and not state.get("arr"):
            state["arr"] = 1
            a(f"""
            s_cmp_lg_u32 s17, 0
            s_cbranch_scc1 C_noarr
            v_mov_b32 v32, {D_CBAR}
            v_mov_b32 v33, 1
            s_mov_b64 exec, 1
            buffer_atomic_add v33, v32, s[12:15], 0 offen sc1
            s_mov_b64 exec, -1
            C_noarr:
            """)
        if i == H1:
            a(f"v_mov_b32 v31, {D_READY}")
            T.vmop("buffer_load_dword v30, v31, s[12:15], 0 offen sc1", "rd")
        if i == H2:
            T.wait_vm("rd")
            a("v_readfirstlane_b32 s19, v30")
            a("s_cmp_lg_u32 s19, 0")
            a("s_cbranch_scc1 C_rdok")
            a("s_mov_b64 s[22:23], vcc")
            poll_ge(a, 31, 0, 1, 30, sleep=1, srd=12)
            a("s_mov_b64 vcc, s[22:23]")
            a(f"""
            C_rdok:
            v_lshrrev_b32 v36, 2, v{L16}
            v_and_b32 v36, 63, v36
            """)
            T.vmop("buffer_load_dword v37, v36, s[8:11], s29 offen sc1", "pg")
        if i == H3:
            assert state.get("arr")
            T.wait_vm("pg")
            a("s_mov_b32 s19, 0")
            a("s_mov_b32 s21, 0")
            a("s_branch C_kv0_chk")
            ch.gen_kvwait(a, "C_kv0", "F_fail", 36, 37)
            a(f"v_mov_b32 v31, {D_CBAR}")
            T.vmop("buffer_load_dwordx2 v[46:47], v31, s[12:15], 0 offen sc1", "cb")
            ch.gen_prefetch0(a, "sc1", T)

    ch.gen_setup(a, o2, hook)
    if opt.get("tl"):
        a("v_mov_b32 v40, v254\nv_mov_b32 v41, v255")
        tstamp(a, opt, 1)
        a("v_mov_b32 v254, v40\nv_mov_b32 v255, v41")
        a("v_mov_b32 v41, 0")
        a("s_mov_b64 exec, 1")
        a("s_cmp_lg_u32 s17, 0")
        a("s_cbranch_scc1 C_nost")
        for i in range(9):
            a(f"v_mov_b32 v40, s{66+2*i}")
            a(f"buffer_store_dword v40, v41, s[8:11], s97 offen offset:{32+4*i}")
        a("C_nost:")
        a("s_mov_b64 exec, -1")
    a(f"""
    s_mov_b32 s21, 0
    s_branch C_cbchk
    C_cbl:
    buffer_load_dwordx2 v[46:47], v31, s[12:15], 0 offen sc1
    s_add_u32 s21, s21, 1
    s_cmp_gt_u32 s21, {TIMEOUT}
    s_cbranch_scc1 F_fail
    C_cbchk:
    s_waitcnt vmcnt(0)
    v_readfirstlane_b32 s19, v46
    v_readfirstlane_b32 s20, v47
    s_cmp_lt_u32 s19, 32
    s_cbranch_scc1 C_cbl
    s_barrier
    """)
    if opt.get("tl") or opt.get("dbg"):
        a("v_mov_b32 v40, v254\nv_mov_b32 v41, v255\nv_mov_b32 v42, v253")
        tstamp(a, opt, 2, 2)
        a("s_waitcnt vmcnt(0)")
        a("v_mov_b32 v254, v40\nv_mov_b32 v255, v41\nv_mov_b32 v253, v42")
    a(f"""
    s_cmp_lg_u32 s20, 0
    s_cbranch_scc1 CS_entry
    """)
    for pfx, sc in (("C", ""), ("CS", "sc1")):
        if pfx == "CS":
            a("CS_entry:")
        o3 = dict(opt)
        o3.update(sc=sc, xsc="sc1", fused=1)
        ch.gen_loop(a, o3, pfx)
        a(f"{pfx}_fail:")
        a("s_branch F_fail")
        a(f"""
        {pfx}_done:
        v_mov_b32 v32, 64
        s_waitcnt vmcnt(0)
        s_mov_b64 exec, 1
        buffer_store_dword v32, v{L16}, s[8:11], s28 offen sc1
        s_mov_b64 exec, -1
        """)
        tstamp(a, opt, 3, 3)
        a("s_endpgm")


XR, ACC = 24, 152


def gemm1_issue_weights(a):
    sn, dma = wk.gen_gemm1(a, None, 40, 0, "G1")


def gemm1_main(a, opt):
    a("s_waitcnt vmcnt(0)")
    a("s_barrier")
    for ks in range(16):
        for ct in range(4):
            for u in range(2):
                r = (ks * 4 + ct) * 4 + u * 2
                a(f"ds_read_b64_tr_b16 a[{r}:{r+1}], v{14+ct} offset:{ks*4096+u*512}")
        a("s_waitcnt lgkmcnt(0)")
    a(f"""
    s_and_b32 s19, s40, 63
    s_lshr_b32 s20, s19, 1                 ; head
    s_and_b32 s21, s40, 1                  ; half
    s_lshl_b32 s42, s17, 18
    s_lshl_b32 s22, s20, 13
    s_add_u32 s42, s42, s22                ; w*256K + h*8K
    s_lshl_b32 s44, s20, 7
    s_lshl_b32 s22, s21, 2
    s_add_u32 s44, s44, s22
    s_add_u32 s44, s44, {F_PG:#x}
    s_mov_b32 s43, 0x100000
    s_cmp_ge_u32 s40, 192
    s_cbranch_scc1 G_bH
    s_cmp_ge_u32 s40, 128
    s_cbranch_scc1 G_bQ
    s_lshl_b32 s22, s17, 4
    s_add_u32 s44, s44, s22
    s_cmp_ge_u32 s40, 64
    s_cbranch_scc1 G_bV
    s_lshl_b32 s22, s21, 11
    s_add_u32 s42, s42, s22
    s_add_u32 s42, s42, {WS_KF:#x}
    s_branch G_bdone
    G_bV:
    s_add_u32 s44, s44, 8
    s_lshl_b32 s22, s21, 12
    s_add_u32 s42, s42, s22
    s_add_u32 s42, s42, {WS_VF:#x}
    s_branch G_bdone
    G_bQ:
    s_lshl_b32 s22, s17, 3
    s_add_u32 s44, s44, s22
    s_add_u32 s44, s44, 64
    s_lshl_b32 s22, s21, 11
    s_add_u32 s42, s42, s22
    s_add_u32 s42, s42, {WS_QF:#x}
    s_branch G_bdone
    G_bH:
    s_sub_u32 s19, s40, 192
    s_lshl_b32 s44, s19, 4
    s_lshl_b32 s22, s17, 2
    s_add_u32 s44, s44, s22
    s_add_u32 s44, s44, {F_HP:#x}
    s_mul_i32 s42, s17, {2*43*1024}
    s_lshl_b32 s19, s19, 11
    s_add_u32 s42, s42, s19
    s_add_u32 s42, s42, {WS_HF:#x}
    s_mov_b32 s43, {8*43*1024}
    G_bdone:
    s_cmp_eq_u32 s40, 213
    s_cselect_b32 s20, 0x7ffff000, 0
    v_add_u32 v19, s20, v4
    v_lshlrev_b32 v20, 3, v1
    v_and_b32 v23, 63, v20
    """)
    if opt.get("hold"):
        a(f"s_cmp_lt_u32 s40, {opt['hold']-1}")
        a("s_cbranch_scc1 G_nohold")
        a(f"v_mov_b32 v252, {D_CBAR}")
        poll_ge(a, 252, 0, 32, 253, sleep=32, srd=12)
        a("G_nohold:")
    a(f"s_mov_b32 s22, {F_LN:#x}")
    poll_ge(a, 23, "s22", 1, 210, sleep=2, x2=True)
    tstamp(a, opt, 2, 5)
    order = [(ks, tt) for ks in range(16) for tt in range(2)]

    def ld(i):
        ks, tt = order[i]
        if ks % 4 == 0:
            a(f"s_add_u32 s{46+tt}, s45, {tt*16384 + ks*1024}")
        a(f"buffer_load_dwordx4 v[{XR+4*i}:{XR+4*i+3}], v4, s[8:11], s{46+tt} offen offset:{(ks%4)*1024} sc1")

    a(f"""
    s_lshl_b32 s45, s17, 15
    s_add_u32 s45, s45, {WS_XN:#x}
    """)
    for i in range(32):
        ld(i)
    a(f"""
    s_sub_u32 s19, s40, 192
    s_lshl_b32 s19, s19, 7
    s_cmp_lt_u32 s40, 192
    s_cselect_b32 s19, 0, s19
    buffer_load_dwordx2 v[200:201], v18, s[60:63], s19 offen
    buffer_load_dwordx2 v[202:203], v18, s[60:63], s19 offen offset:32
    buffer_load_dwordx2 v[204:205], v18, s[60:63], s19 offen offset:64
    buffer_load_dwordx2 v[206:207], v18, s[60:63], s19 offen offset:96
    buffer_load_dwordx2 v[208:209], v18, s[60:63], s19 offen offset:96
    s_mov_b32 s41, 0
    s_cmp_ge_u32 s40, 192
    s_cbranch_scc1 G_H
    s_cmp_ge_u32 s40, 128
    s_cbranch_scc1 G_K
    s_cmp_ge_u32 s40, 64
    s_cbranch_scc1 G_V
    """)

    def loop(kind):
        a(f"G_{kind}:")
        a("""
        s_add_u32 s45, s45, 0x20000
        s_cmp_eq_u32 s41, 15
        s_cselect_b32 s45, 0x7ff00000, s45
        """)
        for i, (ks, tt) in enumerate(order):
            a("s_waitcnt vmcnt(36)")
            for ct in range(4):
                d = ACC + (tt * 4 + ct) * 4
                w = (ks * 4 + ct) * 4
                x = XR + 4 * i
                c = "0" if ks == 0 else f"v[{d}:{d+3}]"
                if kind == "V":
                    a(f"v_mfma_f32_16x16x32_bf16 v[{d}:{d+3}], v[{x}:{x+3}], a[{w}:{w+3}], {c}")
                else:
                    a(f"v_mfma_f32_16x16x32_bf16 v[{d}:{d+3}], a[{w}:{w+3}], v[{x}:{x+3}], {c}")
            ld(i)
        a("s_waitcnt vmcnt(32)")
        flag_store(a, "s41", "s44", 21)
        if kind == "V":
            for ct in range(4):
                d0 = ACC + ct * 4
                d1 = ACC + (4 + ct) * 4
                a(f"""
                v_cvt_pk_bf16_f32 v{d0}, v{d0}, v{d0+1}
                v_cvt_pk_bf16_f32 v{d0+1}, v{d0+2}, v{d0+3}
                v_cvt_pk_bf16_f32 v{d0+2}, v{d1}, v{d1+1}
                v_cvt_pk_bf16_f32 v{d0+3}, v{d1+2}, v{d1+3}
                buffer_store_dwordx4 v[{d0}:{d0+3}], v4, s[8:11], s42 offen offset:{ct*1024} sc1
                """)
        elif kind == "K":
            a("s_add_u32 s19, s42, 0x1000")
            for tt in range(2):
                for p in range(2):
                    d0 = ACC + (tt * 4 + p) * 4
                    d1 = d0 + 8
                    a(f"""
                    v_cvt_pk_bf16_f32 v{d0}, v{d0}, v{d0+1}
                    v_cvt_pk_bf16_f32 v{d0+1}, v{d0+2}, v{d0+3}
                    v_cvt_pk_bf16_f32 v{d0+2}, v{d1}, v{d1+1}
                    v_cvt_pk_bf16_f32 v{d0+3}, v{d1+2}, v{d1+3}
                    buffer_store_dwordx4 v[{d0}:{d0+3}], v4, s[8:11], s{42 if tt == 0 else 19} offen offset:{p*1024} sc1
                    """)
        else:
            a(f"s_add_u32 s19, s42, {43*1024}")
            for ct in range(4):
                for j in range(2):
                    a(f"v_lshlrev_b32 v{184+ct*4+2*j}, 16, v{200+2*ct+j}")
                    a(f"v_and_b32 v{184+ct*4+2*j+1}, 0xffff0000, v{200+2*ct+j}")
            for tt in range(2):
                for p in range(2):
                    d0 = ACC + (tt * 4 + 2 * p) * 4
                    for j in range(4):
                        r0 = d0 + 2 * j
                        bi = 184 + (2 * p + (j >> 1)) * 4 + (j & 1) * 2
                        a(f"""
                        v_cvt_pk_bf16_f32 v{r0+1}, v{r0}, v{r0+1}
                        v_lshlrev_b32 v{r0}, 16, v{r0+1}
                        v_and_b32 v{r0+1}, 0xffff0000, v{r0+1}
                        v_add_f32 v{r0}, v{r0}, v{bi}
                        v_add_f32 v{r0+1}, v{r0+1}, v{bi+1}
                        v_cvt_pk_bf16_f32 v{r0+1}, v{r0}, v{r0+1}
                        v_lshlrev_b32 v{r0}, 16, v{r0+1}
                        v_and_b32 v{r0+1}, 0xffff0000, v{r0+1}
                        v_max_f32 v{r0}, 0, v{r0}
                        v_max_f32 v{r0+1}, 0, v{r0+1}
                        v_mul_f32 v{r0}, v{r0}, v{r0}
                        v_mul_f32 v{r0+1}, v{r0+1}, v{r0+1}
                        v_cvt_pk_bf16_f32 v{d0+j}, v{r0}, v{r0+1}
                        """)
                    va = 4 if p == 0 else 19
                    a(f"buffer_store_dwordx4 v[{d0}:{d0+3}], v{va}, s[8:11], s{42 if tt == 0 else 19} offen offset:{p*1024} sc1")
        a(f"""
        s_add_u32 s42, s42, s43
        s_add_u32 s41, s41, 1
        s_cmp_eq_u32 s41, 1
        s_cbranch_scc1 G_{kind}_first
        s_cmp_lt_u32 s41, 16
        s_cbranch_scc1 G_{kind}
        s_branch G_end
        G_{kind}_first:
        s_waitcnt vmcnt(0)
        """)
        flag_store(a, "s41", "s44", 21)
        poll_ge(a, 20, "s22", 1, 210, sleep=2, x2=True)
        a(f"s_branch G_{kind}")

    for kind in "KVH":
        loop(kind)
    a("G_end:")
    a("s_waitcnt vmcnt(0)")
    flag_store(a, "16", "s44", 21)
    a(f"""
    s_barrier
    s_cmp_lg_u32 s17, 0
    s_cbranch_scc1 G_noadd
    v_lshlrev_b32 v20, 7, v1
    v_mov_b32 v21, 1
    s_mov_b32 s19, {F_G1:#x}
    s_mov_b64 exec, 0xffffffff
    buffer_atomic_add v21, v20, s[8:11], s19 offen sc1
    s_mov_b64 exec, -1
    G_noadd:
    """)


def lane_ids(a):
    a("""
    v_and_b32 v120, 15, v1
    v_lshrrev_b32 v121, 4, v1
    v_lshrrev_b32 v122, 2, v120
    v_and_b32 v123, 3, v120
    """)


L_ATT = wk.L_RED + 0x4000
Q_, K_, V_, KVM_, KA_, S_ = 24, 40, 72, 104, 120, 128


def attn_consts(a):
    a(f"""
    s_lshr_b32 s19, s17, 1
    s_lshl_b32 s24, s43, 1
    s_add_u32 s24, s24, s19
    s_lshl_b32 s25, s24, 7
    s_add_u32 s25, s25, {F_PG:#x}
    s_lshl_b32 s19, s17, 11
    s_add_u32 s19, s19, {L_ATT:#x}
    v_lshrrev_b32 v20, 3, v120
    v_xor_b32 v21, v121, v20
    v_lshlrev_b32 v2, 8, v20
    v_lshl_add_u32 v2, v21, 6, v2
    v_and_b32 v21, 7, v120
    v_lshl_add_u32 v2, v21, 3, v2
    v_add_u32 v2, s19, v2
    v_lshrrev_b32 v20, 1, v121
    v_xor_b32 v21, v123, v20
    v_lshlrev_b32 v3, 8, v20
    v_lshl_add_u32 v3, v21, 6, v3
    v_and_b32 v21, 1, v121
    v_lshl_add_u32 v3, v21, 5, v3
    v_lshl_add_u32 v3, v122, 3, v3
    v_add_u32 v3, s19, v3
    s_mov_b32 s73, {f2u(wk.C_SCALE):#x}
    s_mov_b32 s72, {f2u(wk.LOG2E):#x}
    s_and_b32 s19, s17, 1
    s_lshl_b32 s19, s19, 4
    v_add_u32 v20, s19, v120
    v_lshlrev_b32 v21, 2, v121
    """)
    for t in range(2):
        for i in range(4):
            a(f"v_add_u32 v22, {16*t+i}, v21")
            a(f"v_cmp_le_u32 s[{56+8*t+2*i}:{57+8*t+2*i}], v22, v20")


def round_scale(a, r0, r1):
    a(f"""
    v_cvt_pk_bf16_f32 v{r1}, v{r0}, v{r1}
    v_lshlrev_b32 v{r0}, 16, v{r1}
    v_and_b32 v{r1}, 0xffff0000, v{r1}
    v_mul_f32 v{r0}, s73, v{r0}
    v_mul_f32 v{r1}, s73, v{r1}
    v_cvt_pk_bf16_f32 v{r1}, v{r0}, v{r1}
    v_lshlrev_b32 v{r0}, 16, v{r1}
    v_and_b32 v{r1}, 0xffff0000, v{r1}
    """)


def attn_task(a, opt):
    S0, S1, DE, DO = S_, S_ + 4, S_ + 8, S_ + 12
    T0, T1, NEG = S_ + 16, S_ + 17, S_ + 18
    P, PM = S_ + 20, S_ + 24
    O = 160
    a(f"""
    s_lshl_b32 s19, s42, 18
    s_lshl_b32 s20, s24, 13
    s_add_u32 s19, s19, s20
    s_and_b32 s20, s17, 1
    s_lshl_b32 s20, s20, 12
    s_add_u32 s20, s20, s19
    s_add_u32 s20, s20, {WS_QF:#x}
    """)
    for i in range(4):
        a(f"buffer_load_dwordx4 v[{Q_+4*i}:{Q_+4*i+3}], v4, s[8:11], s20 offen offset:{i*1024} sc1")
    for base, ws in ((K_, WS_KF), (V_, WS_VF)):
        for hh in range(2):
            a(f"s_add_u32 s20, s19, {ws + hh*4096:#x}")
            for i in range(4):
                r = base + (hh * 4 + i) * 4
                a(f"buffer_load_dwordx4 v[{r}:{r+3}], v4, s[8:11], s20 offen offset:{i*1024} sc1")
    a("s_waitcnt vmcnt(8)")
    for t, d in ((0, S0), (1, S1)):
        for f in range(4):
            c = "0" if f == 0 else f"v[{d}:{d+3}]"
            a(f"v_mfma_f32_16x16x32_bf16 v[{d}:{d+3}], v[{K_+16*t+4*f}:{K_+16*t+4*f+3}], v[{Q_+4*f}:{Q_+4*f+3}], {c}")
    a(f"v_mov_b32 v{NEG}, {f2u(-1e30):#x}")
    a(f"v_mov_b32 v{PM}, 0")
    a(f"v_mov_b32 v{PM+3}, 0")
    for j in range(0, 8, 2):
        round_scale(a, S0 + j, S0 + j + 1)
    for j in range(8):
        a(f"v_cndmask_b32 v{S0+j}, v{NEG}, v{S0+j}, s[{56+2*j}:{57+2*j}]")
    a(f"""
    v_max3_f32 v{T0}, v{S0}, v{S0+1}, v{S0+2}
    v_max3_f32 v{T0}, v{T0}, v{S0+3}, v{S0+4}
    v_max3_f32 v{T0}, v{T0}, v{S0+5}, v{S0+6}
    v_max_f32 v{T0}, v{T0}, v{S0+7}
    s_lshl_b32 s19, s42, 17
    s_lshl_b32 s20, s24, 12
    s_add_u32 s19, s19, s20
    s_add_u32 s19, s19, {WS_KM:#x}
    s_add_u32 s22, s42, 1
    s_mov_b32 s21, 0
    """)
    lab = a.uid("CF")
    a(f"""
    {lab}:
    buffer_load_dwordx4 v[20:23], v18, s[8:11], s25 offen offset:96 sc1
    s_add_u32 s21, s21, 1
    s_cmp_gt_u32 s21, {TIMEOUT}
    s_cbranch_scc1 F_fail
    s_waitcnt vmcnt(0)
    v_min_u32 v20, v20, v21
    v_min3_u32 v20, v20, v22, v23
    s_nop 1
    v_readfirstlane_b32 s20, v20
    s_cmp_ge_u32 s20, s22
    s_cbranch_scc1 {lab}_ok
    s_add_u32 s20, s20, 1
    s_cmp_ge_u32 s20, s22
    s_cbranch_scc1 {lab}_s
    s_sleep 16
    s_add_u32 s20, s20, 2
    s_cmp_ge_u32 s20, s22
    s_cbranch_scc1 {lab}
    s_sleep 80
    {lab}_s:
    s_sleep {opt.get('cfs', 2)}
    s_branch {lab}
    {lab}_ok:
    """)
    for w in range(4):
        a(f"buffer_load_dwordx4 v[{KVM_+4*w}:{KVM_+4*w+3}], v4, s[8:11], s19 offen offset:{w*1024} sc1")
    tstamp(a, opt, 6)
    x = 1 if opt.get("tl") else 0
    for w in range(4):
        a(f"s_waitcnt vmcnt({3-w})")
        a(f"ds_write_b64 v2, v[{KVM_+4*w}:{KVM_+4*w+1}] offset:{w*512}")
    for w in range(4):
        a(f"ds_read_b64_tr_b16 v[{KA_+2*w}:{KA_+2*w+1}], v3 offset:{w*512}")
    a(f"""
    s_lshl_b32 s19, s42, 18
    s_lshl_b32 s20, s24, 12
    s_add_u32 s19, s19, s20
    s_and_b32 s20, s17, 1
    s_lshl_b32 s20, s20, 17
    s_add_u32 s19, s19, s20
    s_add_u32 s19, s19, {WS_OF:#x}
    s_waitcnt lgkmcnt(2)
    v_mfma_f32_16x16x32_bf16 v[{DE}:{DE+3}], v[{KA_}:{KA_+3}], v[{Q_}:{Q_+3}], 0
    v_mfma_f32_16x16x32_bf16 v[{DO}:{DO+3}], v[{KA_}:{KA_+3}], v[{Q_+4}:{Q_+7}], 0
    s_waitcnt lgkmcnt(0)
    v_mfma_f32_16x16x32_bf16 v[{DE}:{DE+3}], v[{KA_+4}:{KA_+7}], v[{Q_+8}:{Q_+11}], v[{DE}:{DE+3}]
    v_mfma_f32_16x16x32_bf16 v[{DO}:{DO+3}], v[{KA_+4}:{KA_+7}], v[{Q_+12}:{Q_+15}], v[{DO}:{DO+3}]
    v_add_f32 v{DE}, v{DE}, v{DO+2}
    v_add_f32 v{DE+1}, v{DE+1}, v{DO+3}
    """)
    round_scale(a, DE, DE + 1)
    a(f"v_max3_f32 v{T0}, v{T0}, v{DE}, v{DE+1}")
    xreduce_max(a, T0, T1)
    regs = list(range(S0, S0 + 10))
    for r in regs:
        a(f"v_sub_f32 v{r}, v{r}, v{T0}")
    for r in regs:
        a(f"v_mul_f32 v{r}, s72, v{r}")
    for r in regs:
        a(f"v_exp_f32 v{r}, v{r}")
    a(f"v_add_f32 v{T0}, v{regs[0]}, v{regs[1]}")
    for r in regs[2:]:
        a(f"v_add_f32 v{T0}, v{T0}, v{r}")
    xreduce_add(a, T0, T1)
    a(f"v_rcp_f32 v{T0}, v{T0}")
    for r in regs:
        a(f"v_mul_f32 v{r}, v{r}, v{T0}")
    for j in range(4):
        a(f"v_cvt_pk_bf16_f32 v{P+j}, v{S0+2*j}, v{S0+2*j+1}")
    a(f"v_cvt_pk_bf16_f32 v{PM+1}, v{DE}, v{DE+1}")
    a(f"v_cvt_pk_bf16_f32 v{PM+2}, v{DE}, v{DE+1}")
    for et in range(8):
        d = O + 4 * et
        a(f"v_mfma_f32_16x16x32_bf16 v[{d}:{d+3}], v[{V_+4*et}:{V_+4*et+3}], v[{P}:{P+3}], 0")
    for et in range(8):
        d = O + 4 * et
        vm = KVM_ + 4 * (et >> 1) + 2
        b = PM + 2 if et % 2 == 0 else PM
        a(f"v_mfma_f32_16x16x16_bf16 v[{d}:{d+3}], v[{vm}:{vm+1}], v[{b}:{b+1}], v[{d}:{d+3}]")
    for k4 in range(4):
        d0 = O + 8 * k4
        d1 = d0 + 4
        a(f"""
        v_cvt_pk_bf16_f32 v{d0}, v{d0}, v{d0+1}
        v_cvt_pk_bf16_f32 v{d0+1}, v{d0+2}, v{d0+3}
        v_cvt_pk_bf16_f32 v{d0+2}, v{d1}, v{d1+1}
        v_cvt_pk_bf16_f32 v{d0+3}, v{d1+2}, v{d1+3}
        buffer_store_dwordx4 v[{d0}:{d0+3}], v4, s[8:11], s19 offen offset:{k4*1024} sc1
        """)
    a(f"""
    s_lshl_b32 s22, s42, 8
    s_add_u32 s22, s22, {F_OF:#x}
    s_lshl_b32 s19, s43, 4
    s_lshl_b32 s20, s17, 2
    s_add_u32 s19, s19, s20
    s_add_u32 s19, s19, s22
    s_waitcnt vmcnt(0)
    """)
    flag_store(a, "1", "s19", 20)


def worker(a, opt):
    GST = wk.GST
    a("F_worker:")
    a("s_sub_u32 s40, s16, 32")
    lane_ids(a)
    srd_from_arg(a, 76, ARG_X, 2 << 20)
    a("s_sub_u32 s41, 223, s40")
    LX = L_TK + 64

    def ln_flag():
        wait_ready(a)
        lab = a.uid("LF")
        a(f"""
        s_barrier
        s_cmp_lg_u32 s17, 0
        s_cbranch_scc1 {lab}
        s_lshl_b32 s19, s41, 2
        s_add_u32 s19, s19, {F_LN:#x}
        """)
        flag_store(a, "1", "s19", 21)
        a(f"{lab}:")

    a("s_cmp_lt_u32 s40, 128")
    a("s_cbranch_scc1 W_kv")
    wk.gen_ln(a, 41, 76, LX, part="load")
    srd_from_arg(a, 76, ARG_WO, 4 << 20)
    a("""
    s_sub_u32 s19, s40, 128
    s_lshl_b32 s19, s19, 16
    v_lshlrev_b32 v76, 7, v0
    buffer_load_dword v77, v76, s[76:79], s19 offen
    s_add_u32 s19, s19, 0x8000
    buffer_load_dword v78, v76, s[76:79], s19 offen
    """)
    wk.gen_ln(a, 41, 76, LX, sc="sc1", part="compute", pending=2)
    confirm(a, opt, L_TK, 20, 21)
    ln_flag()
    a("s_cmp_lt_u32 s40, 214")
    a("s_cbranch_scc0 W_c")
    gemm1_issue_weights(a)
    a("s_branch W_main")
    a("W_kv:")
    a("s_cmp_lt_u32 s40, 96")
    a("s_cbranch_scc1 W_noln")
    wk.gen_ln(a, 41, 76, LX, part="load")
    a("W_noln:")
    gemm1_issue_weights(a)
    a("s_waitcnt vmcnt(16)")
    confirm(a, opt, L_TK, 20, 21)
    a("s_cmp_lt_u32 s40, 96")
    a("s_cbranch_scc1 W_noln2")
    wk.gen_ln(a, 41, 76, LX, sc="sc1", part="compute", pending=18)
    ln_flag()
    a("s_branch W_main")
    a("W_noln2:")
    wait_ready(a)
    a("W_main:")
    tstamp(a, opt, 1)
    gemm1_main(a, opt)
    a("W_c:")
    tstamp(a, opt, 3, 6)
    a("""
    s_lshr_b32 s41, s40, 4
    s_and_b32 s43, s40, 15
    """)
    lane_ids(a)
    wk.gen_out_consts(a, 43)
    attn_consts(a)
    a("s_barrier")
    wk.gen_gate_setup(a)
    a(f"""
    s_cmp_lg_u32 s17, 0
    s_cbranch_scc1 W_nopoll
    s_and_b32 s22, s40, 31
    s_lshl_b32 s22, s22, 7
    s_add_u32 s22, s22, {F_G1:#x}
    s_movk_i32 s23, 214
    v_mov_b32 v20, 0
    """)
    poll_ge(a, 20, "s22", "s23", 22, sleep=16)
    a("W_nopoll:")
    a("s_barrier")
    a("s_mov_b32 s42, s41")
    a("W_gate:")
    for i in range(0, 16, 2):
        a(f"v_mov_b64 v[{GST+i}:{GST+i+1}], v[{GST+i+4}:{GST+i+5}]")
    a("s_cmp_ge_u32 s42, 64")
    a("s_cbranch_scc1 W_gdone")
    wk.gen_gate(a, 42, GST + 16, "sc1")
    a(f"""
    s_add_u32 s42, s42, 14
    s_sub_u32 s19, s42, s41
    s_cmp_lt_u32 s19, 70
    s_cbranch_scc1 W_gate
    W_gdone:
    """)
    tstamp(a, opt, 4)
    wk.gen_wo_setup(a)
    a(f"""
    v_mov_b32 v18, 0
    v_and_b32 v19, 15, v1
    v_lshlrev_b32 v19, 2, v19
    s_lshl_b32 s19, s17, 6
    v_add_u32 v19, s19, v19
    s_mov_b32 s42, s41
    """)
    tstamp(a, opt, 5, 7)
    a("W_seg:")
    attn_task(a, opt)
    poll_ge(a, 19, "s22", 1, 20, sleep=opt.get("ofs", 1))
    tstamp(a, opt, 7)
    wk.gen_out_task(a, 42, GST, "sc1")
    tstamp(a, opt, 8, 4)
    if opt.get("tl"):
        a("s_add_u32 s97, s97, 12")
    for i in range(0, 16, 2):
        a(f"v_mov_b64 v[{GST+i}:{GST+i+1}], v[{GST+i+4}:{GST+i+5}]")
    a(f"""
    s_add_u32 s42, s42, 14
    s_cmp_lt_u32 s42, 64
    s_cbranch_scc1 W_seg
    s_endpgm
    F_fail:
    v_mov_b32 v32, 0xdead
    v_mov_b32 v33, {D_FAIL}
    s_mov_b64 exec, 1
    buffer_store_dword v32, v33, s[12:15], 0 offen
    F_exit:
    s_endpgm
    """)


NAME = "recurrent_scan__memory_aug_recurrent_mem_tr__dense_activation_squared_relu__prompt"
DEF = dict(depth=2, pre1=42, pre2=55, gap1=40, gap2=40)


def build(path, opt):
    o = dict(DEF)
    o.update(opt)
    hdr = open(f"cdna_kernels/{NAME}.s.ref").read().split("; Override launch")[0]
    a = Asm()
    for ln in hdr.strip().split("\n"):
        a.raw(ln)
    a.raw(f"; @launch kernel=fused_kernel grid=(256,1,1) block=(256,1,1) lds={ch.LDS_BYTES}")
    a.raw('.amdgcn_target "amdgcn-amd-amdhsa--gfx950"')
    a.raw(".text")
    kernel_header(a, "fused_kernel")
    prologue(a, o)
    chain_role(a, o)
    worker(a, o)
    loser(a, o)
    a.lines = ch.hoist_waits(a.lines)
    a.lines = hazard.fix(a.lines, True)
    a.raw('.section .rodata,"a"')
    a.raw(".p2align 6")
    a.raw(kernel_desc("fused_kernel", 512, 256))
    open(path, "w").write(a.text())


if __name__ == "__main__":
    opt = {}
    for kv in sys.argv[2:]:
        k, v = kv.split("=")
        opt[k] = v if k in ("sc", "xsc", "lnt") else int(v)
    build(sys.argv[1], opt)
```

```python
import sys, struct, math
sys.path.insert(0, "gen")
from asmlib import *
from layout import *

TIMEOUT = 400000
WREG = 36 * 1024
L_MIR = 4 * WREG
L_QL = L_MIR + 0x2000
L_KL = L_QL + 0x1000
LDS_BYTES = 163840
assert L_KL + 0x1000 == LDS_BYTES


def f2u(f):
    return struct.unpack("<I", struct.pack("<f", f))[0]


C_SCALE = f2u(128 ** -0.5 * math.log2(math.e))

CONST, LANE16, MW, MR1, SPR, IDX, PS, PUB, QW, KW, TR, WL, KXA, TG, SPW = 0, 1, 2, 3, 6, 7, 8, 9, 10, 11, 12, 16, 17, 18, 19
MA, A1, A2, A3, X0, X1, X2, KX, KXN, VXN, H, PVB = 20, 52, 60, 68, 76, 84, 92, 100, 108, 116, 124, 128
P, MISC = X2, X2 + 4
WV0 = 144

LDS_BLOCKS = [("q", 0), ("q", 1), ("k", 0), ("q", 6), ("q", 7), ("k", 5), ("v", 5), ("o", (2, 1)), ("o", (3, 1))]
REG_BLOCKS = [b for b in ([(k, j) for k in "qkv" for j in range(8)] + [("o", (p, jp)) for p in range(4) for jp in range(2)])
              if b not in LDS_BLOCKS]
assert len(REG_BLOCKS) == 23


def wreg(blk, t):
    i = REG_BLOCKS.index(blk) * 2 + t
    if i < 32:
        return "a", i * 8
    return "v", WV0 + (i - 32) * 8


def wop(blk, t):
    f, b = wreg(blk, t)
    return f"{f}[{b}:{b+7}]"


NB = len(REG_BLOCKS) + len(LDS_BLOCKS)
ORDER = REG_BLOCKS + LDS_BLOCKS


def slot_of(i):
    return i % 9


def lds_frag_off(blk, t):
    i = ORDER.index(blk)
    return slot_of(i) * 4096 + t * 2048


L_FREE = lds_frag_off(("q", 1), 1) + 1024


def gen_setup(a, opt, hook=None):
    SC = opt.get("sc", "")
    N, G, R, C, L = 116, 117, 118, 119, 120
    sn = [0]
    def sst():
        if opt.get("tl"):
            a(f"s_memrealtime s[{66+2*sn[0]}:{67+2*sn[0]}]")
            sn[0] += 1
    sst()
    a(f"""
    v_and_b32 v{L}, 63, v0
    v_and_b32 v{N}, 15, v{L}
    v_lshrrev_b32 v{G}, 4, v{L}
    v_lshrrev_b32 v{R}, 2, v{N}
    v_and_b32 v{C}, 3, v{N}
    v_lshlrev_b32 v{LANE16}, 4, v{L}
    s_mul_i32 s36, s17, {WREG}
    v_add_u32 v{WL}, s36, v{LANE16}
    """)

    a(f"s_load_dwordx8 s[84:91], s[0:1], {ARG_WQ}")
    a(f"s_load_dwordx2 s[92:93], s[0:1], {ARG_MEM0}")
    assert (ARG_WK, ARG_WV, ARG_WO) == (ARG_WQ + 8, ARG_WQ + 16, ARG_WQ + 24)
    a(f"""
    v_and_b32 v26, 1, v{G}
    v_bfe_u32 v28, v{L}, 3, 1
    v_lshrrev_b32 v29, 5, v{L}
    v_and_b32 v27, 7, v{L}
    v_lshlrev_b32 v27, 4, v27
    v_lshl_add_u32 v24, v29, 2, v26
    v_lshl_add_u32 v24, v28, 4, v24
    v_lshl_add_u32 v24, v24, 13, v27
    s_lshl_b32 s19, s16, 8
    s_lshr_b32 s20, s17, 1
    s_lshl_b32 s20, s20, 7
    s_add_u32 s19, s19, s20
    v_add_u32 v24, s19, v24
    v_lshl_add_u32 v25, v29, 2, v28
    v_lshl_add_u32 v25, v26, 4, v25
    v_lshl_add_u32 v25, v25, 10, v27
    s_lshl_b32 s19, s17, 8
    v_add_u32 v25, s19, v25
    s_waitcnt lgkmcnt(0)
    """)
    for d, b in ((44, 84), (48, 86), (52, 88), (56, 90)):
        make_srd(a, d, b, 4 << 20)
    make_srd(a, 60, 92, 8192)
    for c in range(4):
        a(f"s_xor_b32 s19, s17, {c}")
        a(f"s_and_b32 s20, s19, 1")
        a(f"s_lshl_b32 s20, s20, 21")
        a(f"s_lshr_b32 s19, s19, 1")
        a(f"s_lshl_b32 s19, s19, 18")
        a(f"s_add_u32 s{40+c}, s19, s20")
    a("""
    s_lshr_b32 s19, s17, 1
    s_lshl_b32 s19, s19, 16
    s_lshl_b32 s38, s16, 17
    s_add_u32 s38, s38, s19
    s_and_b32 s19, s17, 1
    s_lshl_b32 s19, s19, 15
    s_add_u32 s38, s38, s19
    """)
    srd_of = {"q": 44, "k": 48, "v": 52, "o": 56}

    T = Track(a)
    UNITS = [("k", 1), ("q", 0), ("k", 4), ("q", 1), ("v", 0), ("q", 6), ("v", 1), ("q", 7), ("v", 4), ("k", 0),
             ("o", (0, 0)), ("k", 5), ("o", (0, 1)), ("v", 5), ("o", (2, 0)), ("o", (2, 1))]
    DEPTH = opt.get("depth", 3)
    SPARE = lds_frag_off(("o", (3, 1)), 0)
    pool = [52, 68, 84, 128]
    fresh = []
    regs = {}

    def pair(u):
        kind, idx = u
        return [u, (kind, (idx[0] ^ 1, idx[1]) if kind == "o" else idx ^ 2)]

    def issue(i):
        kind, idx = UNITS[i]
        srd = srd_of[kind]
        for blk in pair(UNITS[i]):
            regs[blk] = wreg(blk, 0) if blk in REG_BLOCKS else ("v", pool.pop(0))
            assert regs[blk] not in fresh
        for x in range(8):
            ip, hh = x >> 1, x & 1
            if kind == "o":
                p, u = idx
                a(f"s_xor_b32 s19, s38, {(u << 16) | (hh << 15):#x}")
                a(f"s_add_u32 s19, s19, {(8*(ip>>1) + 2*(ip&1))*1024 + p*64}")
                va = 25
            else:
                a(f"s_add_u32 s19, s{40+(idx>>1)}, {(64*(idx&1) + 128*(ip>>1) + 2*(ip&1) + 8*hh)*8192}")
                va = 24
            f, b = regs[pair(UNITS[i])[x >> 2]]
            b += 4 * (x & 3)
            T.vmop(f"buffer_load_dwordx4 {f}[{b}:{b+3}], v{va}, s[{srd}:{srd+3}], s19 offen", i)

    def consume(i):
        kind, idx = UNITS[i]
        b0, b1 = pair(UNITS[i])
        fresh.clear()
        if kind == "o":
            o0 = lds_frag_off(b0, 0) if b0 in LDS_BLOCKS else None
            if o0 is None:
                a(f"v_mov_b32 v42, s39")
            else:
                a(f"s_add_u32 s19, s36, {o0}")
                a(f"v_mov_b32 v42, s19")
            a(f"s_add_u32 s19, s36, {SPARE}")
            a(f"v_mov_b32 v43, s19")
            a(f"v_cndmask_b32 v42, v42, v43, s[96:97]" if False else f"v_cndmask_b32 v42, v42, v43, vcc")
            a(f"v_add_u32 v42, v42, v41")
            a(f"v_xor_b32 v43, 32, v42")
            src = [(27, o0) if o0 is not None else (44, 0), (27, SPARE)]
        else:
            o0 = lds_frag_off(b0, 0) if b0 in LDS_BLOCKS else SPARE
            a(f"s_add_u32 s19, s36, {o0}")
            a(f"v_mov_b32 v42, s19")
            a(f"v_mov_b32 v43, s39")
            a(f"v_cndmask_b32 v42, v43, v42, s[94:95]")
            a(f"v_add_u32 v42, v42, v40")
            src = [(27, o0), (38, 0)]
        T.wait_vm(i)
        for x in range(8):
            ip, hh = x >> 1, x & 1
            f, b = regs[pair(UNITS[i])[x >> 2]]
            b += 4 * (x & 3)
            if kind == "o":
                a(f"ds_write_b128 v{42+hh}, {f}[{b}:{b+3}] offset:{ip*1024}")
            else:
                a(f"ds_write_b128 v42, {f}[{b}:{b+3}] offset:{ip*1024 + hh*512}")
        a("s_waitcnt lgkmcnt(0)")
        if kind != "o":
            a("s_barrier")
        for blk, (va, so) in zip((b1, b0), src[::-1]):
            f, b = regs[blk]
            for t in range(2):
                for ip in range(4):
                    r = b + 8 * t + 2 * ip
                    if blk == ("q", 1) and t == 1 and ip >= 2:
                        r = H + 2 * (ip - 2)
                    a(f"ds_read_b64_tr_b16 {f}[{r}:{r+1}], v{va+t} offset:{so + ip*1024}")
        if kind != "o":
            a("s_waitcnt lgkmcnt(8)")
            a("s_barrier")
        a("s_waitcnt lgkmcnt(0)")
        for blk in (b0, b1):
            if blk in LDS_BLOCKS:
                f, b = regs[blk]
                for q in range(4):
                    r = b + 4 * q
                    if blk == ("q", 1) and q == 3:
                        r = 48
                    a(f"ds_write_b128 v{WL}, v[{r}:{r+3}] offset:{lds_frag_off(blk, 0) + q*1024}")
                pool.append(b)
                fresh.append(regs[blk])

    for i in range(DEPTH):
        issue(i)
    a(f"""
    v_lshl_add_u32 v27, v{G}, 2, v{R}
    v_lshlrev_b32 v27, 6, v27
    v_lshl_add_u32 v27, v26, 5, v27
    v_lshl_add_u32 v27, v{C}, 3, v27
    v_add_u32 v27, s36, v27
    v_xor_b32 v28, 32, v27
    """)
    a(f"""
    s_lshl_b32 s39, s17, 12
    s_add_u32 s39, s39, {L_MIR:#x}
    s_sub_u32 s19, s39, s36
    v_add_u32 v44, s19, v27
    v_add_u32 v45, s19, v28
    v_xor_b32 v38, 0x1000, v44
    v_xor_b32 v39, 0x1000, v45
    v_lshrrev_b32 v30, 3, v{L}
    v_lshlrev_b32 v40, 1, v29
    v_xor_b32 v40, v40, v{C}
    v_lshlrev_b32 v40, 4, v40
    v_lshl_add_u32 v40, v30, 6, v40
    v_bfe_u32 v31, v{L}, 2, 1
    s_and_b32 s19, s17, 1
    v_cmp_eq_u32 s[94:95], s19, v31
    v_and_b32 v30, 1, v30
    v_lshl_add_u32 v41, v{G}, 2, v30
    v_and_b32 v30, 2, v{L}
    v_add_u32 v41, v41, v30
    v_lshlrev_b32 v41, 6, v41
    v_lshl_add_u32 v41, v26, 5, v41
    v_and_b32 v30, 1, v{L}
    v_lshl_add_u32 v41, v30, 4, v41
    s_barrier
    """)
    a(f"""
    s_lshl_b32 s19, s17, 11
    s_add_u32 s19, s19, {L_MIR:#x}
    v_add_u32 v{MW}, s19, v{LANE16}
    v_xor_b32 v{MR1}, 0x800, v{MW}
    v_xor_b32 v{MR1+1}, 0x1000, v{MW}
    v_xor_b32 v{MR1+2}, 0x1800, v{MW}
    v_bfe_u32 v30, v{L}, 1, 1
    v_mov_b32 v{IDX}, 0x44444444
    v_mov_b32 v31, 0xeeeeeeee
    v_cmp_ne_u32 vcc, 0, v30
    v_cndmask_b32 v{IDX}, v{IDX}, v31, vcc
    """)
    assert L_MIR % 0x2000 == 0 and L_QL % 0x1000 == 0
    a(f"""
    v_and_b32 v32, 1, v{N}
    v_lshl_add_u32 v31, v{R}, 1, v32
    v_lshrrev_b32 v35, 1, v{G}
    v_lshlrev_b32 v33, 3, v{N}
    v_add_u32 v33, {L_MIR:#x}, v33
    v_lshl_add_u32 v{SPR}, v{G}, 9, v33
    v_lshl_add_u32 v{SPR}, v30, 7, v{SPR}
    v_lshl_add_u32 v{SPW}, v{G}, 7, v33
    s_lshl_b32 s19, s17, 9
    v_add_u32 v{SPW}, s19, v{SPW}
    v_lshlrev_b32 v{KXA}, 10, v30
    v_lshl_add_u32 v{KXA}, v{G}, 8, v{KXA}
    v_lshl_add_u32 v{KXA}, v31, 4, v{KXA}
    """)
    a(f"""
    v_lshrrev_b32 v30, 3, v{N}
    v_lshlrev_b32 v{PS}, 13, v30
    v_lshl_add_u32 v{PS}, v{G}, 11, v{PS}
    v_and_b32 v33, 7, v{N}
    v_lshl_add_u32 v{PS}, v33, 3, v{PS}
    """)
    a(f"""
    s_lshl_b32 s19, s17, 10
    s_add_u32 s19, s19, {L_QL:#x}
    v_lshlrev_b32 v33, 3, v33
    v_lshl_add_u32 v33, v30, 8, v33
    v_add_u32 v33, s19, v33
    v_xor_b32 v36, v{G}, v30
    v_lshl_add_u32 v{QW}, v36, 6, v33
    v_lshl_add_u32 v36, v26, 1, v35
    v_xor_b32 v36, v36, v30
    v_lshl_add_u32 v33, v36, 6, v33
    v_add_u32 v{KW}, {L_KL-L_QL+512:#x}, v33
    v_lshlrev_b32 v33, 8, v35
    v_xor_b32 v36, v{C}, v35
    v_lshl_add_u32 v33, v36, 6, v33
    v_lshl_add_u32 v33, v26, 5, v33
    v_lshl_add_u32 v33, v{R}, 3, v33
    v_add_u32 v{TG}, {L_KL:#x}, v33
    v_add_u32 v{TR}, s19, v33
    v_xor_b32 v{TR+1}, 0x400, v{TR}
    v_xor_b32 v{TR+2}, 0x800, v{TR}
    v_xor_b32 v{TR+3}, 0xc00, v{TR}
    v_mov_b32 v{CONST}, {WREG + L_FREE:#x}
    """)
    a(f"""
    v_bfe_u32 v30, v{N}, 1, 1
    v_bfe_u32 v31, v{N}, 2, 1
    v_bfe_u32 v33, v{N}, 1, 2
    v_lshlrev_b32 v{PUB}, 4, v33
    v_lshl_add_u32 v{PUB}, v{G}, 2, v{PUB}
    s_lshl_b32 s19, s16, 8
    s_lshl_b32 s20, s17, 6
    s_add_u32 s19, s19, s20
    v_add_u32 v{PUB}, s19, v{PUB}
    v_and_b32 v33, 9, v{N}
    v_cmp_ne_u32 vcc, 0, v33
    v_mov_b32 v33, 0x7fffff00
    v_cndmask_b32 v{PUB}, v{PUB}, v33, vcc
    v_lshlrev_b32 v33, 10, v30
    v_lshl_add_u32 v33, v31, 1, v33
    v_lshl_add_u32 v33, v32, 5, v33
    v_lshl_add_u32 v33, v{G}, 2, v33
    s_bfe_u32 s19, s16, 0x20001
    s_lshl_b32 s19, s19, 8
    s_lshr_b32 s20, s16, 3
    s_lshl_b32 s20, s20, 6
    s_add_u32 s19, s19, s20
    s_and_b32 s20, s16, 1
    s_lshl_b32 s20, s20, 4
    s_add_u32 s19, s19, s20
    s_lshl_b32 s20, s17, 11
    s_add_u32 s19, s19, s20
    """)
    T.vmop(f"buffer_load_ushort v34, v33, s[60:63], s19 offen", "m0")
    a(f"""
    v_lshlrev_b32 v35, 2, v31
    v_lshl_add_u32 v35, v32, 1, v35
    v_add_u32 v35, v35, v30
    """)
    for d in range(4):
        a(f"""
        v_mov_b32 v{48+d}, 0
        v_cmp_eq_u32 vcc, {2*d}, v35
        v_mov_b32 v36, 0x3f80
        v_cndmask_b32 v{48+d}, v{48+d}, v36, vcc
        v_cmp_eq_u32 vcc, {2*d+1}, v35
        v_mov_b32 v36, 0x3f800000
        v_cndmask_b32 v{48+d}, v{48+d}, v36, vcc
        """)
    lab = a.uid("C_sel")
    a(f"""
    s_cmp_eq_u32 s17, 0
    s_cbranch_scc1 {lab}
    v_cmp_eq_u32 vcc, 1, v{L}
    v_mov_b32 v35, 0
    v_mov_b32 v36, 0x3f803f80
    v_mov_b32 v37, 0x3e803e80
    v_cndmask_b32 v48, v35, v36, vcc
    v_cndmask_b32 v49, v35, v36, vcc
    v_cndmask_b32 v50, v35, v37, vcc
    v_cndmask_b32 v51, v35, v37, vcc
    {lab}:
    """)
    a(f"""
    s_lshl_b32 s19, s16, 13
    s_lshl_b32 s20, s17, 11
    s_add_u32 s19, s19, s20
    s_add_u32 s25, s19, {WS_MB1:#x}
    s_add_u32 s26, s25, 0x40000
    s_add_u32 s32, s19, {WS_VF:#x}              ; Vx
    s_lshl_b32 s19, s17, 14
    s_lshl_b32 s20, s16, 6
    s_add_u32 s19, s19, s20
    s_add_u32 s27, s19, {WS_MB1:#x}
    s_lshl_b32 s19, s16, 13
    s_lshr_b32 s20, s17, 1
    s_lshl_b32 s20, s20, 12
    s_add_u32 s19, s19, s20
    s_and_b32 s20, s17, 1
    s_lshl_b32 s20, s20, 7
    s_add_u32 s19, s19, s20
    s_add_u32 s31, s19, {WS_KF:#x}              ; Kx
    s_lshl_b32 s19, s16, 12
    s_lshl_b32 s20, s17, 10
    s_add_u32 s19, s19, s20
    s_add_u32 s33, s19, {WS_KM:#x}              ; k/v export
    s_mov_b32 s34, 0x0000ffff
    s_mov_b32 s35, 0x0000ffff
    s_mov_b32 s64, {C_SCALE:#x}
    """)
    def mailbox_init():
        M1 = 20
        for i in range(4):
            a(f"v_mov_b32 v{M1+i}, -1")
        for so in (25, 26):
            for i in range(2):
                T.vmop(f"buffer_store_dwordx4 v[{M1}:{M1+3}], v{LANE16}, s[8:11], s{so} offen offset:{i*1024} {SC}")
        for r in range(1, 4):
            a(f"s_mov_b32 s19, {WS_MB2 + r*8192:#x}")
            T.vmop(f"buffer_store_dword v{M1}, v{PUB}, s[8:11], s19 offen {SC}")

    a(f"v_bfe_u32 v31, v{L}, 2, 1")
    a(f"v_cmp_ne_u32 vcc, 0, v31")
    nxt = DEPTH
    pub = False
    NU = len(UNITS)
    for i in range(NU):
        if i % 2 == 0:
            sst()
        consume(i)
        if not pub and "m0" not in T.vm:
            pub = True
            a(f"""
            v_mov_b32_dpp v35, v34 quad_perm:[1,0,3,2] row_mask:0xf bank_mask:0xf
            v_lshl_or_b32 v34, v35, 16, v34
            s_mov_b32 s19, {WS_MB2:#x}
            """)
            T.vmop(f"buffer_store_dword v34, v{PUB}, s[8:11], s19 offen {SC}", "pub")
        if hook:
            hook(i, T, pub and "pub" not in T.vm and UNITS[i][0] != "o")
        if i == 0:
            assert not pub
            mailbox_init()
        if nxt < NU:
            issue(nxt)
            nxt += 1
    assert pub and nxt == NU
    a("s_waitcnt lgkmcnt(0)")


def gen_prefetch0(a, ldsc="", T=None):
    for x in (f"buffer_load_dwordx4 v[{KXN}:{KXN+3}], v{KXA}, s[8:11], s31 offen {ldsc}",
              f"buffer_load_dwordx4 v[{KXN+4}:{KXN+7}], v{KXA}, s[8:11], s31 offen offset:2048 {ldsc}",
              f"buffer_load_dwordx4 v[{VXN}:{VXN+3}], v{LANE16}, s[8:11], s32 offen {ldsc}",
              f"buffer_load_dwordx4 v[{VXN+4}:{VXN+7}], v{LANE16}, s[8:11], s32 offen offset:1024 {ldsc}"):
        if T:
            T.vmop(x)
        else:
            a(x)


Q1, Q2 = 12, 44


def gen_kvwait(a, lab, fail, t0, t1):
    a(f"""
    v_lshrrev_b32 v{t0}, 2, v{LANE16}
    v_and_b32 v{t0}, 63, v{t0}
    s_mov_b32 s21, 0
    {lab}:
    buffer_load_dword v{t1}, v{t0}, s[8:11], s29 offen sc1
    s_add_u32 s21, s21, 1
    s_cmp_gt_u32 s21, {TIMEOUT}
    s_cbranch_scc1 {fail}
    s_waitcnt vmcnt(0)
    {lab}_chk:
    v_min_u32_dpp v{t1}, v{t1}, v{t1} row_ror:8 row_mask:0xf bank_mask:0xf
    v_min_u32_dpp v{t1}, v{t1}, v{t1} row_ror:4 row_mask:0xf bank_mask:0xf
    v_min_u32_dpp v{t1}, v{t1}, v{t1} row_ror:2 row_mask:0xf bank_mask:0xf
    v_min_u32_dpp v{t1}, v{t1}, v{t1} row_ror:1 row_mask:0xf bank_mask:0xf
    v_readfirstlane_b32 s37, v{t1}
    s_lshl_b32 s37, s37, 2
    s_cmp_ge_u32 s19, s37
    s_cbranch_scc1 {lab}
    s_cmp_ge_u32 s37, {Q1}
    s_cselect_b32 s21, {Q1}, 0
    s_cmp_ge_u32 s37, {Q2}
    s_cselect_b32 s21, {Q2}, s21
    s_cmp_ge_u32 s37, 64
    s_cselect_b32 s21, 1000, s21
    s_cmp_gt_u32 s21, s19
    s_cselect_b32 s37, s21, s37
    """)


def gen_loop(a, opt, pfx="C"):
    D1 = opt.get("d1", 4)
    D2 = opt.get("d2", 4)
    NSTEP = opt.get("nstep", 64)
    SC = opt.get("sc", "")
    XSC = opt.get("xsc", "")
    ST = opt.get("stamps", 0)
    o = lambda k, d: opt.get(k, d)
    T = Track(a)

    sq = [0, 1, 2, 3, 11, 4, 5, 6, 7, 8, 9, 10]
    def stamp(i):
        if ST == 1:
            a(f"s_memtime s[{70+2*i}:{71+2*i}]")

    n2 = [0]
    def stampn(mode):
        if ST == mode:
            i = sq[n2[0]]
            n2[0] += 1
            a(f"s_memtime s[{70+2*i}:{71+2*i}]")

    def smf(d, areg, b):
        a(f"v_smfmac_f32_16x16x64_bf16 v[{d}:{d+3}], v[{areg}:{areg+3}], {b}, v{IDX}")

    def vwin(r):
        return f"v[{r}:{r+7}]"

    def ldwin(r, blk, t, tag, half=False):
        of = lds_frag_off(blk, t)
        T.dsop(f"ds_read_b128 v[{r}:{r+3}], v{WL} offset:{of}", tag)
        if not half:
            T.dsop(f"ds_read_b128 v[{r+4}:{r+7}], v{WL} offset:{of+1024}", tag)

    def zero(r, n):
        for i in range(0, n, 2):
            a(f"v_mov_b64 v[{r+i}:{r+i+1}], 0")

    def nops(n):
        for _ in range(n):
            a("s_nop 0")

    ool = []

    def pl(r, so):
        a(f"buffer_load_dwordx4 v[{r}:{r+3}], v{LANE16}, s[8:11], s{so} offen sc1")
        if so == 22:
            a(f"buffer_load_dwordx4 v[{r+4}:{r+7}], v{LANE16}, s[8:11], s30 offen sc1")
        else:
            a(f"buffer_load_dwordx4 v[{r+4}:{r+7}], v{LANE16}, s[8:11], s{so} offen offset:1024 sc1")

    def poll(name, r, so, work, pre, gap, depth, spec, undo):
        work = list(work)
        def run(n):
            for _ in range(n):
                if work:
                    work.pop(0)()
                else:
                    a("s_nop 0")
        run(pre)
        for d in range(depth):
            pl(r, so)
            run(gap if d < depth - 1 else len(work))
        a(f"""
        s_waitcnt lgkmcnt(0)
        {pfx}_{name}:
        s_waitcnt vmcnt({2*(depth-1)})
        v_max3_u32 v{MISC}, v{r}, v{r+1}, v{r+2}
        v_max3_u32 v{MISC+1}, v{r+3}, v{r+4}, v{r+5}
        v_max3_u32 v{MISC}, v{MISC}, v{r+6}, v{r+7}
        """)
        T.reset()
        spec(0)
        a(f"v_max_u32 v{MISC}, v{MISC}, v{MISC+1}")
        a(f"v_cmp_eq_u32 vcc, -1, v{MISC}")
        spec(1)
        a(f"s_cbranch_vccnz {pfx}_{name}_re")

        def re():
            a(f"{pfx}_{name}_re:")
            a("s_mov_b64 exec, vcc")
            pl(r, so)
            a(f"""
            s_mov_b64 exec, -1
            s_add_u32 s21, s21, 1
            s_cmp_gt_u32 s21, {TIMEOUT}
            s_cbranch_scc1 {pfx}_fail
            s_nop 2
            """)
            undo()
            a(f"s_branch {pfx}_{name}")
        ool.append(re)

    W1 = {(("q", 0), 0): MA + 8, (("q", 0), 1): MA + 16, (("q", 1), 0): MA + 24, (("q", 1), 1): VXN + 4,
          (("k", 0), 0): KXN, (("k", 0), 1): X0, (("q", 6), 0): X1}
    W2 = {(("q", 6), 1): (X2,), (("q", 7), 0): (X0,), (("q", 7), 1): (MA,),
          (("k", 5), 0): (X1,), (("k", 5), 1): (MA,), (("v", 5), 0): (X2,), (("v", 5), 1): (A1,)}
    SEL = A2
    QB = X0
    S = X1

    def I(x):
        return lambda: a(x)

    def idle1():
        w = [I(f"ds_read_b128 v[{SEL}:{SEL+3}], v{LANE16} offset:{L_FREE}")]
        for i in range(0, 8, 2):
            w.append(I(f"v_mov_b64 v[{MA+i}:{MA+i+1}], -1"))
        w.append(I(f"v_mov_b64 v[{P}:{P+1}], -1"))
        w.append(I(f"v_mov_b64 v[{P+2}:{P+3}], -1"))
        w += [I(x) for x in f"""s_add_u32 s19, s18, 1
        s_and_b32 s19, s19, 3
        s_lshl_b32 s23, s19, 13
        s_add_u32 s23, s23, {WS_MB2:#x}
        s_lshl_b32 s19, s17, 10
        s_add_u32 s22, s23, s19
        s_add_u32 s30, s22, 0x1000""".split("\n")]
        for (blk, t), r in W1.items():
            if r == KXN:
                for i in range(0, 8, 2):
                    w.append(I(f"v_mov_b64 v[{KX+i}:{KX+i+1}], v[{KXN+i}:{KXN+i+1}]"))
            if r != VXN + 4:
                of = lds_frag_off(blk, t)
                w.append(I(f"ds_read_b128 v[{r}:{r+3}], v{WL} offset:{of}"))
                w.append(I(f"ds_read_b128 v[{r+4}:{r+7}], v{WL} offset:{of+1024}"))
        for t in range(2):
            w.append(I(f"v_mov_b64 v[{PVB+8*t}:{PVB+8*t+1}], v[{VXN+4*t}:{VXN+4*t+1}]"))
            w.append(I(f"v_mov_b64 v[{PVB+8*t+4}:{PVB+8*t+5}], v[{VXN+4*t+2}:{VXN+4*t+3}]"))
        w.append(I(f"ds_read_b128 v[{VXN+4}:{VXN+7}], v{WL} offset:{lds_frag_off(('q', 1), 1)}"))
        return w

    def idle2():
        w = [I(f"v_mov_b64 v[{A1+i}:{A1+i+1}], 0") for i in range(0, 16, 2)]
        w += [I(x) for x in f"""s_add_u32 s19, s18, 3
        s_and_b32 s19, s19, 3
        s_lshl_b32 s24, s19, 13
        s_add_u32 s24, s24, {WS_MB2:#x}
        s_add_u32 s31, s31, 0x40000
        s_add_u32 s32, s32, 0x40000
        s_mov_b32 s21, 1""".split("\n")]
        return w

    a("s_mov_b32 s18, -1")
    zero(PVB, 16)
    for fn in idle1():
        fn()
    a("s_mov_b32 s18, 0")
    a("s_waitcnt lgkmcnt(0)")
    if ST:
        for i in range(40, 56):
            a(f"s_mov_b32 s{i}, 0")
        for i in range(12):
            a(f"s_mov_b32 s{70+2*i}, 0")
        a("s_mov_b32 s56, 0")
    a(f"{pfx}_step:")
    FUSED = o("fused", 0)
    if o("tl", 0) == 2:
        a(f"""
        s_memrealtime s[98:99]
        s_lshl_b32 s19, s18, 2
        s_lshl_b32 s20, s16, 10
        s_add_u32 s19, s19, s20
        s_lshl_b32 s20, s17, 8
        s_add_u32 s19, s19, s20
        s_add_u32 s19, s19, {WS_DBG + 0x10000:#x}
        s_waitcnt lgkmcnt(0)
        v_mov_b32 v{MISC+2}, s98
        s_mov_b64 exec, 1
        buffer_store_dword v{MISC+2}, v{LANE16}, s[8:11], s19 offen
        s_mov_b64 exec, -1
        """)
    if FUSED:
        a(f"""
        s_add_u32 s19, s18, 1
        s_cmp_ge_u32 s19, s37
        s_cbranch_scc1 {pfx}_kvw
        {pfx}_kvok:
        """)

        def kvw():
            a(f"{pfx}_kvw:")
            gen_kvwait(a, f"{pfx}_kvl", f"{pfx}_fail", MISC + 2, MISC + 3)
            a(f"s_branch {pfx}_kvok")
        ool.append(kvw)
    w2 = idle2()
    if ST:
        def acc():
            a("s_waitcnt lgkmcnt(0)")
            lab = a.uid("C_st")
            a("s_cmp_lt_u32 s18, 2")
            a(f"s_cbranch_scc1 {lab}")
            for i in range(1, 11):
                a(f"s_sub_u32 s19, s{70+2*sq[i+1]}, s{70+2*sq[i]}")
                a(f"s_add_u32 s{40+i}, s{40+i}, s19")
            a("s_sub_u32 s19, s72, s56")
            a("s_add_u32 s40, s40, s19")
            a("s_add_u32 s53, s53, s57")
            a(f"{lab}:")
            a("s_mov_b32 s56, s90")
        a("s_mov_b32 s57, s21")
        w2.append(acc)

    def gemv(kind, j, t):
        blk = (kind, j)
        acc = {"q": A1, "k": A2, "v": A3}[kind] + 4 * t
        tags = []
        if j >= 2:
            tags.append(f"ma{j}")
        if (blk, t) in W1:
            b = vwin(W1[(blk, t)])
        elif (blk, t) in W2:
            tags.append(f"w2{kind}{j}{t}")
            b = vwin(W2[(blk, t)][0])
        else:
            b = wop(blk, t)
        T.wait_ds(*tags)
        smf(acc, MA + 4 * j, b)

    own = [(0, 0), (0, 1), (1, 0), (1, 1)]
    rest = [(j, t) for t in range(2) for j in range(2, 8)]
    seq = [(k, j, t) for k in "qkv" for j, t in own] + [(k, j, t) for k in "qkv" for j, t in rest]
    acts = {i: [] for i in range(0, 50)}

    def at(slot, fn):
        acts[slot].append(fn if callable(fn) else (lambda s=fn: a(s)))

    if not o("nopf", 0):
        at(2, f"buffer_load_dwordx4 v[{VXN}:{VXN+3}], v{LANE16}, s[8:11], s32 offen {XSC}")
        at(5, f"buffer_load_dwordx4 v[{VXN+4}:{VXN+7}], v{LANE16}, s[8:11], s32 offen offset:1024 {XSC}")
        at(7, f"buffer_load_dwordx4 v[{KXN}:{KXN+3}], v{KXA}, s[8:11], s31 offen {XSC}")
        at(9, f"buffer_load_dwordx4 v[{KXN+4}:{KXN+7}], v{KXA}, s[8:11], s31 offen offset:2048 {XSC}")
    at(11, f"buffer_store_dwordx4 v[{P}:{P+3}], v{LANE16}, s[8:11], s26 offen {SC}")
    at(14, f"buffer_store_dwordx4 v[{P}:{P+3}], v{LANE16}, s[8:11], s26 offen offset:1024 {SC}")
    at(3, f"buffer_store_dword v{P}, v{PUB}, s[8:11], s24 offen {SC}")
    for i in range(4):
        at(3 + i, lambda i=i: zero(A3 + 2 * i, 2))
    if FUSED:
        at(8, f"v_mov_b32 v{MISC+2}, s18")
        at(10, "s_mov_b64 exec, 1")
        at(10, f"buffer_store_dword v{MISC+2}, v{LANE16}, s[8:11], s28 offen sc1")
        at(10, "s_mov_b64 exec, -1")
    at(16, f"s_waitcnt vmcnt({3 if o('nopf', 0) else 7 + FUSED})")
    b1 = o("b1", 7)

    def bar(tag, st):
        T.wait_ds(tag)
        a(f"s_barrier ; bar_{tag}")
        stamp(st)

    at(b1, lambda: bar("mw", 2))
    for j in range(2, 8):
        at(b1 + j - 2, lambda j=j: T.dsop(
            f"ds_read_b128 v[{MA+4*j}:{MA+4*j+3}], v{MR1+(j>>1)-1} offset:{(j&1)*1024}", f"ma{j}"))
    at(24, lambda: stamp(3))
    b2 = o("b2", 31)

    def ldhalf(blk, t, hf):
        r = W2[(blk, t)][0] + 4 * hf
        T.dsop(f"ds_read_b128 v[{r}:{r+3}], v{WL} offset:{lds_frag_off(blk, t) + 1024*hf}", f"w2{blk[0]}{blk[1]}{t}")

    for blk, t, sl in ((("q", 7), 0, 12), (("q", 6), 1, 15), (("q", 7), 1, 17), (("k", 5), 0, 19), (("k", 5), 1, 25),
                       (("v", 5), 0, 28), (("v", 5), 1, b2 + 2)):
        for hf in range(2):
            at(sl + hf, lambda blk=blk, t=t, hf=hf: ldhalf(blk, t, hf))
    at(21, lambda: nops(2))
    at(21, f"v_add_f32 v{A1}, v{A1}, v{A1+2}")
    at(22, f"v_add_f32 v{A1+1}, v{A1+1}, v{A1+3}")
    at(23, f"v_cvt_pk_bf16_f32 v{A1+2}, v{A1}, v{A1+1}")
    at(24, lambda: nops(3))
    at(25, lambda: nops(2))
    at(26, f"v_add_f32 v{A1+4}, v{A1+4}, v{A1+6}")
    at(26, f"v_add_f32 v{A1+5}, v{A1+5}, v{A1+7}")
    at(26, f"v_cvt_pk_bf16_f32 v{A1+3}, v{A1+4}, v{A1+5}")
    at(27, lambda: T.dsop(f"ds_write_b64 v{QW}, v[{A1+2}:{A1+3}] offset:{L_KL-L_QL}", "qw"))
    at(b2, lambda: bar("qw", 11))
    for i, sl in enumerate((0, 0, 1, 1)):
        at(b2 + sl, lambda i=i: T.dsop(f"ds_read_b64_tr_b16 v[{QB+2*i}:{QB+2*i+1}], v{TG} offset:{i*1024}", f"qb{i>>1}"))
    sx = o("sx", 35)

    def s_x(i):
        T.wait_ds(f"qb{i}")
        c = "0" if i == 0 else f"v[{S}:{S+3}]"
        a(f"v_mfma_f32_16x16x32_bf16 v[{S}:{S+3}], v[{KX+4*i}:{KX+4*i+3}], v[{QB+4*i}:{QB+4*i+3}], {c}")

    def presum(d, src):
        return [f"v_mov_b32_dpp v{d}, v{src} quad_perm:[0,1,0,1] row_mask:0xf bank_mask:0xf",
                f"v_mov_b32_dpp v{d+1}, v{src+1} quad_perm:[0,1,0,1] row_mask:0xf bank_mask:0xf",
                f"v_add_f32_dpp v{d}, v{src+2}, v{d} quad_perm:[2,3,2,3] row_mask:0xf bank_mask:0xf",
                f"v_add_f32_dpp v{d+1}, v{src+3}, v{d+1} quad_perm:[2,3,2,3] row_mask:0xf bank_mask:0xf"]

    at(33, f"v_add_f32 v{A2}, v{A2}, v{A2+2}")
    at(34, f"v_add_f32 v{A2+1}, v{A2+1}, v{A2+3}")
    at(sx, lambda: s_x(0))
    at(sx, f"v_cvt_pk_bf16_f32 v{A2}, v{A2}, v{A2+1}")
    at(sx, lambda: s_x(1))
    at(sx, lambda: nops(2))
    at(36, lambda: stamp(4))
    ps = presum(S + 4, S)
    at(36, lambda: nops(3))
    at(37, lambda: nops(1))
    at(37, ps[0])
    at(37, ps[1])
    at(38, f"v_add_f32 v{A2+4}, v{A2+4}, v{A2+6}")
    at(38, f"v_add_f32 v{A2+5}, v{A2+5}, v{A2+7}")
    at(38, f"v_cvt_pk_bf16_f32 v{A2+1}, v{A2+4}, v{A2+5}")
    at(39, lambda: T.dsop(f"ds_write_b64 v{KW}, v[{A2}:{A2+1}]", "kw"))
    at(39, ps[2])
    at(39, ps[3])
    at(40, lambda: T.dsop(f"ds_write_b64 v{SPW}, v[{S+4}:{S+5}]", "kw"))
    KA = MA
    b3 = o("b3", 44)
    at(b3, lambda: bar("kw", 5))
    for i, sl in enumerate((0, 0, 1, 1)):
        at(b3 + sl, lambda i=i: T.dsop(f"ds_read_b64_tr_b16 v[{KA+2*i}:{KA+2*i+1}], v{TG} offset:{i*1024+512}", f"ka{i>>1}"))
    at(b3 + 2, lambda: T.dsop(f"ds_read2_b64 v[{S}:{S+3}], v{SPR} offset0:0 offset1:32", "sr"))
    SM = P
    TM = S + 4
    M0, M1 = S + 6, S + 7
    WO = {(2, 0): MA, (2, 1): MA + 16, (3, 0): MA + 24, (3, 1): A1}
    ONES = A1
    PVA = [MA + 16, A2 + 4, MISC]
    PA = SM
    WA = [KX, KX + 4, MA + 8, MA + 12]

    def ldwo(p, t, hf):
        r = WO[(p, t)] + 4 * hf
        T.dsop(f"ds_read_b128 v[{r}:{r+3}], v{WL} offset:{lds_frag_off(('o', (p, 1)), t) + 1024*hf}", f"wo{p}{t}")

    def ldc(r, tag, off=0):
        T.dsop(f"ds_read_b128 v[{r}:{r+3}], v{CONST} offset:{off}", tag)

    def s_m(j):
        T.wait_ds(f"ka{j}")
        c = "0" if j == 0 else f"v[{SM}:{SM+3}]"
        a(f"v_mfma_f32_16x16x32_bf16 v[{SM}:{SM+3}], v[{KA+4*j}:{KA+4*j+3}], v[{QB+4*j}:{QB+4*j+3}], {c}")

    def vpost(t):
        d = A3 + 4 * t
        return [f"v_add_f32 v{d}, v{d}, v{d+2}", f"v_add_f32 v{d+1}, v{d+1}, v{d+3}",
                f"v_cvt_pk_bf16_f32 v{A2+2+t}, v{d}, v{d+1}",
                f"v_cndmask_b32 v{PVB+8*t+2}, 0, v{A2+2+t}, s[34:35]",
                f"v_cndmask_b32 v{PVB+8*t+6}, v{A2+2+t}, 0, s[34:35]"]

    at(41, lambda: ldc(PVA[2], "pva"))
    at(42, lambda: ldc(PVA[1], "pva"))
    for i in range(4):
        at(40 + i, lambda i=i: zero(KX + 2 * i, 2))
    v0, v1 = vpost(0), vpost(1)
    at(45, v0[0])
    at(46, v0[1])
    at(47, lambda: ldc(ONES, "pva", 16))
    at(47, v0[2])
    at(48, lambda: ldc(ONES + 4, "pva", 16))
    at(48, v0[3])
    at(48, lambda: s_m(0))
    at(48, lambda: T.wait_ds("sr"))
    at(48, v0[4])
    at(48, f"v_max3_f32 v{M0}, v{S}, v{S+1}, v{S+2}")
    at(48, lambda: s_m(1))
    at(48, lambda: stamp(6))
    pm = presum(TM, SM)
    tail = [
        lambda: ldc(PVA[0], "pva"),
        f"v_max_f32 v{M0}, v{M0}, v{S+3}",
        v1[0], v1[1],
        f"v_max_f32_dpp v{M0}, v{M0}, v{M0} quad_perm:[2,3,0,1] row_mask:0xf bank_mask:0xf",
        v1[2],
        "s_mov_b32 s19, s27",
        "s_xor_b32 s27, s27, 0x40000",
        pm[0], pm[1], v1[3], pm[2], pm[3],
        f"v_max3_f32 v{M1}, v{M0}, v{TM}, v{TM+1}",
        f"v_max3_f32 v{M0}, v{M0}, v{TM}, v{TM+1}",
        v1[4],
        f"s_cmp_eq_u32 s18, {NSTEP-1}",
        f"v_permlane32_swap_b32 v{M0}, v{M1}",
        f"v_max_f32 v{SM}, v{M0}, v{M1}",
        f"v_max_f32 v{M0}, v{M0}, v{M1}",
        (f"buffer_store_dwordx4 v[{A2}:{A2+3}], v{LANE16}, s[8:11], s33 offen {XSC}" if not o("noex", 0) else "s_nop 0"),
        f"s_cbranch_scc1 {pfx}_done",
        f"v_permlane16_swap_b32 v{M0}, v{SM}",
        f"v_max_f32 v{M0}, v{M0}, v{SM}",
        f"v_mul_f32 v{M0}, s64, v{M0}",
    ]
    for x in tail:
        at(48, x)
    NSP = o("nsp", 2)

    def spec2(i):
        if i == 0:
            T.dsop(f"ds_write_b128 v{MW}, v[{MA}:{MA+3}]", "mw")
            if NSP:
                gemv(*seq[0])
            T.dsop(f"ds_write_b128 v{MW}, v[{MA+4}:{MA+7}] offset:1024", "mw")
        elif NSP:
            gemv(*seq[1])

    poll("p2", MA, 22, w2, o("pre2", 0), o("gap2", 16), o("dp2", 2), spec2, lambda: zero(A1, 8) if NSP else None)
    stamp(1)
    for i, (k, j, t) in enumerate(seq):
        if i >= NSP:
            gemv(k, j, t)
        for fn in acts[i + 1]:
            fn()
    sv = [S, S + 1, S + 2, S + 3, TM, TM + 1]
    for r in sv:
        a(f"v_fma_f32 v{r}, v{r}, s64, -v{M0}")
    for r in sv:
        a(f"v_exp_f32 v{r}, v{r}")
    a(f"v_cvt_pk_bf16_f32 v{PA}, v{S}, v{S+1}")
    a(f"v_cvt_pk_bf16_f32 v{PA+2}, v{S+2}, v{S+3}")
    a(f"v_cvt_pk_bf16_f32 v{PA+1}, v{TM}, v{TM+1}")
    a(f"v_cvt_pk_bf16_f32 v{PA+3}, v{TM}, v{TM+1}")
    T.wait_ds("pva")
    smf(PVA[0], PA, vwin(ONES))
    stampn(2)
    stamp(7)
    ldc(WA[3], "wa")
    a(f"v_mov_b64 v[{A3}:{A3+1}], -1")
    smf(PVA[1], PA, vwin(PVB))
    ldc(WA[2], "wa")
    a(f"v_mov_b64 v[{A3+2}:{A3+3}], -1")
    smf(PVA[2], PA, vwin(PVB + 8))
    nops(2)
    Z = PVA[0]
    a(f"v_add_f32 v{Z}, v{Z}, v{Z+2}")
    a(f"v_add_f32 v{Z+1}, v{Z+1}, v{Z+3}")
    a(f"v_rcp_f32 v{Z}, v{Z}")
    a(f"v_rcp_f32 v{Z+1}, v{Z+1}")
    OA = [X0, X0 + 4, X1, X1 + 4]
    stampn(2)

    def ldoa(j, u):
        T.dsop(f"ds_read_b64_tr_b16 v[{OA[j]+2*u}:{OA[j]+2*u+1}], v{TR+j} offset:{u*512}", f"oa{j}")

    for t in range(2):
        d = PVA[1 + t]
        a(f"v_add_f32 v{d}, v{d}, v{d+2}")
        a(f"v_add_f32 v{d+1}, v{d+1}, v{d+3}")
        a(f"v_mul_f32 v{d}, v{d}, v{Z}")
        a(f"v_mul_f32 v{d+1}, v{d+1}, v{Z+1}")
        a(f"v_cvt_pk_bf16_f32 v{d+2}, v{d}, v{d+1}")
        a(f"v_cvt_pk_bf16_f32 v{d+3}, v{d}, v{d+1}")
        T.dsop(f"ds_write_b64 v{QW}, v[{d+2}:{d+3}] offset:{512*t}", "ow")
    ldoa(0, 0)
    ldoa(0, 1)
    stampn(2)
    for i in range(4, 8, 2):
        a(f"v_mov_b64 v[{A3+i}:{A3+i+1}], -1")
    stampn(2)
    T.wait_ds("ow")
    a("s_barrier ; bar_ow")
    stampn(2)
    stamp(8)

    def wo(p, j):
        tags = [f"oa{j}"]
        if p >= 2 and j >= 2:
            tags.append(f"wo{p}{j-2}")
            b = vwin(WO[(p, j - 2)])
        else:
            b = wop(("o", (p, j >> 1)), j & 1)
        T.wait_ds(*tags)
        smf(WA[p], OA[j], b)

    def epi_c(p, i):
        d = WA[p]
        a(f"v_cvt_pk_bf16_f32 v{d+i}, v{d+2*i}, v{d+2*i+1}")

    def epi_s(p):
        d = WA[p]
        a(f"buffer_store_dwordx2 v[{d}:{d+1}], v{PS}, s[8:11], s19 offen {SC}")
        if p < 3:
            a("s_add_u32 s19, s19, 0x10000")

    ldoa(1, 0)
    ldoa(1, 1)
    wo(0, 0)
    stampn(2)
    ldoa(2, 0)
    wo(1, 0)
    ldoa(2, 1)
    wo(2, 0)
    ldoa(3, 0)
    wo(3, 0)
    ldoa(3, 1)
    stampn(2)
    lw = iter([(2, 0, 0), (2, 0, 1), (2, 1, 0), (2, 1, 1), (3, 0, 0), (3, 0, 1), (3, 1, 0), (3, 1, 1)])

    def nlw():
        x = next(lw, None)
        if x:
            ldwo(*x)
        else:
            nops(1)

    for p in range(4):
        wo(p, 1)
        nlw()
        if p:
            nops(2)
        wo(p, 2)
        nlw()
        if p:
            epi_c(p - 1, 0)
            epi_c(p - 1, 1)
        wo(p, 3)
        stampn(2)
        if p:
            epi_s(p - 1)
        else:
            nlw()
            nlw()
    a("""
    s_add_u32 s33, s33, 0x20000
    """)
    if ST:
        a("s_add_u32 s52, s52, s21")
    a("s_mov_b32 s21, 1")
    epi_c(3, 0)
    epi_c(3, 1)
    epi_s(3)
    stampn(2)
    stamp(9)
    R = A1
    a(f"s_waitcnt vmcnt({4 if o('noex', 0) else 5})")

    def spec1(i):
        c = "0" if i == 0 else f"v[{R}:{R+3}]"
        a(f"v_mfma_f32_16x16x32_bf16 v[{R}:{R+3}], v[{A3+4*i}:{A3+4*i+3}], v[{SEL}:{SEL+3}], {c}")
        if i == 1:
            nops(5)

    poll("p1", A3, 25, idle1(), o("pre1", 0), o("gap1", 16), o("dp1", 2), spec1, lambda: None)
    a(f"""
    s_xor_b32 s25, s25, 0x40000
    s_xor_b32 s26, s26, 0x40000
    v_permlane32_swap_b32 v{R}, v{R+2}
    v_permlane32_swap_b32 v{R+1}, v{R+3}
    v_add_f32 v{R}, v{R}, v{R+2}
    v_add_f32 v{R+1}, v{R+1}, v{R+3}
    s_add_u32 s18, s18, 1
    v_permlane16_swap_b32 v{R}, v{R+1}
    v_add_f32 v{R}, v{R}, v{R+1}
    v_mov_b32_dpp v{R+1}, v{R} quad_perm:[1,0,3,2] row_mask:0xf bank_mask:0xf
    v_cvt_pk_bf16_f32 v{MISC}, v{R}, v{R+1}
    buffer_store_dword v{MISC}, v{PUB}, s[8:11], s23 offen {SC}
    """)
    T.reset()
    stamp(10)
    a(f"s_branch {pfx}_step")
    for fn in ool:
        fn()


def hoist_waits(lines):
    out = list(lines)
    mn = lambda i: out[i].split()[0] if out[i].strip() else ""
    ism = lambda m: m.startswith("v_mfma") or m.startswith("v_smfmac")
    for i in range(len(out) - 1):
        if mn(i) == "s_waitcnt" and "lgkmcnt" in out[i] and ism(mn(i + 1)):
            j = i
            while j > 0 and mn(j - 1).startswith("v_") and not ism(mn(j - 1)):
                j -= 1
            if j < i and i - j <= 3:
                out.insert(j, out.pop(i))
    return out


def gen_chain_kernel(a, name, opt):
    ST = opt.get("stamps", 0)
    kernel_header(a, name)
    a(f"""
    s_memrealtime s[66:67]
    s_cmp_ge_u32 s2, 256
    s_cbranch_scc1 C_exit
    s_load_dwordx2 s[4:5], s[0:1], {ARG_DBG}
    s_load_dwordx2 s[6:7], s[0:1], {ARG_WS}
    s_getreg_b32 s3, hwreg(HW_REG_XCC_ID)
    s_and_b32 s3, s3, 0xf
    v_lshrrev_b32 v2, 6, v0
    v_readfirstlane_b32 s17, v2
    s_waitcnt lgkmcnt(0)
    s_mov_b32 s65, s66
    """)
    make_srd(a, 8, 6, WS_SIZE)
    make_srd(a, 12, 4, 256)
    a(f"""
    s_cmp_lg_u32 s3, 0
    s_cbranch_scc1 C_exit
    v_mov_b32 v3, {L_KL:#x}
    v_mov_b32 v4, 1
    v_mov_b32 v5, 0
    s_cmp_lg_u32 s17, 0
    s_cbranch_scc1 C_noticket
    s_mov_b64 exec, 1
    buffer_atomic_add v4, v5, s[12:15], 0 offen sc0 sc1
    s_waitcnt vmcnt(0)
    ds_write_b32 v3, v4
    s_mov_b64 exec, -1
    s_waitcnt lgkmcnt(0)
    C_noticket:
    s_barrier
    ds_read_b32 v4, v3
    s_waitcnt lgkmcnt(0)
    v_readfirstlane_b32 s16, v4
    s_cmp_ge_u32 s16, 32
    s_cbranch_scc1 C_exit
    """)
    gen_setup(a, opt)
    gen_prefetch0(a)
    a(f"""
    s_waitcnt vmcnt(0)
    s_barrier
    s_cmp_lg_u32 s17, 0
    s_cbranch_scc1 C_nobar
    v_mov_b32 v32, 4
    v_mov_b32 v33, 1
    s_mov_b64 exec, 1
    buffer_atomic_add v33, v32, s[12:15], 0 offen sc1
    s_mov_b32 s21, 0
    C_barpoll:
    buffer_load_dword v33, v32, s[12:15], 0 offen sc1
    s_waitcnt vmcnt(0)
    v_readfirstlane_b32 s19, v33
    s_add_u32 s21, s21, 1
    s_cmp_gt_u32 s21, {TIMEOUT}
    s_cbranch_scc1 C_fail
    s_cmp_lt_u32 s19, 32
    s_cbranch_scc1 C_barpoll
    s_mov_b64 exec, -1
    C_nobar:
    s_barrier
    s_memrealtime s[68:69]
    s_memtime s[28:29]
    """)
    gen_loop(a, opt)
    a(f"""
    C_done:
    s_memrealtime s[30:31]
    s_memtime s[32:33]
    s_waitcnt lgkmcnt(0)
    s_sub_u32 s30, s30, s68
    s_sub_u32 s32, s32, s28
    """)
    if ST:
        a(f"""
        s_lshl_b32 s19, s16, 8
        s_lshl_b32 s20, s17, 6
        s_add_u32 s19, s19, s20
        s_add_u32 s19, s19, {WS_DBG:#x}
        v_mov_b32 v36, 0
        s_mov_b64 exec, 1
        """)
        for i in range(14):
            a(f"v_mov_b32 v32, s{40+i}")
            a(f"buffer_store_dword v32, v36, s[8:11], s19 offen offset:{4*i}")
        a("s_mov_b64 exec, -1")
    a(f"""
    s_cmp_lg_u32 s16, 0
    s_cbranch_scc1 C_exit
    s_cmp_lg_u32 s17, 0
    s_cbranch_scc1 C_exit
    v_mov_b32 v32, s30
    v_mov_b32 v33, s32
    v_mov_b32 v34, s65
    v_mov_b32 v35, s68
    v_mov_b32 v36, 16
    s_mov_b64 exec, 1
    buffer_store_dwordx4 v[32:35], v36, s[12:15], 0 offen
    s_waitcnt vmcnt(0)
    s_endpgm
    C_fail:
    v_mov_b32 v32, 0xdead
    v_mov_b32 v33, 8
    s_mov_b64 exec, 1
    buffer_store_dword v32, v33, s[12:15], 0 offen
    s_waitcnt vmcnt(0)
    C_exit:
    s_endpgm
    """)


if __name__ == "__main__":
    import hazard
    opt = {}
    for kv in sys.argv[2:]:
        k, v = kv.split("=")
        opt[k] = v if k in ("sc", "xsc", "drop") else int(v)
    a = Asm()
    a.raw(f"; @launch kernel=chain_kernel grid=(256,1,1) block=(256,1,1) lds={LDS_BYTES}")
    a.raw('.amdgcn_target "amdgcn-amd-amdhsa--gfx950"')
    a.raw(".text")
    gen_chain_kernel(a, "chain_kernel", opt)
    a.lines = hoist_waits(a.lines)
    a.lines = hazard.fix(a.lines, True)
    if opt.get("drop"):
        import re
        pats = opt["drop"].split(",")
        out, inloop = [], False
        for ln in a.lines:
            if ln.strip() == "C_step:":
                inloop = True
            if ln.strip() == "C_done:":
                inloop = False
            if inloop and any(re.search(p, ln) for p in pats):
                continue
            out.append(ln)
        a.lines = out
    a.raw('.section .rodata,"a"')
    a.raw(".p2align 6")
    a.raw(kernel_desc("chain_kernel", 512, 256))
    open(sys.argv[1], "w").write(a.text())
```

```python
import sys, math
sys.path.insert(0, "gen")
from asmlib import *
from layout import *
import hazard, chain4 as ch, workers as wk
from workers import f2u, srd_from_arg, xreduce_add, xreduce_max

TIMEOUT = 400000
L_TK = 0x27000


def tstamp(a, opt, idx, dw=None):
    if opt.get("dbg") and dw is not None:
        lab = a.uid("TD")
        a(f"""
        s_cmp_lg_u32 s17, 0
        s_cbranch_scc1 {lab}
        s_memrealtime s[98:99]
        s_waitcnt lgkmcnt(0)
        s_mov_b64 s[100:101], exec
        s_mov_b64 exec, 1
        v_mov_b32 v254, s98
        v_not_b32 v255, v254
        v_mov_b32 v253, 0
        buffer_atomic_umax v254, v253, s[12:15], 0 offen offset:{dw*8} sc1
        buffer_atomic_umax v255, v253, s[12:15], 0 offen offset:{dw*8+4} sc1
        s_mov_b64 exec, s[100:101]
        {lab}:
        """)
    if not opt.get("tl"):
        return
    lab = a.uid("TS")
    a(f"""
    s_cmp_lg_u32 s17, 0
    s_cbranch_scc1 {lab}
    s_memrealtime s[98:99]
    s_waitcnt lgkmcnt(0)
    s_mov_b64 s[100:101], exec
    s_mov_b64 exec, 1
    v_mov_b32 v254, s98
    v_mov_b32 v255, 0
    buffer_store_dword v254, v255, s[8:11], s97 offen offset:{idx*4}
    s_mov_b64 exec, s[100:101]
    {lab}:
    """)


def poll_ge(a, vaddr, soff, thr, vtmp, sleep=2, x2=False, srd=8):
    lab = a.uid("PL")
    a("s_mov_b32 s21, 0")
    a(f"{lab}:")
    if x2:
        a(f"buffer_load_dwordx2 v[{vtmp}:{vtmp+1}], v{vaddr}, s[{srd}:{srd+3}], {soff} offen sc1")
    else:
        a(f"buffer_load_dword v{vtmp}, v{vaddr}, s[{srd}:{srd+3}], {soff} offen sc1")
    a(f"""
    s_add_u32 s21, s21, 1
    s_cmp_gt_u32 s21, {TIMEOUT}
    s_cbranch_scc1 F_fail
    s_waitcnt vmcnt(0)
    """)
    if x2:
        a(f"v_min_u32 v{vtmp}, v{vtmp}, v{vtmp+1}")
    a(f"""
    v_cmp_gt_u32 vcc, {thr}, v{vtmp}
    s_cbranch_vccz {lab}_ok
    s_sleep {sleep}
    s_branch {lab}
    {lab}_ok:
    """)


def flag_store(a, sval, soff, t0):
    a(f"""
    v_mov_b32 v{t0}, {sval}
    s_mov_b64 exec, 1
    buffer_store_dword v{t0}, v4, s[8:11], {soff} offen sc1
    s_mov_b64 exec, -1
    """)


def wait_ready(a):
    a(f"v_mov_b32 v252, {D_READY}")
    poll_ge(a, 252, 0, 1, 253, sleep=2, srd=12)


def prologue(a, opt):
    a(f"""
    s_cmp_ge_u32 s2, 256
    s_cbranch_scc1 F_exit
    s_load_dwordx2 s[4:5], s[0:1], {ARG_DBG}
    s_load_dwordx2 s[6:7], s[0:1], {ARG_WS}
    s_load_dwordx2 s[20:21], s[0:1], 0
    s_getreg_b32 s3, hwreg(HW_REG_XCC_ID)
    s_and_b32 s3, s3, 7
    v_and_b32 v1, 63, v0
    v_lshrrev_b32 v2, 6, v0
    v_readfirstlane_b32 s17, v2
    v_lshlrev_b32 v4, 4, v1
    s_waitcnt lgkmcnt(0)
    """)
    if opt.get("fakexcc"):
        a(f"s_cmp_lt_u32 s2, {opt['fakexcc']}")
        a("s_cselect_b32 s19, 1, 0")
        a("s_max_u32 s3, s3, s19")
    make_srd(a, 8, 6, WS_SIZE)
    make_srd(a, 12, 4, 256)
    if opt.get("tl"):
        a(f"s_lshl_b32 s97, s2, 7")
        a(f"s_add_u32 s97, s97, {WS_DBG:#x}")
    tstamp(a, opt, 0, 1)
    a(f"""
    s_cmp_lg_u32 s2, 255
    s_cbranch_scc1 F_nozero
    v_lshlrev_b32 v5, 4, v0
    v_mov_b32 v8, 0
    v_mov_b32 v9, 0
    v_mov_b32 v10, 0
    v_mov_b32 v11, 0
    """)
    for i in range(FLAG_BYTES // 4096):
        a(f"s_mov_b32 s19, {WS_FLAGS + i*4096:#x}")
        a(f"buffer_store_dwordx4 v[8:11], v5, s[8:11], s19 offen sc1")
    a(f"""
    F_nozero:
    s_bfe_u32 s16, s2, 0x50003
    s_cmp_lg_u32 s17, 0
    s_cbranch_scc1 F_noclaim
    s_lshl_b32 s19, s3, 2
    v_mov_b32 v5, s19
    s_lshl_b32 s19, 1, s16
    v_mov_b32 v124, s19
    s_mov_b64 exec, 1
    buffer_atomic_or v124, v5, s[12:15], 0 offen offset:{D_MASK} sc0 sc1
    s_mov_b64 exec, -1
    F_noclaim:
    s_lshl_b32 s19, s3, 5
    s_add_u32 s16, s16, s19
    s_mov_b32 s18, 0
    F_dispatch:
    s_cmp_ge_u32 s16, 32
    s_cbranch_scc1 F_worker
    """)


def confirm(a, opt, lds, t0, t1):
    lab = a.uid("CN")
    a(f"""
    s_cmp_lg_u32 s18, 0
    s_cbranch_scc1 {lab}_ok
    v_mov_b32 v{t0}, {lds:#x}
    s_cmp_lg_u32 s17, 0
    s_cbranch_scc1 {lab}_a
    s_mov_b64 exec, 1
    ds_write_b32 v{t0}, v124
    s_mov_b64 exec, -1
    {lab}_a:
    s_waitcnt lgkmcnt(0)
    s_barrier
    ds_read_b32 v{t1}, v{t0}
    s_cmp_lg_u32 s2, 255
    s_cbranch_scc1 {lab}_b
    s_cmp_lg_u32 s17, 0
    s_cbranch_scc1 {lab}_b
    v_mov_b32 v{t0}, {D_READY}
    v_mov_b32 v124, 1
    s_mov_b64 exec, 1
    buffer_store_dword v124, v{t0}, s[12:15], 0 offen sc1
    s_mov_b64 exec, -1
    {lab}_b:
    s_waitcnt lgkmcnt(0)
    v_readfirstlane_b32 s19, v{t1}
    s_bitcmp1_b32 s19, s16
    s_cbranch_scc1 F_loser
    {lab}_ok:
    """)
    if opt.get("tl"):
        a(f"v_mov_b32 v{t0}, s16")
        a(f"v_mov_b32 v{t1}, 0")
        a("s_mov_b64 exec, 1")
        a(f"buffer_store_dword v{t0}, v{t1}, s[8:11], s97 offen offset:124")
        a("s_mov_b64 exec, -1")


def loser(a, opt):
    a(f"""
    F_loser:
    v_mbcnt_lo_u32_b32 v1, -1, 0
    v_mbcnt_hi_u32_b32 v1, -1, v1
    s_lshl_b32 s19, s17, 6
    v_add_u32 v0, s19, v1
    v_lshlrev_b32 v4, 4, v1
    v_mov_b32 v3, {L_TK:#x}
    s_waitcnt vmcnt(0) lgkmcnt(0)
    s_barrier
    s_cmp_lg_u32 s17, 0
    s_cbranch_scc1 F_lwait
    s_lshl_b32 s19, s3, 2
    s_add_u32 s19, s19, {D_LOSE}
    v_mov_b32 v5, s19
    v_mov_b32 v6, 1
    s_mov_b64 exec, 1
    buffer_atomic_add v6, v5, s[12:15], 0 offen sc0 sc1
    s_waitcnt vmcnt(0)
    s_mov_b64 exec, -1
    v_readfirstlane_b32 s16, v6
    v_and_b32 v5, 15, v1
    v_lshlrev_b32 v5, 2, v5
    s_mov_b32 s21, 0
    F_ovf:
    buffer_load_dword v6, v5, s[12:15], 0 offen offset:{D_MASK} sc1
    s_add_u32 s21, s21, 1
    s_cmp_gt_u32 s21, {TIMEOUT}
    s_cbranch_scc1 F_fail
    s_waitcnt vmcnt(0)
    s_mov_b32 s19, 0
    """)
    for x in range(16):
        a(f"v_readlane_b32 s{40+x}, v6, {x}")
    for x in range(8):
        a(f"s_bcnt0_i32_b32 s{56+x}, s{40+x}")
        a(f"s_add_u32 s19, s19, s{48+x}")
        a(f"s_sub_u32 s19, s19, s{56+x}")
    a("""
    s_cmp_lg_u32 s19, 0
    s_cbranch_scc1 F_ovf
    """)
    for x in range(8):
        a(f"s_cmp_eq_u32 s3, {x}")
        a(f"s_cselect_b32 s22, s{40+x}, s22")
    a(f"""
    s_bcnt0_i32_b32 s19, s22
    s_mov_b32 s23, s3
    s_cmp_lt_u32 s16, s19
    s_cbranch_scc1 F_pick
    s_sub_u32 s16, s16, s19
    """)
    for x in range(8):
        a(f"""
        s_max_u32 s19, s{48+x}, s{56+x}
        s_sub_u32 s19, s19, s{56+x}
        s_cmp_gt_u32 s3, {x}
        s_cselect_b32 s19, s19, 0
        s_add_u32 s16, s16, s19
        """)
    for x in range(8):
        a(f"""
        s_max_u32 s20, s{48+x}, s{56+x}
        s_sub_u32 s20, s20, s{48+x}
        s_mov_b32 s19, s{48+x}
        s_mov_b32 s22, s{40+x}
        s_mov_b32 s23, {x}
        s_cmp_lt_u32 s16, s20
        s_cbranch_scc1 F_ovf_done
        s_sub_u32 s16, s16, s20
        """)
    a(f"""
    s_branch F_fail
    F_ovf_done:
    s_add_u32 s16, s16, s19
    v_mov_b32 v5, {D_SLOW}
    v_mov_b32 v6, 1
    s_mov_b64 exec, 1
    buffer_store_dword v6, v5, s[12:15], 0 offen sc1
    s_waitcnt vmcnt(0)
    s_mov_b64 exec, -1
    F_pick:
    s_ff0_i32_b32 s19, s22
    s_bitset1_b32 s22, s19
    s_sub_u32 s16, s16, 1
    s_cbranch_scc0 F_pick
    s_lshl_b32 s23, s23, 5
    s_add_u32 s19, s19, s23
    v_mov_b32 v6, s19
    ds_write_b32 v3, v6
    s_waitcnt lgkmcnt(0)
    F_lwait:
    s_barrier
    ds_read_b32 v6, v3
    s_waitcnt lgkmcnt(0)
    v_readfirstlane_b32 s16, v6
    s_mov_b32 s18, 1
    s_barrier
    s_branch F_dispatch
    """)


def chain_role(a, opt):
    o2 = dict(opt)
    o2["sc"] = "sc1"
    L16 = ch.LANE16
    a(f"""
    s_lshl_b32 s29, s16, 7
    s_add_u32 s29, s29, {F_PG:#x}
    s_lshl_b32 s28, s17, 2
    s_add_u32 s28, s28, s29
    s_add_u32 s28, s28, 96
    """)
    state = {}
    H1, H2, H3 = opt.get("h1", 8), opt.get("h2", 11), opt.get("h3", 14)

    def hook(i, T, arr_ok):
        if i == 0:
            confirm(a, opt, ch.lds_frag_off(("v", 5), 0), 30, 31)
        if arr_ok and not state.get("arr"):
            state["arr"] = 1
            a(f"""
            s_cmp_lg_u32 s17, 0
            s_cbranch_scc1 C_noarr
            v_mov_b32 v32, {D_CBAR}
            v_mov_b32 v33, 1
            s_mov_b64 exec, 1
            buffer_atomic_add v33, v32, s[12:15], 0 offen sc1
            s_mov_b64 exec, -1
            C_noarr:
            """)
        if i == H1:
            a(f"v_mov_b32 v31, {D_READY}")
            T.vmop("buffer_load_dword v30, v31, s[12:15], 0 offen sc1", "rd")
        if i == H2:
            T.wait_vm("rd")
            a("v_readfirstlane_b32 s19, v30")
            a("s_cmp_lg_u32 s19, 0")
            a("s_cbranch_scc1 C_rdok")
            a("s_mov_b64 s[22:23], vcc")
            poll_ge(a, 31, 0, 1, 30, sleep=1, srd=12)
            a("s_mov_b64 vcc, s[22:23]")
            a(f"""
            C_rdok:
            v_lshrrev_b32 v36, 2, v{L16}
            v_and_b32 v36, 63, v36
            """)
            T.vmop("buffer_load_dword v37, v36, s[8:11], s29 offen sc1", "pg")
        if i == H3:
            assert state.get("arr")
            T.wait_vm("pg")
            a("s_mov_b32 s19, 0")
            a("s_mov_b32 s21, 0")
            a("s_branch C_kv0_chk")
            ch.gen_kvwait(a, "C_kv0", "F_fail", 36, 37)
            a(f"v_mov_b32 v31, {D_CBAR}")
            T.vmop("buffer_load_dwordx2 v[46:47], v31, s[12:15], 0 offen sc1", "cb")
            ch.gen_prefetch0(a, "sc1", T)
            T.vmop("buffer_load_dword v37, v36, s[8:11], s29 offen sc1", "pg")

    ch.gen_setup(a, o2, hook)
    if opt.get("tl"):
        a("v_mov_b32 v40, v254\nv_mov_b32 v41, v255")
        tstamp(a, opt, 1)
        a("v_mov_b32 v254, v40\nv_mov_b32 v255, v41")
        a("v_mov_b32 v41, 0")
        a("s_mov_b64 exec, 1")
        a("s_cmp_lg_u32 s17, 0")
        a("s_cbranch_scc1 C_nost")
        for i in range(9):
            a(f"v_mov_b32 v40, s{66+2*i}")
            a(f"buffer_store_dword v40, v41, s[8:11], s97 offen offset:{32+4*i}")
        a("C_nost:")
        a("s_mov_b64 exec, -1")
    a(f"""
    s_mov_b32 s21, 0
    s_branch C_cbchk
    C_cbl:
    buffer_load_dwordx2 v[46:47], v31, s[12:15], 0 offen sc1
    s_add_u32 s21, s21, 1
    s_cmp_gt_u32 s21, {TIMEOUT}
    s_cbranch_scc1 F_fail
    C_cbchk:
    s_waitcnt vmcnt(0)
    v_readfirstlane_b32 s19, v46
    v_readfirstlane_b32 s20, v47
    s_cmp_lt_u32 s19, 32
    s_cbranch_scc1 C_cbl
    s_mov_b32 s19, 0
    s_branch C_kv1_chk
    """)
    ch.gen_kvwait(a, "C_kv1", "F_fail", 36, 37)
    a("s_barrier")
    if opt.get("tl") or opt.get("dbg"):
        a("v_mov_b32 v40, v254\nv_mov_b32 v41, v255\nv_mov_b32 v42, v253")
        tstamp(a, opt, 2, 2)
        a("s_waitcnt vmcnt(0)")
        a("v_mov_b32 v254, v40\nv_mov_b32 v255, v41\nv_mov_b32 v253, v42")
    a(f"""
    s_cmp_lg_u32 s20, 0
    s_cbranch_scc1 CS_entry
    """)
    for pfx, sc in (("C", ""), ("CS", "sc1")):
        if pfx == "CS":
            a("CS_entry:")
        o3 = dict(opt)
        o3.update(sc=sc, xsc="sc1", fused=1)
        ch.gen_loop(a, o3, pfx)
        a(f"{pfx}_fail:")
        a("s_branch F_fail")
        a(f"""
        {pfx}_done:
        v_mov_b32 v32, 64
        s_waitcnt vmcnt(0)
        s_mov_b64 exec, 1
        buffer_store_dword v32, v{L16}, s[8:11], s28 offen sc1
        s_mov_b64 exec, -1
        """)
        tstamp(a, opt, 3, 3)
        a("s_endpgm")


XR, ACC = 24, 152


def gemm1_issue_weights(a):
    sn, dma = wk.gen_gemm1(a, None, 40, 0, "G1")


def gemm1_main(a, opt):
    a("s_waitcnt vmcnt(0)")
    a("s_barrier")
    for ks in range(16):
        for ct in range(4):
            for u in range(2):
                r = (ks * 4 + ct) * 4 + u * 2
                a(f"ds_read_b64_tr_b16 a[{r}:{r+1}], v{14+ct} offset:{ks*4096+u*512}")
        a("s_waitcnt lgkmcnt(0)")
    a(f"""
    s_and_b32 s19, s40, 63
    s_lshr_b32 s20, s19, 1                 ; head
    s_and_b32 s21, s40, 1                  ; half
    s_lshl_b32 s42, s17, 18
    s_lshl_b32 s22, s20, 13
    s_add_u32 s42, s42, s22                ; w*256K + h*8K
    s_lshl_b32 s44, s20, 7
    s_lshl_b32 s22, s21, 2
    s_add_u32 s44, s44, s22
    s_add_u32 s44, s44, {F_PG:#x}
    s_mov_b32 s43, 0x100000
    s_cmp_ge_u32 s40, 192
    s_cbranch_scc1 G_bH
    s_cmp_ge_u32 s40, 128
    s_cbranch_scc1 G_bQ
    s_lshl_b32 s22, s17, 4
    s_add_u32 s44, s44, s22
    s_cmp_ge_u32 s40, 64
    s_cbranch_scc1 G_bV
    s_lshl_b32 s22, s21, 11
    s_add_u32 s42, s42, s22
    s_lshr_b32 s48, s42, 1
    s_lshl_b32 s22, s21, 10
    s_add_u32 s48, s48, s22
    s_add_u32 s48, s48, {WS_KM:#x}         ; w*128K + h*4K + half*2K
    s_add_u32 s42, s42, {WS_KF:#x}
    s_branch G_bdone
    G_bV:
    s_add_u32 s44, s44, 8
    s_lshl_b32 s22, s21, 12
    s_add_u32 s42, s42, s22
    s_add_u32 s42, s42, {WS_VF:#x}
    s_branch G_bdone
    G_bQ:
    s_lshl_b32 s22, s17, 3
    s_add_u32 s44, s44, s22
    s_add_u32 s44, s44, 64
    s_lshl_b32 s22, s21, 11
    s_add_u32 s42, s42, s22
    s_lshl_b32 s22, s20, 12
    s_sub_u32 s48, s42, s22
    s_add_u32 s48, s48, {WS_OF:#x}         ; w*256K + h*4K + half*2K
    s_add_u32 s42, s42, {WS_QF:#x}
    s_branch G_bdone
    G_bH:
    s_sub_u32 s19, s40, 192
    s_lshl_b32 s44, s19, 4
    s_lshl_b32 s22, s17, 2
    s_add_u32 s44, s44, s22
    s_add_u32 s44, s44, {F_HP:#x}
    s_mul_i32 s42, s17, {2*43*1024}
    s_lshl_b32 s19, s19, 11
    s_add_u32 s42, s42, s19
    s_add_u32 s42, s42, {WS_HF:#x}
    s_mov_b32 s43, {8*43*1024}
    G_bdone:
    s_cmp_eq_u32 s40, 213
    s_cselect_b32 s20, 0x7ffff000, 0
    v_add_u32 v19, s20, v4
    v_lshlrev_b32 v20, 3, v1
    v_and_b32 v23, 63, v20
    """)
    if opt.get("hold"):
        a(f"s_cmp_lt_u32 s40, {opt['hold']-1}")
        a("s_cbranch_scc1 G_nohold")
        a(f"v_mov_b32 v252, {D_CBAR}")
        poll_ge(a, 252, 0, 32, 253, sleep=32, srd=12)
        a("G_nohold:")
    a(f"s_mov_b32 s22, {F_LN:#x}")
    poll_ge(a, 23, "s22", 1, 210, sleep=2, x2=True)
    tstamp(a, opt, 2, 5)
    order = [(ks, tt) for ks in range(16) for tt in range(2)]

    def ld(i):
        ks, tt = order[i]
        if ks % 4 == 0:
            a(f"s_add_u32 s{46+tt}, s45, {tt*16384 + ks*1024}")
        a(f"buffer_load_dwordx4 v[{XR+4*i}:{XR+4*i+3}], v4, s[8:11], s{46+tt} offen offset:{(ks%4)*1024} sc1")

    a(f"""
    s_lshl_b32 s45, s17, 15
    s_add_u32 s45, s45, {WS_XN:#x}
    """)
    for i in range(32):
        ld(i)
    a(f"""
    s_sub_u32 s19, s40, 192
    s_lshl_b32 s19, s19, 7
    s_cmp_lt_u32 s40, 192
    s_cselect_b32 s19, 0, s19
    buffer_load_dwordx2 v[200:201], v18, s[60:63], s19 offen
    buffer_load_dwordx2 v[202:203], v18, s[60:63], s19 offen offset:32
    buffer_load_dwordx2 v[204:205], v18, s[60:63], s19 offen offset:64
    buffer_load_dwordx2 v[206:207], v18, s[60:63], s19 offen offset:96
    buffer_load_dwordx2 v[208:209], v18, s[60:63], s19 offen offset:96
    s_mov_b32 s41, 0
    v_mov_b64 v[212:213], -1
    v_mov_b64 v[214:215], -1
    s_cmp_ge_u32 s40, 192
    s_cbranch_scc1 G_H
    s_cmp_ge_u32 s40, 128
    s_cbranch_scc1 G_Q_entry
    s_cmp_ge_u32 s40, 64
    s_cbranch_scc1 G_V
    """)

    def loop(kind):
        NX = {"K": 2, "Q": 4}.get(kind, 0)
        a(f"G_{kind}_entry:")
        for _ in range(NX):
            a("buffer_load_dwordx2 v[208:209], v18, s[60:63], s19 offen offset:96")
        a(f"G_{kind}:")
        a("""
        s_add_u32 s45, s45, 0x20000
        s_cmp_eq_u32 s41, 15
        s_cselect_b32 s45, 0x7ff00000, s45
        """)
        for i, (ks, tt) in enumerate(order):
            a(f"s_waitcnt vmcnt({36+NX})")
            for ct in range(4):
                d = ACC + (tt * 4 + ct) * 4
                w = (ks * 4 + ct) * 4
                x = XR + 4 * i
                c = "0" if ks == 0 else f"v[{d}:{d+3}]"
                if kind == "V":
                    a(f"v_mfma_f32_16x16x32_bf16 v[{d}:{d+3}], v[{x}:{x+3}], a[{w}:{w+3}], {c}")
                else:
                    a(f"v_mfma_f32_16x16x32_bf16 v[{d}:{d+3}], a[{w}:{w+3}], v[{x}:{x+3}], {c}")
            ld(i)
        a("s_waitcnt vmcnt(32)")
        flag_store(a, "s41", "s44", 21)
        if kind == "V":
            for ct in range(4):
                d0 = ACC + ct * 4
                d1 = ACC + (4 + ct) * 4
                a(f"""
                v_cvt_pk_bf16_f32 v{d0}, v{d0}, v{d0+1}
                v_cvt_pk_bf16_f32 v{d0+1}, v{d0+2}, v{d0+3}
                v_cvt_pk_bf16_f32 v{d0+2}, v{d1}, v{d1+1}
                v_cvt_pk_bf16_f32 v{d0+3}, v{d1+2}, v{d1+3}
                buffer_store_dwordx4 v[{d0}:{d0+3}], v4, s[8:11], s42 offen offset:{ct*1024} sc1
                """)
        elif kind in "KQ":
            for j in range(NX):
                if j == 2:
                    a("s_add_u32 s19, s48, 0x20000")
                a(f"buffer_store_dwordx4 v[212:215], v4, s[8:11], s{48 if j < 2 else 19} offen offset:{(j&1)*1024} sc1")
            a(f"s_add_u32 s48, s48, {0x80000 if kind == 'K' else 0x100000:#x}")
            a("s_add_u32 s19, s42, 0x1000")
            for tt in range(2):
                for p in range(2):
                    d0 = ACC + (tt * 4 + p) * 4
                    d1 = d0 + 8
                    a(f"""
                    v_cvt_pk_bf16_f32 v{d0}, v{d0}, v{d0+1}
                    v_cvt_pk_bf16_f32 v{d0+1}, v{d0+2}, v{d0+3}
                    v_cvt_pk_bf16_f32 v{d0+2}, v{d1}, v{d1+1}
                    v_cvt_pk_bf16_f32 v{d0+3}, v{d1+2}, v{d1+3}
                    buffer_store_dwordx4 v[{d0}:{d0+3}], v4, s[8:11], s{42 if tt == 0 else 19} offen offset:{p*1024} sc1
                    """)
        else:
            a(f"s_add_u32 s19, s42, {43*1024}")
            for ct in range(4):
                for j in range(2):
                    a(f"v_lshlrev_b32 v{184+ct*4+2*j}, 16, v{200+2*ct+j}")
                    a(f"v_and_b32 v{184+ct*4+2*j+1}, 0xffff0000, v{200+2*ct+j}")
            for tt in range(2):
                for p in range(2):
                    d0 = ACC + (tt * 4 + 2 * p) * 4
                    for j in range(4):
                        r0 = d0 + 2 * j
                        bi = 184 + (2 * p + (j >> 1)) * 4 + (j & 1) * 2
                        a(f"""
                        v_cvt_pk_bf16_f32 v{r0+1}, v{r0}, v{r0+1}
                        v_lshlrev_b32 v{r0}, 16, v{r0+1}
                        v_and_b32 v{r0+1}, 0xffff0000, v{r0+1}
                        v_add_f32 v{r0}, v{r0}, v{bi}
                        v_add_f32 v{r0+1}, v{r0+1}, v{bi+1}
                        v_cvt_pk_bf16_f32 v{r0+1}, v{r0}, v{r0+1}
                        v_lshlrev_b32 v{r0}, 16, v{r0+1}
                        v_and_b32 v{r0+1}, 0xffff0000, v{r0+1}
                        v_max_f32 v{r0}, 0, v{r0}
                        v_max_f32 v{r0+1}, 0, v{r0+1}
                        v_mul_f32 v{r0}, v{r0}, v{r0}
                        v_mul_f32 v{r0+1}, v{r0+1}, v{r0+1}
                        v_cvt_pk_bf16_f32 v{d0+j}, v{r0}, v{r0+1}
                        """)
                    va = 4 if p == 0 else 19
                    a(f"buffer_store_dwordx4 v[{d0}:{d0+3}], v{va}, s[8:11], s{42 if tt == 0 else 19} offen offset:{p*1024} sc1")
        a(f"""
        s_add_u32 s42, s42, s43
        s_add_u32 s41, s41, 1
        s_cmp_eq_u32 s41, 1
        s_cbranch_scc1 G_{kind}_first
        s_cmp_lt_u32 s41, 16
        s_cbranch_scc1 G_{kind}
        s_branch G_end
        G_{kind}_first:
        s_waitcnt vmcnt(0)
        """)
        flag_store(a, "s41", "s44", 21)
        poll_ge(a, 20, "s22", 1, 210, sleep=2, x2=True)
        a(f"s_branch G_{kind}")

    for kind in "KQVH":
        loop(kind)
    a("G_end:")
    a("s_waitcnt vmcnt(0)")
    flag_store(a, "16", "s44", 21)
    a(f"""
    s_barrier
    G_add:
    s_cmp_lg_u32 s17, 0
    s_cbranch_scc1 G_noadd
    v_lshlrev_b32 v20, 7, v1
    v_mov_b32 v21, 1
    s_mov_b32 s19, {F_G1:#x}
    s_mov_b64 exec, 0xffffffff
    buffer_atomic_add v21, v20, s[8:11], s19 offen sc1
    s_mov_b64 exec, -1
    G_noadd:
    """)


def lane_ids(a):
    a("""
    v_and_b32 v120, 15, v1
    v_lshrrev_b32 v121, 4, v1
    v_lshrrev_b32 v122, 2, v120
    v_and_b32 v123, 3, v120
    """)


L_ATT = wk.L_RED + 0x4000
Q_, K_, V_, KVM_, KA_, S_ = 24, 40, 72, 104, 120, 128


def attn_consts(a):
    a(f"""
    s_lshr_b32 s19, s17, 1
    s_lshl_b32 s24, s43, 1
    s_add_u32 s24, s24, s19
    s_lshl_b32 s25, s24, 7
    s_add_u32 s25, s25, {F_PG:#x}
    s_lshl_b32 s19, s17, 11
    s_add_u32 s19, s19, {L_ATT:#x}
    v_lshrrev_b32 v20, 3, v120
    v_xor_b32 v21, v121, v20
    v_lshlrev_b32 v2, 8, v20
    v_lshl_add_u32 v2, v21, 6, v2
    v_and_b32 v21, 7, v120
    v_lshl_add_u32 v2, v21, 3, v2
    v_add_u32 v2, s19, v2
    v_lshrrev_b32 v20, 1, v121
    v_xor_b32 v21, v123, v20
    v_lshlrev_b32 v3, 8, v20
    v_lshl_add_u32 v3, v21, 6, v3
    v_and_b32 v21, 1, v121
    v_lshl_add_u32 v3, v21, 5, v3
    v_lshl_add_u32 v3, v122, 3, v3
    v_add_u32 v3, s19, v3
    s_mov_b32 s73, {f2u(wk.C_SCALE):#x}
    s_mov_b32 s72, {f2u(wk.LOG2E):#x}
    s_and_b32 s19, s41, 1
    s_lshl_b32 s19, s19, 4
    v_add_u32 v20, s19, v120
    v_lshlrev_b32 v21, 2, v121
    v_lshl_add_u32 v10, v120, 10, v11
    s_and_b32 s19, s17, 1
    s_lshl_b32 s19, s19, 10
    s_add_u32 s19, s19, {wk.L_RED:#x}
    v_add_u32 v19, s19, v4
    """)
    for t in range(2):
        for i in range(4):
            a(f"v_add_u32 v22, {16*t+i}, v21")
            a(f"v_cmp_le_u32 s[{56+8*t+2*i}:{57+8*t+2*i}], v22, v20")


def round_scale(a, r0, r1):
    a(f"""
    v_cvt_pk_bf16_f32 v{r1}, v{r0}, v{r1}
    v_lshlrev_b32 v{r0}, 16, v{r1}
    v_and_b32 v{r1}, 0xffff0000, v{r1}
    v_mul_f32 v{r0}, s73, v{r0}
    v_mul_f32 v{r1}, s73, v{r1}
    v_cvt_pk_bf16_f32 v{r1}, v{r0}, v{r1}
    v_lshlrev_b32 v{r0}, 16, v{r1}
    v_and_b32 v{r1}, 0xffff0000, v{r1}
    """)


def attn_task(a, opt):
    S0, S1, DE, DO = S_, S_ + 4, S_ + 8, S_ + 12
    T0, T1, NEG = S_ + 16, S_ + 17, S_ + 18
    P, PM = S_ + 20, S_ + 24
    O = 160
    a(f"""
    s_lshr_b32 s26, s42, 1
    s_lshl_b32 s19, s26, 18
    s_lshl_b32 s20, s24, 13
    s_add_u32 s19, s19, s20
    s_and_b32 s20, s42, 1
    s_lshl_b32 s20, s20, 12
    s_add_u32 s20, s20, s19
    s_add_u32 s20, s20, {WS_QF:#x}
    """)
    for i in range(4):
        a(f"buffer_load_dwordx4 v[{Q_+4*i}:{Q_+4*i+3}], v4, s[8:11], s20 offen offset:{i*1024} sc1")
    for hh in range(2):
        a(f"s_add_u32 s20, s19, {WS_KF + hh*4096:#x}")
        for i in range(4):
            r = K_ + (hh * 4 + i) * 4
            a(f"buffer_load_dwordx4 v[{r}:{r+3}], v4, s[8:11], s20 offen offset:{i*1024} sc1")
    a(f"""
    s_and_b32 s20, s17, 1
    s_lshl_b32 s20, s20, 12
    s_add_u32 s20, s20, s19
    s_add_u32 s20, s20, {WS_VF:#x}
    """)
    for i in range(4):
        a(f"buffer_load_dwordx4 v[{V_+4*i}:{V_+4*i+3}], v4, s[8:11], s20 offen offset:{i*1024} sc1")
    a(f"""
    s_lshl_b32 s23, s42, 14
    buffer_load_dwordx2 v[16:17], v10, s[48:51], s23 offen
    s_waitcnt vmcnt(5)
    """)
    for t, d in ((0, S0), (1, S1)):
        for f in range(4):
            c = "0" if f == 0 else f"v[{d}:{d+3}]"
            a(f"v_mfma_f32_16x16x32_bf16 v[{d}:{d+3}], v[{K_+16*t+4*f}:{K_+16*t+4*f+3}], v[{Q_+4*f}:{Q_+4*f+3}], {c}")
    a(f"v_mov_b32 v{NEG}, {f2u(-1e30):#x}")
    a(f"v_mov_b32 v{PM}, 0")
    a(f"v_mov_b32 v{PM+3}, 0")
    for j in range(0, 8, 2):
        round_scale(a, S0 + j, S0 + j + 1)
    for j in range(8):
        a(f"v_cndmask_b32 v{S0+j}, v{NEG}, v{S0+j}, s[{56+2*j}:{57+2*j}]")
    a(f"""
    v_max3_f32 v{T0}, v{S0}, v{S0+1}, v{S0+2}
    v_max3_f32 v{T0}, v{T0}, v{S0+3}, v{S0+4}
    v_max3_f32 v{T0}, v{T0}, v{S0+5}, v{S0+6}
    v_max_f32 v{T0}, v{T0}, v{S0+7}
    s_lshl_b32 s19, s26, 17
    s_lshl_b32 s20, s24, 12
    s_add_u32 s19, s19, s20
    s_add_u32 s19, s19, {WS_KM:#x}
    s_and_b32 s20, s17, 1
    s_lshl_b32 s20, s20, 11
    s_add_u32 s22, s19, s20
    s_xor_b32 s19, s22, 0x800
    s_mov_b32 s21, 0
    """)
    lab = a.uid("CF")
    a(f"""
    {lab}:
    buffer_load_dwordx4 v[20:23], v18, s[8:11], s25 offen offset:96 sc1
    s_add_u32 s21, s21, 1
    s_cmp_gt_u32 s21, {TIMEOUT}
    s_cbranch_scc1 F_fail
    s_waitcnt vmcnt(0)
    v_readfirstlane_b32 s20, v20
    s_cmp_ge_u32 s20, s26
    s_cbranch_scc1 {lab}_ok
    s_add_u32 s20, s20, 1
    s_cmp_ge_u32 s20, s26
    s_cbranch_scc1 {lab}_s
    s_sleep 16
    s_add_u32 s20, s20, 2
    s_cmp_ge_u32 s20, s26
    s_cbranch_scc1 {lab}
    s_sleep 80
    {lab}_s:
    s_sleep {opt.get('cfs', 4)}
    s_branch {lab}
    {lab}_ok:
    """)
    for w in range(4):
        a(f"buffer_load_dwordx4 v[{KVM_+4*w}:{KVM_+4*w+3}], v4, s[8:11], s{22 if w < 2 else 19} offen offset:{(w&1)*1024} sc1")
    a(f"""
    s_add_u32 s21, s21, 1
    s_cmp_gt_u32 s21, {TIMEOUT}
    s_cbranch_scc1 F_fail
    """)
    for w in range(4):
        a(f"s_waitcnt vmcnt({3-w})")
        a(f"ds_write_b64 v{2 if w < 2 else 5}, v[{KVM_+4*w}:{KVM_+4*w+1}] offset:{(w&1)*512}")
        r = KVM_ + 4 * w
        if w == 0:
            a(f"v_max3_u32 v20, v{r}, v{r+1}, v{r+2}")
            a(f"v_max_u32 v20, v20, v{r+3}")
        else:
            a(f"v_max3_u32 v20, v20, v{r}, v{r+1}")
            a(f"v_max3_u32 v20, v20, v{r+2}, v{r+3}")
    for w in range(4):
        a(f"ds_read_b64_tr_b16 v[{KA_+2*w}:{KA_+2*w+1}], v3 offset:{w*512}")
    a(f"""
    v_cmp_eq_u32 vcc, -1, v20
    s_cbranch_vccnz {lab}_ok
    """)
    tstamp(a, opt, 6)
    a(f"""
    s_lshl_b32 s19, s42, 17
    s_lshl_b32 s20, s43, 13
    s_add_u32 s20, s19, s20
    s_lshl_b32 s22, s17, 11
    s_add_u32 s20, s20, s22
    s_add_u32 s20, s20, {WS_OF:#x}
    s_lshl_b32 s22, s17, 15
    s_add_u32 s19, s19, s22
    s_add_u32 s19, s19, {WS_OF:#x}
    s_waitcnt lgkmcnt(2)
    v_mfma_f32_16x16x32_bf16 v[{DE}:{DE+3}], v[{KA_}:{KA_+3}], v[{Q_}:{Q_+3}], 0
    v_mfma_f32_16x16x32_bf16 v[{DO}:{DO+3}], v[{KA_}:{KA_+3}], v[{Q_+4}:{Q_+7}], 0
    s_waitcnt lgkmcnt(0)
    v_mfma_f32_16x16x32_bf16 v[{DE}:{DE+3}], v[{KA_+4}:{KA_+7}], v[{Q_+8}:{Q_+11}], v[{DE}:{DE+3}]
    v_mfma_f32_16x16x32_bf16 v[{DO}:{DO+3}], v[{KA_+4}:{KA_+7}], v[{Q_+12}:{Q_+15}], v[{DO}:{DO+3}]
    v_add_f32 v{DE}, v{DE}, v{DO+2}
    v_add_f32 v{DE+1}, v{DE+1}, v{DO+3}
    """)
    round_scale(a, DE, DE + 1)
    a(f"v_max3_f32 v{T0}, v{T0}, v{DE}, v{DE+1}")
    xreduce_max(a, T0, T1)
    regs = list(range(S0, S0 + 10))
    for r in regs:
        a(f"v_sub_f32 v{r}, v{r}, v{T0}")
    for r in regs:
        a(f"v_mul_f32 v{r}, s72, v{r}")
    for r in regs:
        a(f"v_exp_f32 v{r}, v{r}")
    a(f"v_add_f32 v{T0}, v{regs[0]}, v{regs[1]}")
    for r in regs[2:]:
        a(f"v_add_f32 v{T0}, v{T0}, v{r}")
    xreduce_add(a, T0, T1)
    a(f"v_rcp_f32 v{T0}, v{T0}")
    for r in regs:
        a(f"v_mul_f32 v{r}, v{r}, v{T0}")
    for j in range(4):
        a(f"v_cvt_pk_bf16_f32 v{P+j}, v{S0+2*j}, v{S0+2*j+1}")
    a(f"v_cvt_pk_bf16_f32 v{PM+1}, v{DE}, v{DE+1}")
    a(f"v_cvt_pk_bf16_f32 v{PM+2}, v{DE}, v{DE+1}")
    for et in range(4):
        d = O + 4 * et
        a(f"v_mfma_f32_16x16x32_bf16 v[{d}:{d+3}], v[{V_+4*et}:{V_+4*et+3}], v[{P}:{P+3}], 0")
    for et in range(4):
        d = O + 4 * et
        vm = KVM_ + 4 * (et >> 1) + 2
        b = PM + 2 if et % 2 == 0 else PM
        a(f"v_mfma_f32_16x16x16_bf16 v[{d}:{d+3}], v[{vm}:{vm+1}], v[{b}:{b+1}], v[{d}:{d+3}]")
    a("s_cmp_lg_u32 s27, 0")
    for k4 in range(2):
        d0 = O + 8 * k4
        d1 = d0 + 4
        a(f"""
        v_cvt_pk_bf16_f32 v{d0}, v{d0}, v{d0+1}
        v_cvt_pk_bf16_f32 v{d0+1}, v{d0+2}, v{d0+3}
        v_cvt_pk_bf16_f32 v{d0+2}, v{d1}, v{d1+1}
        v_cvt_pk_bf16_f32 v{d0+3}, v{d1+2}, v{d1+3}
        """)
    a("s_cbranch_scc1 W_oslow")
    for k4 in range(2):
        a(f"buffer_store_dwordx4 v[{O+8*k4}:{O+8*k4+3}], v4, s[8:11], s20 offen offset:{k4*1024}")
    a("s_branch W_odone")
    a("W_oslow:")
    for k4 in range(2):
        a(f"buffer_store_dwordx4 v[{O+8*k4}:{O+8*k4+3}], v4, s[8:11], s20 offen offset:{k4*1024} sc1")
    a("W_odone:")


def out_task(a, opt, gsrc):
    A = wk.ACC7
    a(f"""
    s_mov_b32 s21, 0
    W_pre:
    buffer_load_dword v20, v6, s[8:11], s19 offen sc1
    s_add_u32 s21, s21, 1
    s_cmp_gt_u32 s21, {TIMEOUT}
    s_cbranch_scc1 F_fail
    s_waitcnt vmcnt(0)
    v_cmp_eq_u32 vcc, -1, v20
    s_cbranch_vccnz W_pre
    """)
    tstamp(a, opt, 7)
    for ks in range(32):
        if ks % 4 == 0:
            a(f"s_add_u32 s20, s19, {ks*1024}")
        a(f"buffer_load_dwordx4 v[{24+4*ks}:{24+4*ks+3}], v4, s[8:11], s20 offen offset:{(ks%4)*1024} sc1")
    for ks in range(32):
        r = 24 + 4 * ks
        a(f"s_waitcnt vmcnt({31 - ks})")
        for ct in range(2):
            d = A + ct * 4
            w = (ks * 2 + ct) * 4
            c = "0" if ks == 0 else f"v[{d}:{d+3}]"
            a(f"v_mfma_f32_16x16x32_bf16 v[{d}:{d+3}], a[{w}:{w+3}], v[{r}:{r+3}], {c}")
            a(f"v_max3_u32 v20, v20, v{r+2*ct}, v{r+2*ct+1}")
    a(f"""
    v_cmp_eq_u32 vcc, -1, v20
    s_cbranch_vccnz W_pre
    ds_write_b128 v8, v[{A}:{A+3}]
    ds_write_b128 v8, v[{A+4}:{A+7}] offset:1024
    v_lshlrev_b32 v28, 16, v16
    v_and_b32 v29, 0xffff0000, v16
    v_lshlrev_b32 v30, 16, v17
    v_and_b32 v31, 0xffff0000, v17
    s_add_u32 s23, s23, s28
    s_waitcnt lgkmcnt(0)
    s_barrier
    """)
    for w in range(4):
        a(f"ds_read_b128 v[{A+4*w}:{A+4*w+3}], v19 offset:{w*4096}")
    a("v_xor_b32 v8, 0x800, v8")
    a("v_xor_b32 v19, 0x800, v19")
    a("s_waitcnt lgkmcnt(2)")
    for i in range(4):
        a(f"v_add_f32 v{A+i}, v{A+i}, v{A+4+i}")
    a("s_waitcnt lgkmcnt(0)")
    for i in range(4):
        a(f"v_add_f32 v{A+8+i}, v{A+8+i}, v{A+12+i}")
    for i in range(4):
        a(f"v_add_f32 v{24+i}, v{A+i}, v{A+8+i}")
    wk.round4(a, 24)
    for i in range(4):
        a(f"v_mul_f32 v{24+i}, v{24+i}, v{gsrc+i}")
    wk.round4(a, 24)
    for i in range(4):
        a(f"v_add_f32 v{24+i}, v{24+i}, v{28+i}")
    a("""
    v_cvt_pk_bf16_f32 v24, v24, v25
    v_cvt_pk_bf16_f32 v25, v26, v27
    buffer_store_dwordx2 v[24:25], v10, s[52:55], s23 offen
    """)


def worker(a, opt):
    GST = wk.GST
    a("F_worker:")
    a("s_sub_u32 s40, s16, 32")
    lane_ids(a)
    srd_from_arg(a, 76, ARG_X, 2 << 20)
    a("s_sub_u32 s41, 223, s40")
    LX = L_TK + 64

    def ln_flag():
        wait_ready(a)
        lab = a.uid("LF")
        a(f"""
        s_barrier
        s_cmp_lg_u32 s17, 0
        s_cbranch_scc1 {lab}
        s_lshl_b32 s19, s41, 2
        s_add_u32 s19, s19, {F_LN:#x}
        """)
        flag_store(a, "1", "s19", 21)
        a(f"{lab}:")

    a("s_cmp_lt_u32 s40, 128")
    a("s_cbranch_scc1 W_kv")
    wk.gen_ln(a, 41, 76, LX, part="load")
    srd_from_arg(a, 76, ARG_WO, 4 << 20)
    a("""
    s_sub_u32 s19, s40, 128
    s_lshl_b32 s19, s19, 16
    v_lshlrev_b32 v76, 7, v0
    buffer_load_dword v77, v76, s[76:79], s19 offen
    s_add_u32 s19, s19, 0x8000
    buffer_load_dword v78, v76, s[76:79], s19 offen
    """)
    wk.gen_ln(a, 41, 76, LX, sc="sc1", part="compute", pending=2)
    confirm(a, opt, L_TK, 20, 21)
    ln_flag()
    a("s_cmp_lt_u32 s40, 214")
    a("s_cbranch_scc0 G_add")
    gemm1_issue_weights(a)
    a("s_branch W_main")
    a("W_kv:")
    a("s_cmp_lt_u32 s40, 96")
    a("s_cbranch_scc1 W_noln")
    wk.gen_ln(a, 41, 76, LX, part="load")
    a("W_noln:")
    gemm1_issue_weights(a)
    a("s_waitcnt vmcnt(16)")
    confirm(a, opt, L_TK, 20, 21)
    a("s_cmp_lt_u32 s40, 96")
    a("s_cbranch_scc1 W_noln2")
    wk.gen_ln(a, 41, 76, LX, sc="sc1", part="compute", pending=18)
    ln_flag()
    a("s_branch W_main")
    a("W_noln2:")
    wait_ready(a)
    a("W_main:")
    tstamp(a, opt, 1)
    gemm1_main(a, opt)
    a("W_c:")
    tstamp(a, opt, 3, 6)
    a("""
    s_lshr_b32 s41, s40, 4
    s_and_b32 s43, s40, 15
    """)
    lane_ids(a)
    wk.gen_out_consts(a, 43)
    attn_consts(a)
    a("s_barrier")
    wk.gen_gate_setup(a)
    a(f"""
    s_cmp_lg_u32 s17, 0
    s_cbranch_scc1 W_nopoll
    s_and_b32 s22, s40, 31
    s_lshl_b32 s22, s22, 7
    s_add_u32 s22, s22, {F_G1:#x}
    s_movk_i32 s23, 224
    v_mov_b32 v20, 0
    """)
    poll_ge(a, 20, "s22", "s23", 22, sleep=16)
    a(f"""
    W_nopoll:
    s_barrier
    v_mov_b32 v18, 0
    buffer_load_dword v23, v18, s[12:15], 0 offen offset:{D_SLOW} sc1
    s_mov_b32 s42, s41
    W_gate:
    """)
    for i in range(0, 16, 2):
        a(f"v_mov_b64 v[{GST+i}:{GST+i+1}], v[{GST+i+4}:{GST+i+5}]")
    wk.gen_gate(a, 42, GST + 16, "sc1", mul=1, dt=14)
    a(f"""
    s_add_u32 s42, s42, 28
    s_cmp_lt_u32 s42, 128
    s_cbranch_scc1 W_gate
    v_readfirstlane_b32 s27, v23
    """)
    if opt.get("oslow"):
        a("s_mov_b32 s27, 1")
    tstamp(a, opt, 4)
    wk.gen_wo_setup(a)
    a(f"""
    s_and_b32 s19, s17, 1
    s_lshl_b32 s19, s19, 10
    v_add_u32 v2, s19, v2
    v_xor_b32 v5, 0x400, v2
    v_and_b32 v6, 31, v1
    v_lshlrev_b32 v6, 10, v6
    v_lshrrev_b32 v7, 5, v1
    v_mul_u32_u24 v7, 0x3fc, v7
    v_add_u32 v6, v6, v7
    s_mov_b32 s42, s41
    s_lshr_b32 s28, s17, 1
    s_lshl_b32 s28, s28, 30
    s_barrier
    """)
    tstamp(a, opt, 5, 7)
    a("W_seg:")
    attn_task(a, opt)
    out_task(a, opt, GST)
    tstamp(a, opt, 8, 4)
    if opt.get("tl"):
        a("s_cmp_lt_u32 s42, 42")
        a("s_cselect_b32 s19, 0, 12")
        a("s_add_u32 s97, s97, s19")
    a(f"""
    s_xor_b32 s28, s28, 0x40000000
    s_add_u32 s42, s42, 14
    s_sub_u32 s19, s42, s41
    s_bitcmp1_b32 s19, 1
    s_cbranch_scc1 W_norot
    """)
    for i in range(0, 16, 2):
        a(f"v_mov_b64 v[{GST+i}:{GST+i+1}], v[{GST+i+4}:{GST+i+5}]")
    a(f"""
    W_norot:
    s_cmp_lt_u32 s42, 128
    s_cbranch_scc1 W_seg
    s_endpgm
    F_fail:
    v_mov_b32 v32, 0xdead
    v_mov_b32 v33, {D_FAIL}
    s_mov_b64 exec, 1
    buffer_store_dword v32, v33, s[12:15], 0 offen
    F_exit:
    s_endpgm
    """)


NAME = "recurrent_scan__memory_aug_recurrent_mem_tr__dense_activation_squared_relu__prompt"
DEF = dict(depth=2, pre1=42, pre2=55, gap1=40, gap2=40)


def build(path, opt):
    o = dict(DEF)
    o.update(opt)
    hdr = open(f"cdna_kernels/{NAME}.s.ref").read().split("; Override launch")[0]
    a = Asm()
    for ln in hdr.strip().split("\n"):
        a.raw(ln)
    a.raw(f"; @launch kernel=fused_kernel grid=(256,1,1) block=(256,1,1) lds={ch.LDS_BYTES}")
    a.raw('.amdgcn_target "amdgcn-amd-amdhsa--gfx950"')
    a.raw(".text")
    kernel_header(a, "fused_kernel")
    prologue(a, o)
    chain_role(a, o)
    worker(a, o)
    loser(a, o)
    a.lines = ch.hoist_waits(a.lines)
    a.lines = hazard.fix(a.lines, True)
    a.raw('.section .rodata,"a"')
    a.raw(".p2align 6")
    a.raw(kernel_desc("fused_kernel", 512, 256))
    open(path, "w").write(a.text())


if __name__ == "__main__":
    opt = {}
    for kv in sys.argv[2:]:
        k, v = kv.split("=")
        opt[k] = v if k in ("sc", "xsc", "lnt") else int(v)
    build(sys.argv[1], opt)
```

```python
import sys, math
sys.path.insert(0, "gen")
from asmlib import *
from layout import *
import hazard, chain4 as ch, workers as wk
from workers import f2u, srd_from_arg, xreduce_add, xreduce_max

TIMEOUT = 400000
L_TK = 0x27000


def tstamp(a, opt, idx, dw=None):
    if opt.get("dbg") and dw is not None:
        lab = a.uid("TD")
        a(f"""
        s_cmp_lg_u32 s17, 0
        s_cbranch_scc1 {lab}
        s_memrealtime s[98:99]
        s_waitcnt lgkmcnt(0)
        s_mov_b64 s[100:101], exec
        s_mov_b64 exec, 1
        v_mov_b32 v254, s98
        v_not_b32 v255, v254
        v_mov_b32 v253, 0
        buffer_atomic_umax v254, v253, s[12:15], 0 offen offset:{dw*8} sc1
        buffer_atomic_umax v255, v253, s[12:15], 0 offen offset:{dw*8+4} sc1
        s_mov_b64 exec, s[100:101]
        {lab}:
        """)
    if not opt.get("tl"):
        return
    lab = a.uid("TS")
    a(f"""
    s_cmp_lg_u32 s17, 0
    s_cbranch_scc1 {lab}
    s_memrealtime s[98:99]
    s_waitcnt lgkmcnt(0)
    s_mov_b64 s[100:101], exec
    s_mov_b64 exec, 1
    v_mov_b32 v254, s98
    v_mov_b32 v255, 0
    buffer_store_dword v254, v255, s[8:11], s97 offen offset:{idx*4}
    s_mov_b64 exec, s[100:101]
    {lab}:
    """)


def poll_ge(a, vaddr, soff, thr, vtmp, sleep=2, x2=False, srd=8):
    lab = a.uid("PL")
    a("s_mov_b32 s21, 0")
    a(f"{lab}:")
    if x2:
        a(f"buffer_load_dwordx2 v[{vtmp}:{vtmp+1}], v{vaddr}, s[{srd}:{srd+3}], {soff} offen sc1")
    else:
        a(f"buffer_load_dword v{vtmp}, v{vaddr}, s[{srd}:{srd+3}], {soff} offen sc1")
    a(f"""
    s_add_u32 s21, s21, 1
    s_cmp_gt_u32 s21, {TIMEOUT}
    s_cbranch_scc1 F_fail
    s_waitcnt vmcnt(0)
    """)
    if x2:
        a(f"v_min_u32 v{vtmp}, v{vtmp}, v{vtmp+1}")
    a(f"""
    v_cmp_gt_u32 vcc, {thr}, v{vtmp}
    s_cbranch_vccz {lab}_ok
    s_sleep {sleep}
    s_branch {lab}
    {lab}_ok:
    """)


def flag_store(a, sval, soff, t0):
    a(f"""
    v_mov_b32 v{t0}, {sval}
    s_mov_b64 exec, 1
    buffer_store_dword v{t0}, v4, s[8:11], {soff} offen sc1
    s_mov_b64 exec, -1
    """)


def wait_ready(a):
    a(f"v_mov_b32 v252, {D_READY}")
    poll_ge(a, 252, 0, 1, 253, sleep=2, srd=12)


def prologue(a, opt):
    a(f"""
    s_cmp_ge_u32 s2, 256
    s_cbranch_scc1 F_exit
    s_load_dwordx2 s[4:5], s[0:1], {ARG_DBG}
    s_load_dwordx2 s[6:7], s[0:1], {ARG_WS}
    s_load_dwordx2 s[20:21], s[0:1], 0
    s_getreg_b32 s3, hwreg(HW_REG_XCC_ID)
    s_and_b32 s3, s3, 7
    v_and_b32 v1, 63, v0
    v_lshrrev_b32 v2, 6, v0
    v_readfirstlane_b32 s17, v2
    v_lshlrev_b32 v4, 4, v1
    s_waitcnt lgkmcnt(0)
    """)
    if opt.get("fakexcc"):
        a(f"s_cmp_lt_u32 s2, {opt['fakexcc']}")
        a("s_cselect_b32 s19, 1, 0")
        a("s_max_u32 s3, s3, s19")
    make_srd(a, 8, 6, WS_SIZE)
    make_srd(a, 12, 4, 256)
    if opt.get("tl"):
        a(f"s_lshl_b32 s97, s2, 7")
        a(f"s_add_u32 s97, s97, {WS_DBG:#x}")
    tstamp(a, opt, 0, 1)
    a(f"""
    s_cmp_lg_u32 s2, 255
    s_cbranch_scc1 F_nozero
    v_lshlrev_b32 v5, 4, v0
    v_mov_b32 v8, 0
    v_mov_b32 v9, 0
    v_mov_b32 v10, 0
    v_mov_b32 v11, 0
    """)
    for i in range(FLAG_BYTES // 4096):
        a(f"s_mov_b32 s19, {WS_FLAGS + i*4096:#x}")
        a(f"buffer_store_dwordx4 v[8:11], v5, s[8:11], s19 offen sc1")
    a(f"""
    F_nozero:
    s_bfe_u32 s16, s2, 0x50003
    s_cmp_lg_u32 s17, 0
    s_cbranch_scc1 F_noclaim
    s_lshl_b32 s19, s3, 2
    v_mov_b32 v5, s19
    s_lshl_b32 s19, 1, s16
    v_mov_b32 v124, s19
    s_mov_b64 exec, 1
    buffer_atomic_or v124, v5, s[12:15], 0 offen offset:{D_MASK} sc0 sc1
    s_mov_b64 exec, -1
    F_noclaim:
    s_lshl_b32 s19, s3, 5
    s_add_u32 s16, s16, s19
    s_mov_b32 s18, 0
    F_dispatch:
    s_cmp_ge_u32 s16, 32
    s_cbranch_scc1 F_worker
    """)


def confirm(a, opt, lds, t0, t1):
    lab = a.uid("CN")
    a(f"""
    s_cmp_lg_u32 s18, 0
    s_cbranch_scc1 {lab}_ok
    v_mov_b32 v{t0}, {lds:#x}
    s_cmp_lg_u32 s17, 0
    s_cbranch_scc1 {lab}_a
    s_mov_b64 exec, 1
    ds_write_b32 v{t0}, v124
    s_mov_b64 exec, -1
    {lab}_a:
    s_waitcnt lgkmcnt(0)
    s_barrier
    ds_read_b32 v{t1}, v{t0}
    s_cmp_lg_u32 s2, 255
    s_cbranch_scc1 {lab}_b
    s_cmp_lg_u32 s17, 0
    s_cbranch_scc1 {lab}_b
    v_mov_b32 v{t0}, {D_READY}
    v_mov_b32 v124, 1
    s_mov_b64 exec, 1
    buffer_store_dword v124, v{t0}, s[12:15], 0 offen sc1
    s_mov_b64 exec, -1
    {lab}_b:
    s_waitcnt lgkmcnt(0)
    v_readfirstlane_b32 s19, v{t1}
    s_bitcmp1_b32 s19, s16
    s_cbranch_scc1 F_loser
    {lab}_ok:
    """)
    if opt.get("tl"):
        a(f"v_mov_b32 v{t0}, s16")
        a(f"v_mov_b32 v{t1}, 0")
        a("s_mov_b64 exec, 1")
        a(f"buffer_store_dword v{t0}, v{t1}, s[8:11], s97 offen offset:124")
        a("s_mov_b64 exec, -1")


def loser(a, opt):
    a(f"""
    F_loser:
    v_mbcnt_lo_u32_b32 v1, -1, 0
    v_mbcnt_hi_u32_b32 v1, -1, v1
    s_lshl_b32 s19, s17, 6
    v_add_u32 v0, s19, v1
    v_lshlrev_b32 v4, 4, v1
    v_mov_b32 v3, {L_TK:#x}
    s_waitcnt vmcnt(0) lgkmcnt(0)
    s_barrier
    s_cmp_lg_u32 s17, 0
    s_cbranch_scc1 F_lwait
    s_lshl_b32 s19, s3, 2
    s_add_u32 s19, s19, {D_LOSE}
    v_mov_b32 v5, s19
    v_mov_b32 v6, 1
    s_mov_b64 exec, 1
    buffer_atomic_add v6, v5, s[12:15], 0 offen sc0 sc1
    s_waitcnt vmcnt(0)
    s_mov_b64 exec, -1
    v_readfirstlane_b32 s16, v6
    v_and_b32 v5, 15, v1
    v_lshlrev_b32 v5, 2, v5
    s_mov_b32 s21, 0
    F_ovf:
    buffer_load_dword v6, v5, s[12:15], 0 offen offset:{D_MASK} sc1
    s_add_u32 s21, s21, 1
    s_cmp_gt_u32 s21, {TIMEOUT}
    s_cbranch_scc1 F_fail
    s_waitcnt vmcnt(0)
    s_mov_b32 s19, 0
    """)
    for x in range(16):
        a(f"v_readlane_b32 s{40+x}, v6, {x}")
    for x in range(8):
        a(f"s_bcnt0_i32_b32 s{56+x}, s{40+x}")
        a(f"s_add_u32 s19, s19, s{48+x}")
        a(f"s_sub_u32 s19, s19, s{56+x}")
    a("""
    s_cmp_lg_u32 s19, 0
    s_cbranch_scc1 F_ovf
    """)
    for x in range(8):
        a(f"s_cmp_eq_u32 s3, {x}")
        a(f"s_cselect_b32 s22, s{40+x}, s22")
    a(f"""
    s_bcnt0_i32_b32 s19, s22
    s_mov_b32 s23, s3
    s_cmp_lt_u32 s16, s19
    s_cbranch_scc1 F_pick
    s_sub_u32 s16, s16, s19
    """)
    for x in range(8):
        a(f"""
        s_max_u32 s19, s{48+x}, s{56+x}
        s_sub_u32 s19, s19, s{56+x}
        s_cmp_gt_u32 s3, {x}
        s_cselect_b32 s19, s19, 0
        s_add_u32 s16, s16, s19
        """)
    for x in range(8):
        a(f"""
        s_max_u32 s20, s{48+x}, s{56+x}
        s_sub_u32 s20, s20, s{48+x}
        s_mov_b32 s19, s{48+x}
        s_mov_b32 s22, s{40+x}
        s_mov_b32 s23, {x}
        s_cmp_lt_u32 s16, s20
        s_cbranch_scc1 F_ovf_done
        s_sub_u32 s16, s16, s20
        """)
    a(f"""
    s_branch F_fail
    F_ovf_done:
    s_add_u32 s16, s16, s19
    v_mov_b32 v5, {D_SLOW}
    v_mov_b32 v6, 1
    s_mov_b64 exec, 1
    buffer_store_dword v6, v5, s[12:15], 0 offen sc1
    s_waitcnt vmcnt(0)
    s_mov_b64 exec, -1
    F_pick:
    s_ff0_i32_b32 s19, s22
    s_bitset1_b32 s22, s19
    s_sub_u32 s16, s16, 1
    s_cbranch_scc0 F_pick
    s_lshl_b32 s23, s23, 5
    s_add_u32 s19, s19, s23
    v_mov_b32 v6, s19
    ds_write_b32 v3, v6
    s_waitcnt lgkmcnt(0)
    F_lwait:
    s_barrier
    ds_read_b32 v6, v3
    s_waitcnt lgkmcnt(0)
    v_readfirstlane_b32 s16, v6
    s_mov_b32 s18, 1
    s_barrier
    s_branch F_dispatch
    """)


def chain_role(a, opt):
    o2 = dict(opt)
    o2["sc"] = "sc1"
    L16 = ch.LANE16
    a(f"""
    s_lshl_b32 s29, s16, 7
    s_add_u32 s29, s29, {F_PG:#x}
    s_lshl_b32 s28, s17, 2
    s_add_u32 s28, s28, s29
    s_add_u32 s28, s28, 96
    """)
    state = {}
    H1, H2, H3 = opt.get("h1", 8), opt.get("h2", 11), opt.get("h3", 14)

    def hook(i, T, arr_ok):
        if i == 0:
            confirm(a, opt, ch.lds_frag_off(("v", 5), 0), 30, 31)
        if arr_ok and not state.get("arr"):
            state["arr"] = 1
            a(f"""
            s_cmp_lg_u32 s17, 0
            s_cbranch_scc1 C_noarr
            v_mov_b32 v32, {D_CBAR}
            v_mov_b32 v33, 1
            s_mov_b64 exec, 1
            buffer_atomic_add v33, v32, s[12:15], 0 offen sc1
            s_mov_b64 exec, -1
            C_noarr:
            """)
        if i == H1:
            a(f"v_mov_b32 v31, {D_READY}")
            T.vmop("buffer_load_dword v30, v31, s[12:15], 0 offen sc1", "rd")
        if i == H2:
            T.wait_vm("rd")
            a("v_readfirstlane_b32 s19, v30")
            a("s_cmp_lg_u32 s19, 0")
            a("s_cbranch_scc1 C_rdok")
            a("s_mov_b64 s[22:23], vcc")
            poll_ge(a, 31, 0, 1, 30, sleep=1, srd=12)
            a("s_mov_b64 vcc, s[22:23]")
            a(f"""
            C_rdok:
            v_lshrrev_b32 v36, 2, v{L16}
            v_and_b32 v36, 63, v36
            """)
            T.vmop("buffer_load_dword v37, v36, s[8:11], s29 offen sc1", "pg")
        if i == H3:
            assert state.get("arr")
            T.wait_vm("pg")
            a("s_mov_b32 s19, 0")
            a("s_mov_b32 s21, 0")
            a("s_branch C_kv0_chk")
            ch.gen_kvwait(a, "C_kv0", "F_fail", 36, 37)
            a(f"v_mov_b32 v31, {D_CBAR}")
            T.vmop("buffer_load_dwordx2 v[46:47], v31, s[12:15], 0 offen sc1", "cb")
            ch.gen_prefetch0(a, "sc1", T)
            T.vmop("buffer_load_dword v37, v36, s[8:11], s29 offen sc1", "pg")

    ch.gen_setup(a, o2, hook)
    if opt.get("tl"):
        a("v_mov_b32 v40, v254\nv_mov_b32 v41, v255")
        tstamp(a, opt, 1)
        a("v_mov_b32 v254, v40\nv_mov_b32 v255, v41")
        a("v_mov_b32 v41, 0")
        a("s_mov_b64 exec, 1")
        a("s_cmp_lg_u32 s17, 0")
        a("s_cbranch_scc1 C_nost")
        for i in range(9):
            a(f"v_mov_b32 v40, s{66+2*i}")
            a(f"buffer_store_dword v40, v41, s[8:11], s97 offen offset:{32+4*i}")
        a("C_nost:")
        a("s_mov_b64 exec, -1")
    a(f"""
    s_mov_b32 s21, 0
    s_branch C_cbchk
    C_cbl:
    buffer_load_dwordx2 v[46:47], v31, s[12:15], 0 offen sc1
    s_add_u32 s21, s21, 1
    s_cmp_gt_u32 s21, {TIMEOUT}
    s_cbranch_scc1 F_fail
    C_cbchk:
    s_waitcnt vmcnt(0)
    v_readfirstlane_b32 s19, v46
    v_readfirstlane_b32 s20, v47
    s_cmp_lt_u32 s19, 32
    s_cbranch_scc1 C_cbl
    s_mov_b32 s19, 0
    s_branch C_kv1_chk
    """)
    ch.gen_kvwait(a, "C_kv1", "F_fail", 36, 37)
    a("s_barrier")
    if opt.get("tl") or opt.get("dbg"):
        a("v_mov_b32 v40, v254\nv_mov_b32 v41, v255\nv_mov_b32 v42, v253")
        tstamp(a, opt, 2, 2)
        a("s_waitcnt vmcnt(0)")
        a("v_mov_b32 v254, v40\nv_mov_b32 v255, v41\nv_mov_b32 v253, v42")
    a(f"""
    s_cmp_lg_u32 s20, 0
    s_cbranch_scc1 CS_entry
    """)
    for pfx, sc in (("C", ""), ("CS", "sc1")):
        if pfx == "CS":
            a("CS_entry:")
        o3 = dict(opt)
        o3.update(sc=sc, xsc="sc1", fused=1)
        ch.gen_loop(a, o3, pfx)
        a(f"{pfx}_fail:")
        a("s_branch F_fail")
        a(f"""
        {pfx}_done:
        v_mov_b32 v32, 64
        s_waitcnt vmcnt(0)
        s_mov_b64 exec, 1
        buffer_store_dword v32, v{L16}, s[8:11], s28 offen sc1
        s_mov_b64 exec, -1
        """)
        tstamp(a, opt, 3, 3)
        a("s_endpgm")


XR, ACC = 24, 152


def gemm1_issue_weights(a):
    sn, dma = wk.gen_gemm1(a, None, 40, 0, "G1")


def gemm1_main(a, opt):
    a("s_waitcnt vmcnt(0)")
    a("s_barrier")
    for ks in range(16):
        for ct in range(4):
            for u in range(2):
                r = (ks * 4 + ct) * 4 + u * 2
                a(f"ds_read_b64_tr_b16 a[{r}:{r+1}], v{14+ct} offset:{ks*4096+u*512}")
        a("s_waitcnt lgkmcnt(0)")
    a(f"""
    s_and_b32 s19, s40, 63
    s_lshr_b32 s20, s19, 1                 ; head
    s_and_b32 s21, s40, 1                  ; half
    s_lshl_b32 s42, s17, 18
    s_lshl_b32 s22, s20, 13
    s_add_u32 s42, s42, s22                ; w*256K + h*8K
    s_lshl_b32 s44, s20, 7
    s_lshl_b32 s22, s21, 2
    s_add_u32 s44, s44, s22
    s_add_u32 s44, s44, {F_PG:#x}
    s_mov_b32 s43, 0x100000
    s_cmp_ge_u32 s40, 192
    s_cbranch_scc1 G_bH
    s_cmp_ge_u32 s40, 128
    s_cbranch_scc1 G_bQ
    s_lshl_b32 s22, s17, 4
    s_add_u32 s44, s44, s22
    s_cmp_ge_u32 s40, 64
    s_cbranch_scc1 G_bV
    s_lshl_b32 s22, s21, 11
    s_add_u32 s42, s42, s22
    s_lshr_b32 s48, s42, 1
    s_lshl_b32 s22, s21, 10
    s_add_u32 s48, s48, s22
    s_add_u32 s48, s48, {WS_KM:#x}         ; w*128K + h*4K + half*2K
    s_add_u32 s42, s42, {WS_KF:#x}
    s_branch G_bdone
    G_bV:
    s_add_u32 s44, s44, 8
    s_lshl_b32 s22, s21, 12
    s_add_u32 s42, s42, s22
    s_add_u32 s42, s42, {WS_VF:#x}
    s_branch G_bdone
    G_bQ:
    s_lshl_b32 s22, s17, 3
    s_add_u32 s44, s44, s22
    s_add_u32 s44, s44, 64
    s_lshl_b32 s22, s21, 11
    s_add_u32 s42, s42, s22
    s_lshl_b32 s22, s20, 12
    s_sub_u32 s48, s42, s22
    s_add_u32 s48, s48, {WS_OF:#x}         ; w*256K + h*4K + half*2K
    s_add_u32 s42, s42, {WS_QF:#x}
    s_branch G_bdone
    G_bH:
    s_sub_u32 s19, s40, 192
    s_lshl_b32 s44, s19, 4
    s_lshl_b32 s22, s17, 2
    s_add_u32 s44, s44, s22
    s_add_u32 s44, s44, {F_HP:#x}
    s_mul_i32 s42, s17, {2*43*1024}
    s_lshl_b32 s19, s19, 11
    s_add_u32 s42, s42, s19
    s_add_u32 s42, s42, {WS_HF:#x}
    s_mov_b32 s43, {8*43*1024}
    G_bdone:
    s_cmp_eq_u32 s40, 213
    s_cselect_b32 s20, 0x7ffff000, 0
    v_add_u32 v19, s20, v4
    v_lshlrev_b32 v20, 3, v1
    v_and_b32 v23, 63, v20
    """)
    if opt.get("hold"):
        a(f"s_cmp_lt_u32 s40, {opt['hold']-1}")
        a("s_cbranch_scc1 G_nohold")
        a(f"v_mov_b32 v252, {D_CBAR}")
        poll_ge(a, 252, 0, 32, 253, sleep=32, srd=12)
        a("G_nohold:")
    a(f"s_mov_b32 s22, {F_LN:#x}")
    poll_ge(a, 23, "s22", 1, 210, sleep=2, x2=True)
    tstamp(a, opt, 2, 5)
    order = [(ks, tt) for ks in range(16) for tt in range(2)]

    def ld(i):
        ks, tt = order[i]
        if ks % 4 == 0:
            a(f"s_add_u32 s{46+tt}, s45, {tt*16384 + ks*1024}")
        a(f"buffer_load_dwordx4 v[{XR+4*i}:{XR+4*i+3}], v4, s[8:11], s{46+tt} offen offset:{(ks%4)*1024} sc1")

    a(f"""
    s_lshl_b32 s45, s17, 15
    s_add_u32 s45, s45, {WS_XN:#x}
    """)
    for i in range(32):
        ld(i)
    a(f"""
    s_sub_u32 s19, s40, 192
    s_lshl_b32 s19, s19, 7
    s_cmp_lt_u32 s40, 192
    s_cselect_b32 s19, 0, s19
    buffer_load_dwordx2 v[200:201], v18, s[60:63], s19 offen
    buffer_load_dwordx2 v[202:203], v18, s[60:63], s19 offen offset:32
    buffer_load_dwordx2 v[204:205], v18, s[60:63], s19 offen offset:64
    buffer_load_dwordx2 v[206:207], v18, s[60:63], s19 offen offset:96
    buffer_load_dwordx2 v[208:209], v18, s[60:63], s19 offen offset:96
    s_mov_b32 s41, 0
    v_mov_b64 v[212:213], -1
    v_mov_b64 v[214:215], -1
    s_cmp_ge_u32 s40, 192
    s_cbranch_scc1 G_H
    s_cmp_ge_u32 s40, 128
    s_cbranch_scc1 G_Q_entry
    s_cmp_ge_u32 s40, 64
    s_cbranch_scc1 G_V
    """)

    def loop(kind):
        NX = {"K": 2, "Q": 4}.get(kind, 0)
        a(f"G_{kind}_entry:")
        for _ in range(NX):
            a("buffer_load_dwordx2 v[208:209], v18, s[60:63], s19 offen offset:96")
        a(f"G_{kind}:")
        a("""
        s_add_u32 s45, s45, 0x20000
        s_cmp_eq_u32 s41, 15
        s_cselect_b32 s45, 0x7ff00000, s45
        """)
        for i, (ks, tt) in enumerate(order):
            a(f"s_waitcnt vmcnt({36+NX})")
            for ct in range(4):
                d = ACC + (tt * 4 + ct) * 4
                w = (ks * 4 + ct) * 4
                x = XR + 4 * i
                c = "0" if ks == 0 else f"v[{d}:{d+3}]"
                if kind == "V":
                    a(f"v_mfma_f32_16x16x32_bf16 v[{d}:{d+3}], v[{x}:{x+3}], a[{w}:{w+3}], {c}")
                else:
                    a(f"v_mfma_f32_16x16x32_bf16 v[{d}:{d+3}], a[{w}:{w+3}], v[{x}:{x+3}], {c}")
            ld(i)
        a("s_waitcnt vmcnt(32)")
        flag_store(a, "s41", "s44", 21)
        if kind == "V":
            for ct in range(4):
                d0 = ACC + ct * 4
                d1 = ACC + (4 + ct) * 4
                a(f"""
                v_cvt_pk_bf16_f32 v{d0}, v{d0}, v{d0+1}
                v_cvt_pk_bf16_f32 v{d0+1}, v{d0+2}, v{d0+3}
                v_cvt_pk_bf16_f32 v{d0+2}, v{d1}, v{d1+1}
                v_cvt_pk_bf16_f32 v{d0+3}, v{d1+2}, v{d1+3}
                buffer_store_dwordx4 v[{d0}:{d0+3}], v4, s[8:11], s42 offen offset:{ct*1024} sc1
                """)
        elif kind in "KQ":
            for j in range(NX):
                if j == 2:
                    a("s_add_u32 s19, s48, 0x20000")
                a(f"buffer_store_dwordx4 v[212:215], v4, s[8:11], s{48 if j < 2 else 19} offen offset:{(j&1)*1024} sc1")
            a(f"s_add_u32 s48, s48, {0x80000 if kind == 'K' else 0x100000:#x}")
            a("s_add_u32 s19, s42, 0x1000")
            for tt in range(2):
                for p in range(2):
                    d0 = ACC + (tt * 4 + p) * 4
                    d1 = d0 + 8
                    a(f"""
                    v_cvt_pk_bf16_f32 v{d0}, v{d0}, v{d0+1}
                    v_cvt_pk_bf16_f32 v{d0+1}, v{d0+2}, v{d0+3}
                    v_cvt_pk_bf16_f32 v{d0+2}, v{d1}, v{d1+1}
                    v_cvt_pk_bf16_f32 v{d0+3}, v{d1+2}, v{d1+3}
                    buffer_store_dwordx4 v[{d0}:{d0+3}], v4, s[8:11], s{42 if tt == 0 else 19} offen offset:{p*1024} sc1
                    """)
        else:
            a(f"s_add_u32 s19, s42, {43*1024}")
            for ct in range(4):
                for j in range(2):
                    a(f"v_lshlrev_b32 v{184+ct*4+2*j}, 16, v{200+2*ct+j}")
                    a(f"v_and_b32 v{184+ct*4+2*j+1}, 0xffff0000, v{200+2*ct+j}")
            for tt in range(2):
                for p in range(2):
                    d0 = ACC + (tt * 4 + 2 * p) * 4
                    for j in range(4):
                        r0 = d0 + 2 * j
                        bi = 184 + (2 * p + (j >> 1)) * 4 + (j & 1) * 2
                        a(f"""
                        v_cvt_pk_bf16_f32 v{r0+1}, v{r0}, v{r0+1}
                        v_lshlrev_b32 v{r0}, 16, v{r0+1}
                        v_and_b32 v{r0+1}, 0xffff0000, v{r0+1}
                        v_add_f32 v{r0}, v{r0}, v{bi}
                        v_add_f32 v{r0+1}, v{r0+1}, v{bi+1}
                        v_cvt_pk_bf16_f32 v{r0+1}, v{r0}, v{r0+1}
                        v_lshlrev_b32 v{r0}, 16, v{r0+1}
                        v_and_b32 v{r0+1}, 0xffff0000, v{r0+1}
                        v_max_f32 v{r0}, 0, v{r0}
                        v_max_f32 v{r0+1}, 0, v{r0+1}
                        v_mul_f32 v{r0}, v{r0}, v{r0}
                        v_mul_f32 v{r0+1}, v{r0+1}, v{r0+1}
                        v_cvt_pk_bf16_f32 v{d0+j}, v{r0}, v{r0+1}
                        """)
                    va = 4 if p == 0 else 19
                    a(f"buffer_store_dwordx4 v[{d0}:{d0+3}], v{va}, s[8:11], s{42 if tt == 0 else 19} offen offset:{p*1024} sc1")
        a(f"""
        s_add_u32 s42, s42, s43
        s_add_u32 s41, s41, 1
        s_cmp_eq_u32 s41, 1
        s_cbranch_scc1 G_{kind}_first
        s_cmp_lt_u32 s41, 16
        s_cbranch_scc1 G_{kind}
        s_branch G_end
        G_{kind}_first:
        s_waitcnt vmcnt(0)
        """)
        flag_store(a, "s41", "s44", 21)
        poll_ge(a, 20, "s22", 1, 210, sleep=2, x2=True)
        a(f"s_branch G_{kind}")

    for kind in "KQVH":
        loop(kind)
    a("G_end:")
    a("s_waitcnt vmcnt(0)")
    flag_store(a, "16", "s44", 21)
    a(f"""
    s_barrier
    G_add:
    s_cmp_lg_u32 s17, 0
    s_cbranch_scc1 G_noadd
    v_lshlrev_b32 v20, 7, v1
    v_mov_b32 v21, 1
    s_mov_b32 s19, {F_G1:#x}
    s_mov_b64 exec, 0xffffffff
    buffer_atomic_add v21, v20, s[8:11], s19 offen sc1
    s_mov_b64 exec, -1
    G_noadd:
    """)


def lane_ids(a):
    a("""
    v_and_b32 v120, 15, v1
    v_lshrrev_b32 v121, 4, v1
    v_lshrrev_b32 v122, 2, v120
    v_and_b32 v123, 3, v120
    """)


L_ATT = wk.L_RED + 0x4000
Q_, K_, V_, KVM_, KA_, S_ = 24, 40, 72, 104, 120, 128


def attn_consts(a):
    a(f"""
    s_lshr_b32 s19, s17, 1
    s_lshl_b32 s24, s43, 1
    s_add_u32 s24, s24, s19
    s_lshl_b32 s25, s24, 7
    s_add_u32 s25, s25, {F_PG:#x}
    s_lshl_b32 s19, s17, 11
    s_add_u32 s19, s19, {L_ATT:#x}
    v_lshrrev_b32 v20, 3, v120
    v_xor_b32 v21, v121, v20
    v_lshlrev_b32 v2, 8, v20
    v_lshl_add_u32 v2, v21, 6, v2
    v_and_b32 v21, 7, v120
    v_lshl_add_u32 v2, v21, 3, v2
    v_add_u32 v2, s19, v2
    v_lshrrev_b32 v20, 1, v121
    v_xor_b32 v21, v123, v20
    v_lshlrev_b32 v3, 8, v20
    v_lshl_add_u32 v3, v21, 6, v3
    v_and_b32 v21, 1, v121
    v_lshl_add_u32 v3, v21, 5, v3
    v_lshl_add_u32 v3, v122, 3, v3
    v_add_u32 v3, s19, v3
    s_mov_b32 s73, {f2u(wk.C_SCALE):#x}
    s_mov_b32 s72, {f2u(wk.LOG2E):#x}
    s_and_b32 s19, s41, 1
    s_lshl_b32 s19, s19, 4
    v_add_u32 v20, s19, v120
    v_lshlrev_b32 v21, 2, v121
    v_lshl_add_u32 v10, v120, 10, v11
    s_and_b32 s19, s17, 1
    s_lshl_b32 s19, s19, 10
    s_add_u32 s19, s19, {wk.L_RED:#x}
    v_add_u32 v19, s19, v4
    """)
    for t in range(2):
        for i in range(4):
            a(f"v_add_u32 v22, {16*t+i}, v21")
            a(f"v_cmp_le_u32 s[{56+8*t+2*i}:{57+8*t+2*i}], v22, v20")


def round_scale(a, r0, r1):
    a(f"""
    v_cvt_pk_bf16_f32 v{r1}, v{r0}, v{r1}
    v_lshlrev_b32 v{r0}, 16, v{r1}
    v_and_b32 v{r1}, 0xffff0000, v{r1}
    v_mul_f32 v{r0}, s73, v{r0}
    v_mul_f32 v{r1}, s73, v{r1}
    v_cvt_pk_bf16_f32 v{r1}, v{r0}, v{r1}
    v_lshlrev_b32 v{r0}, 16, v{r1}
    v_and_b32 v{r1}, 0xffff0000, v{r1}
    """)


def attn_task(a, opt):
    S0, S1, DE, DO = S_, S_ + 4, S_ + 8, S_ + 12
    T0, T1, NEG = S_ + 16, S_ + 17, S_ + 18
    P, PM = S_ + 20, S_ + 24
    O = 160
    a(f"""
    s_lshr_b32 s26, s42, 1
    s_lshl_b32 s19, s26, 18
    s_lshl_b32 s20, s24, 13
    s_add_u32 s19, s19, s20
    s_and_b32 s20, s42, 1
    s_lshl_b32 s20, s20, 12
    s_add_u32 s20, s20, s19
    s_add_u32 s20, s20, {WS_QF:#x}
    """)
    for i in range(4):
        a(f"buffer_load_dwordx4 v[{Q_+4*i}:{Q_+4*i+3}], v4, s[8:11], s20 offen offset:{i*1024} sc1")
    for hh in range(2):
        a(f"s_add_u32 s20, s19, {WS_KF + hh*4096:#x}")
        for i in range(4):
            r = K_ + (hh * 4 + i) * 4
            a(f"buffer_load_dwordx4 v[{r}:{r+3}], v4, s[8:11], s20 offen offset:{i*1024} sc1")
    a(f"""
    s_and_b32 s20, s17, 1
    s_lshl_b32 s20, s20, 12
    s_add_u32 s20, s20, s19
    s_add_u32 s20, s20, {WS_VF:#x}
    """)
    for i in range(4):
        a(f"buffer_load_dwordx4 v[{V_+4*i}:{V_+4*i+3}], v4, s[8:11], s20 offen offset:{i*1024} sc1")
    a(f"""
    s_lshl_b32 s23, s42, 14
    buffer_load_dwordx2 v[16:17], v10, s[48:51], s23 offen
    s_waitcnt vmcnt(5)
    """)
    for t, d in ((0, S0), (1, S1)):
        for f in range(4):
            c = "0" if f == 0 else f"v[{d}:{d+3}]"
            a(f"v_mfma_f32_16x16x32_bf16 v[{d}:{d+3}], v[{K_+16*t+4*f}:{K_+16*t+4*f+3}], v[{Q_+4*f}:{Q_+4*f+3}], {c}")
    a(f"v_mov_b32 v{NEG}, {f2u(-1e30):#x}")
    a(f"v_mov_b32 v{PM}, 0")
    a(f"v_mov_b32 v{PM+3}, 0")
    for j in range(0, 8, 2):
        round_scale(a, S0 + j, S0 + j + 1)
    for j in range(8):
        a(f"v_cndmask_b32 v{S0+j}, v{NEG}, v{S0+j}, s[{56+2*j}:{57+2*j}]")
    a(f"""
    v_max3_f32 v{T0}, v{S0}, v{S0+1}, v{S0+2}
    v_max3_f32 v{T0}, v{T0}, v{S0+3}, v{S0+4}
    v_max3_f32 v{T0}, v{T0}, v{S0+5}, v{S0+6}
    v_max_f32 v{T0}, v{T0}, v{S0+7}
    s_lshl_b32 s19, s26, 17
    s_lshl_b32 s20, s24, 12
    s_add_u32 s19, s19, s20
    s_add_u32 s19, s19, {WS_KM:#x}
    s_and_b32 s20, s17, 1
    s_lshl_b32 s20, s20, 11
    s_add_u32 s22, s19, s20
    s_xor_b32 s19, s22, 0x800
    s_mov_b32 s21, 0
    """)
    lab = a.uid("CF")
    a(f"""
    {lab}:
    buffer_load_dwordx4 v[20:23], v18, s[8:11], s25 offen offset:96 sc1
    s_add_u32 s21, s21, 1
    s_cmp_gt_u32 s21, {TIMEOUT}
    s_cbranch_scc1 F_fail
    s_waitcnt vmcnt(0)
    v_readfirstlane_b32 s20, v20
    s_cmp_ge_u32 s20, s26
    s_cbranch_scc1 {lab}_ok
    s_add_u32 s20, s20, 1
    s_cmp_ge_u32 s20, s26
    s_cbranch_scc1 {lab}_s
    s_sleep 16
    s_add_u32 s20, s20, 2
    s_cmp_ge_u32 s20, s26
    s_cbranch_scc1 {lab}
    s_sleep 80
    {lab}_s:
    s_sleep {opt.get('cfs', 4)}
    s_branch {lab}
    {lab}_ok:
    """)
    for w in range(4):
        a(f"buffer_load_dwordx4 v[{KVM_+4*w}:{KVM_+4*w+3}], v4, s[8:11], s{22 if w < 2 else 19} offen offset:{(w&1)*1024} sc1")
    a(f"""
    s_add_u32 s21, s21, 1
    s_cmp_gt_u32 s21, {TIMEOUT}
    s_cbranch_scc1 F_fail
    """)
    for w in range(4):
        a(f"s_waitcnt vmcnt({3-w})")
        a(f"ds_write_b64 v{2 if w < 2 else 5}, v[{KVM_+4*w}:{KVM_+4*w+1}] offset:{(w&1)*512}")
        r = KVM_ + 4 * w
        if w == 0:
            a(f"v_max3_u32 v20, v{r}, v{r+1}, v{r+2}")
            a(f"v_max_u32 v20, v20, v{r+3}")
        else:
            a(f"v_max3_u32 v20, v20, v{r}, v{r+1}")
            a(f"v_max3_u32 v20, v20, v{r+2}, v{r+3}")
    for w in range(4):
        a(f"ds_read_b64_tr_b16 v[{KA_+2*w}:{KA_+2*w+1}], v3 offset:{w*512}")
    a(f"""
    v_cmp_eq_u32 vcc, -1, v20
    s_cbranch_vccnz {lab}_ok
    """)
    tstamp(a, opt, 6)
    a(f"""
    s_lshl_b32 s19, s42, 17
    s_lshl_b32 s20, s43, 13
    s_add_u32 s20, s19, s20
    s_lshl_b32 s22, s17, 11
    s_add_u32 s20, s20, s22
    s_add_u32 s20, s20, {WS_OF:#x}
    s_lshl_b32 s22, s17, 15
    s_add_u32 s19, s19, s22
    s_add_u32 s19, s19, {WS_OF:#x}
    s_waitcnt lgkmcnt(2)
    v_mfma_f32_16x16x32_bf16 v[{DE}:{DE+3}], v[{KA_}:{KA_+3}], v[{Q_}:{Q_+3}], 0
    v_mfma_f32_16x16x32_bf16 v[{DO}:{DO+3}], v[{KA_}:{KA_+3}], v[{Q_+4}:{Q_+7}], 0
    s_waitcnt lgkmcnt(0)
    v_mfma_f32_16x16x32_bf16 v[{DE}:{DE+3}], v[{KA_+4}:{KA_+7}], v[{Q_+8}:{Q_+11}], v[{DE}:{DE+3}]
    v_mfma_f32_16x16x32_bf16 v[{DO}:{DO+3}], v[{KA_+4}:{KA_+7}], v[{Q_+12}:{Q_+15}], v[{DO}:{DO+3}]
    v_add_f32 v{DE}, v{DE}, v{DO+2}
    v_add_f32 v{DE+1}, v{DE+1}, v{DO+3}
    """)
    round_scale(a, DE, DE + 1)
    a(f"v_max3_f32 v{T0}, v{T0}, v{DE}, v{DE+1}")
    xreduce_max(a, T0, T1)
    regs = list(range(S0, S0 + 10))
    for r in regs:
        a(f"v_sub_f32 v{r}, v{r}, v{T0}")
    for r in regs:
        a(f"v_mul_f32 v{r}, s72, v{r}")
    for r in regs:
        a(f"v_exp_f32 v{r}, v{r}")
    a(f"v_add_f32 v{T0}, v{regs[0]}, v{regs[1]}")
    for r in regs[2:]:
        a(f"v_add_f32 v{T0}, v{T0}, v{r}")
    xreduce_add(a, T0, T1)
    a(f"v_rcp_f32 v{T0}, v{T0}")
    for r in regs:
        a(f"v_mul_f32 v{r}, v{r}, v{T0}")
    for j in range(4):
        a(f"v_cvt_pk_bf16_f32 v{P+j}, v{S0+2*j}, v{S0+2*j+1}")
    a(f"v_cvt_pk_bf16_f32 v{PM+1}, v{DE}, v{DE+1}")
    a(f"v_cvt_pk_bf16_f32 v{PM+2}, v{DE}, v{DE+1}")
    for et in range(4):
        d = O + 4 * et
        a(f"v_mfma_f32_16x16x32_bf16 v[{d}:{d+3}], v[{V_+4*et}:{V_+4*et+3}], v[{P}:{P+3}], 0")
    for et in range(4):
        d = O + 4 * et
        vm = KVM_ + 4 * (et >> 1) + 2
        b = PM + 2 if et % 2 == 0 else PM
        a(f"v_mfma_f32_16x16x16_bf16 v[{d}:{d+3}], v[{vm}:{vm+1}], v[{b}:{b+1}], v[{d}:{d+3}]")
    a("s_cmp_lg_u32 s27, 0")
    for k4 in range(2):
        d0 = O + 8 * k4
        d1 = d0 + 4
        a(f"""
        v_cvt_pk_bf16_f32 v{d0}, v{d0}, v{d0+1}
        v_cvt_pk_bf16_f32 v{d0+1}, v{d0+2}, v{d0+3}
        v_cvt_pk_bf16_f32 v{d0+2}, v{d1}, v{d1+1}
        v_cvt_pk_bf16_f32 v{d0+3}, v{d1+2}, v{d1+3}
        """)
    a("s_cbranch_scc1 W_oslow")
    for k4 in range(2):
        a(f"buffer_store_dwordx4 v[{O+8*k4}:{O+8*k4+3}], v4, s[8:11], s20 offen offset:{k4*1024}")
    a("s_branch W_odone")
    a("W_oslow:")
    for k4 in range(2):
        a(f"buffer_store_dwordx4 v[{O+8*k4}:{O+8*k4+3}], v4, s[8:11], s20 offen offset:{k4*1024} sc1")
    a("W_odone:")


def out_task(a, opt, gsrc):
    A = wk.ACC7
    a(f"""
    s_mov_b32 s21, 0
    W_pre:
    buffer_load_dword v20, v6, s[8:11], s19 offen sc1
    s_add_u32 s21, s21, 1
    s_cmp_gt_u32 s21, {TIMEOUT}
    s_cbranch_scc1 F_fail
    s_waitcnt vmcnt(0)
    v_cmp_eq_u32 vcc, -1, v20
    s_cbranch_vccnz W_pre
    """)
    tstamp(a, opt, 7)
    for ks in range(32):
        if ks % 4 == 0:
            a(f"s_add_u32 s20, s19, {ks*1024}")
        a(f"buffer_load_dwordx4 v[{24+4*ks}:{24+4*ks+3}], v4, s[8:11], s20 offen offset:{(ks%4)*1024} sc1")
    for ks in range(32):
        r = 24 + 4 * ks
        a(f"s_waitcnt vmcnt({31 - ks})")
        for ct in range(2):
            d = A + ct * 4
            w = (ks * 2 + ct) * 4
            c = "0" if ks == 0 else f"v[{d}:{d+3}]"
            a(f"v_mfma_f32_16x16x32_bf16 v[{d}:{d+3}], a[{w}:{w+3}], v[{r}:{r+3}], {c}")
            a(f"v_max3_u32 v20, v20, v{r+2*ct}, v{r+2*ct+1}")
    a(f"""
    v_cmp_eq_u32 vcc, -1, v20
    s_cbranch_vccnz W_pre
    ds_write_b128 v8, v[{A}:{A+3}]
    ds_write_b128 v8, v[{A+4}:{A+7}] offset:1024
    v_lshlrev_b32 v28, 16, v16
    v_and_b32 v29, 0xffff0000, v16
    v_lshlrev_b32 v30, 16, v17
    v_and_b32 v31, 0xffff0000, v17
    s_add_u32 s23, s23, s28
    s_waitcnt lgkmcnt(0)
    s_barrier
    """)
    for w in range(4):
        a(f"ds_read_b128 v[{A+4*w}:{A+4*w+3}], v19 offset:{w*4096}")
    a("v_xor_b32 v8, 0x800, v8")
    a("v_xor_b32 v19, 0x800, v19")
    a("s_waitcnt lgkmcnt(2)")
    for i in range(4):
        a(f"v_add_f32 v{A+i}, v{A+i}, v{A+4+i}")
    a("s_waitcnt lgkmcnt(0)")
    for i in range(4):
        a(f"v_add_f32 v{A+8+i}, v{A+8+i}, v{A+12+i}")
    for i in range(4):
        a(f"v_add_f32 v{24+i}, v{A+i}, v{A+8+i}")
    wk.round4(a, 24)
    for i in range(4):
        a(f"v_mul_f32 v{24+i}, v{24+i}, v{gsrc+i}")
    wk.round4(a, 24)
    for i in range(4):
        a(f"v_add_f32 v{24+i}, v{24+i}, v{28+i}")
    a("""
    v_cvt_pk_bf16_f32 v24, v24, v25
    v_cvt_pk_bf16_f32 v25, v26, v27
    buffer_store_dwordx2 v[24:25], v10, s[52:55], s23 offen
    """)


def worker(a, opt):
    GST = wk.GST
    a("F_worker:")
    a("s_sub_u32 s40, s16, 32")
    lane_ids(a)
    srd_from_arg(a, 76, ARG_X, 2 << 20)
    a("s_sub_u32 s41, 223, s40")
    LX = L_TK + 64

    def ln_flag():
        wait_ready(a)
        lab = a.uid("LF")
        a(f"""
        s_barrier
        s_cmp_lg_u32 s17, 0
        s_cbranch_scc1 {lab}
        s_lshl_b32 s19, s41, 2
        s_add_u32 s19, s19, {F_LN:#x}
        """)
        flag_store(a, "1", "s19", 21)
        a(f"{lab}:")

    a("s_cmp_lt_u32 s40, 128")
    a("s_cbranch_scc1 W_kv")
    wk.gen_ln(a, 41, 76, LX, part="load")
    srd_from_arg(a, 76, ARG_WO, 4 << 20)
    a("""
    s_sub_u32 s19, s40, 128
    s_lshl_b32 s19, s19, 16
    v_lshlrev_b32 v76, 7, v0
    buffer_load_dword v77, v76, s[76:79], s19 offen
    s_add_u32 s19, s19, 0x8000
    buffer_load_dword v78, v76, s[76:79], s19 offen
    """)
    wk.gen_ln(a, 41, 76, LX, sc="sc1", part="compute", pending=2)
    confirm(a, opt, L_TK, 20, 21)
    ln_flag()
    a("s_cmp_lt_u32 s40, 214")
    a("s_cbranch_scc0 G_add")
    gemm1_issue_weights(a)
    a("s_branch W_main")
    a("W_kv:")
    a("s_cmp_lt_u32 s40, 96")
    a("s_cbranch_scc1 W_noln")
    wk.gen_ln(a, 41, 76, LX, part="load")
    a("W_noln:")
    gemm1_issue_weights(a)
    a("s_waitcnt vmcnt(16)")
    confirm(a, opt, L_TK, 20, 21)
    a("s_cmp_lt_u32 s40, 96")
    a("s_cbranch_scc1 W_noln2")
    wk.gen_ln(a, 41, 76, LX, sc="sc1", part="compute", pending=18)
    ln_flag()
    a("s_branch W_main")
    a("W_noln2:")
    wait_ready(a)
    a("W_main:")
    tstamp(a, opt, 1)
    gemm1_main(a, opt)
    a("W_c:")
    tstamp(a, opt, 3, 6)
    a("""
    s_lshr_b32 s41, s40, 4
    s_and_b32 s43, s40, 15
    """)
    lane_ids(a)
    wk.gen_out_consts(a, 43)
    attn_consts(a)
    a("s_barrier")
    wk.gen_gate_setup(a)
    a(f"""
    s_cmp_lg_u32 s17, 0
    s_cbranch_scc1 W_nopoll
    s_and_b32 s22, s40, 31
    s_lshl_b32 s22, s22, 7
    s_add_u32 s22, s22, {F_G1:#x}
    s_movk_i32 s23, 224
    v_mov_b32 v20, 0
    """)
    poll_ge(a, 20, "s22", "s23", 22, sleep=16)
    a(f"""
    W_nopoll:
    s_barrier
    v_mov_b32 v18, 0
    buffer_load_dword v23, v18, s[12:15], 0 offen offset:{D_SLOW} sc1
    s_mov_b32 s42, s41
    W_gate:
    """)
    for i in range(0, 16, 2):
        a(f"v_mov_b64 v[{GST+i}:{GST+i+1}], v[{GST+i+4}:{GST+i+5}]")
    wk.gen_gate(a, 42, GST + 16, "sc1", mul=1, dt=14)
    a(f"""
    s_add_u32 s42, s42, 28
    s_cmp_lt_u32 s42, 128
    s_cbranch_scc1 W_gate
    v_readfirstlane_b32 s27, v23
    """)
    if opt.get("oslow"):
        a("s_mov_b32 s27, 1")
    tstamp(a, opt, 4)
    wk.gen_wo_setup(a)
    a(f"""
    s_and_b32 s19, s17, 1
    s_lshl_b32 s19, s19, 10
    v_add_u32 v2, s19, v2
    v_xor_b32 v5, 0x400, v2
    v_and_b32 v6, 31, v1
    v_lshlrev_b32 v6, 10, v6
    v_lshrrev_b32 v7, 5, v1
    v_mul_u32_u24 v7, 0x3fc, v7
    v_add_u32 v6, v6, v7
    s_mov_b32 s42, s41
    s_lshr_b32 s28, s17, 1
    s_lshl_b32 s28, s28, 30
    s_barrier
    """)
    tstamp(a, opt, 5, 7)
    a("W_seg:")
    attn_task(a, opt)
    out_task(a, opt, GST)
    tstamp(a, opt, 8, 4)
    if opt.get("tl"):
        a("s_cmp_lt_u32 s42, 42")
        a("s_cselect_b32 s19, 0, 12")
        a("s_add_u32 s97, s97, s19")
    a(f"""
    s_xor_b32 s28, s28, 0x40000000
    s_add_u32 s42, s42, 14
    s_sub_u32 s19, s42, s41
    s_bitcmp1_b32 s19, 1
    s_cbranch_scc1 W_norot
    """)
    for i in range(0, 16, 2):
        a(f"v_mov_b64 v[{GST+i}:{GST+i+1}], v[{GST+i+4}:{GST+i+5}]")
    a(f"""
    W_norot:
    s_cmp_lt_u32 s42, 128
    s_cbranch_scc1 W_seg
    s_endpgm
    F_fail:
    v_mov_b32 v32, 0xdead
    v_mov_b32 v33, {D_FAIL}
    s_mov_b64 exec, 1
    buffer_store_dword v32, v33, s[12:15], 0 offen
    F_exit:
    s_endpgm
    """)


NAME = "recurrent_scan__memory_aug_recurrent_mem_tr__dense_activation_squared_relu__prompt"
DEF = dict(depth=2, pre1=42, pre2=55, gap1=40, gap2=40)


def build(path, opt):
    o = dict(DEF)
    o.update(opt)
    hdr = open(f"cdna_kernels/{NAME}.s.ref").read().split("; Override launch")[0]
    a = Asm()
    for ln in hdr.strip().split("\n"):
        a.raw(ln)
    kn = NAME + "_kernel" if o.get("single") else "fused_kernel"
    if o.get("single"):
        a.raw(f"; @launch grid=(256,1,1) block=(256,1,1) lds={ch.LDS_BYTES}")
    else:
        a.raw(f"; @launch kernel=fused_kernel grid=(256,1,1) block=(256,1,1) lds={ch.LDS_BYTES}")
    a.raw('.amdgcn_target "amdgcn-amd-amdhsa--gfx950"')
    a.raw(".text")
    kernel_header(a, kn)
    prologue(a, o)
    chain_role(a, o)
    worker(a, o)
    loser(a, o)
    a.lines = ch.hoist_waits(a.lines)
    a.lines = hazard.fix(a.lines, True)
    a.raw('.section .rodata,"a"')
    a.raw(".p2align 6")
    a.raw(kernel_desc(kn, 512, 256))
    open(path, "w").write(a.text())


if __name__ == "__main__":
    opt = {}
    for kv in sys.argv[2:]:
        k, v = kv.split("=")
        opt[k] = v if k in ("sc", "xsc", "lnt") else int(v)
    build(sys.argv[1], opt)
```

```python
import re

_reg_re = re.compile(r"\b([vas])(\d+)\b|\b([vas])\[(\d+):(\d+)\]|\b(vcc|exec|m0|scc)\b")
TRANS = ("v_exp_f32", "v_log_f32", "v_rcp_f32", "v_rsq_f32", "v_sqrt_f32", "v_sin_f32", "v_cos_f32",
         "v_rcp_iflag_f32", "v_exp_f16", "v_rcp_f16")


def regs_of(op):
    out = set()
    for m in _reg_re.finditer(op):
        if m.group(1):
            out.add((m.group(1), int(m.group(2))))
        elif m.group(3):
            for i in range(int(m.group(4)), int(m.group(5)) + 1):
                out.add((m.group(3), i))
        else:
            out.add((m.group(6), 0))
    return out


def split_ops(s):
    ops, depth, cur = [], 0, ""
    for ch in s:
        if ch == "[":
            depth += 1
        if ch == "]":
            depth -= 1
        if ch == "," and depth == 0:
            ops.append(cur.strip())
            cur = ""
        else:
            cur += ch
    if cur.strip():
        ops.append(cur.strip())
    return ops


class Ins:
    __slots__ = ("text", "mn", "cls", "wr", "rd", "A", "B", "C", "D", "passes", "slots", "dpp", "wide_store", "lds_dma",
                 "sdata")

    def __init__(self, text):
        self.text = text
        body = text.split(";")[0].strip()
        parts = body.split(None, 1)
        mn = parts[0]
        self.mn = mn
        rest = parts[1] if len(parts) > 1 else ""
        ops = split_ops(rest)
        self.wr, self.rd = set(), set()
        self.A = self.B = self.C = self.D = frozenset()
        self.passes = 0
        self.slots = 1
        self.dpp = ("_dpp" in mn) or ("row_" in rest) or ("quad_perm" in rest)
        self.wide_store = False
        self.lds_dma = False
        self.sdata = frozenset()
        R = [regs_of(re.sub(r"(quad_perm|op_sel|op_sel_hi|neg_lo|neg_hi):\[[^\]]*\]", "", o)) for o in ops]
        if mn == "s_nop":
            self.cls = "nop"
            self.slots = int(ops[0], 0) + 1
        elif mn.startswith("v_mfma") or mn.startswith("v_smfmac"):
            self.cls = "mfma"
            self.passes = 8 if "32x32" in mn else 4
            self.D = frozenset(R[0])
            self.A = frozenset(R[1])
            self.B = frozenset(R[2])
            if mn.startswith("v_smfmac"):
                self.C = self.D
                self.A = self.A | frozenset(R[3])
            else:
                self.C = frozenset(R[3])
            self.wr = set(self.D)
            self.rd = set(self.A | self.B | self.C)
        elif mn.startswith("v_"):
            self.cls = "valu"
            if mn.startswith("v_permlane") and "swap" in mn:
                self.wr = R[0] | R[1]
                self.rd = R[0] | R[1]
            elif mn.startswith("v_cmp"):
                self.wr = set(R[0])
                for r in R[1:]:
                    self.rd |= r
                if mn.startswith("v_cmpx"):
                    self.wr.add(("exec", 0))
            elif re.match(r"v_(add|sub|subrev|addc|subb)_co_", mn) or mn.startswith("v_div_scale"):
                self.wr = R[0] | R[1]
                for r in R[2:]:
                    self.rd |= r
            elif mn == "v_nop":
                pass
            else:
                self.wr = set(R[0])
                for r in R[1:]:
                    self.rd |= r
                if re.match(r"v_(fmac|dot2c|pk_fmac|writelane|dot4c)", mn):
                    self.rd |= R[0]
        elif mn.startswith("ds_"):
            self.cls = "ds"
            if mn.startswith("ds_read") or "permute" in mn or "swizzle" in mn:
                self.wr = set(R[0])
                for r in R[1:]:
                    self.rd |= r
            else:
                for r in R:
                    self.rd |= r
        elif mn.startswith("buffer_") or mn.startswith("global_"):
            self.cls = "vmem"
            is_lds = bool(re.search(r"\blds\b", rest)) or "_lds_" in mn
            self.lds_dma = is_lds
            if "load" in mn and not is_lds:
                self.wr = set(R[0])
                for r in R[1:]:
                    self.rd |= r
            else:
                for r in R:
                    self.rd |= r
                if "atomic" in mn and "sc0" in rest:
                    self.wr = set(R[0])
                if "store" in mn and ("x4" in mn or "x3" in mn):
                    self.wide_store = True
                    self.sdata = frozenset(R[0] if mn.startswith("buffer_") else R[1])
        elif mn.startswith("s_"):
            self.cls = "salu"
            if re.match(r"s_(cmp|cbranch|branch|waitcnt|barrier|endpgm|sleep|setprio|bitcmp|setreg)", mn):
                for r in R:
                    self.rd |= r
            elif R:
                self.wr = set(R[0])
                for r in R[1:]:
                    self.rd |= r
                if "saveexec" in mn:
                    self.wr.add(("exec", 0))
        else:
            self.cls = "other"


def _base(mn):
    return re.sub(r"_(e32|e64|dpp|sdwa)$", "", mn)


def _vg(s):
    return {r for r in s if r[0] in "va" and len(r[0]) == 1}


def _sg(s):
    return {r for r in s if r[0] == "s" or r[0] == "vcc"}


def need(p, c):
    n = 0
    if p.cls == "valu":
        w = _vg(p.wr)
        if c.cls == "mfma" and w & c.rd:
            n = max(n, 2)
        if c.cls == "valu":
            if c.mn.startswith("v_permlane") and w & c.rd:
                n = max(n, 2)
            if c.dpp and w & c.rd:
                n = max(n, 2)
            if re.match(r"v_read(first)?lane", c.mn) and w & c.rd:
                n = max(n, 1)
            if _base(p.mn) in TRANS and _base(c.mn) not in TRANS and w & (c.rd | c.wr):
                n = max(n, 1)
            if ("sdwa" in p.mn or "op_sel:" in p.text) and w & (c.rd | c.wr):
                n = max(n, 1)
        if _base(p.mn) in TRANS and c.cls in ("ds", "vmem") and w & c.rd:
            n = max(n, 1)
        sw = _sg(p.wr)
        if sw:
            if c.cls == "valu" and sw & c.rd:
                n = max(n, 4 if re.match(r"v_(read|write)lane", c.mn) else 2)
            if c.cls == "vmem" and sw & c.rd:
                n = max(n, 5)
            if c.cls == "salu" and sw & c.rd and not c.mn.startswith("s_cbranch"):
                n = max(n, 1)
        if ("exec", 0) in p.wr:
            if c.cls == "mfma":
                n = max(n, 4)
            if c.cls == "valu":
                n = max(n, 5)
    elif p.cls == "mfma":
        big = p.passes == 8
        if c.cls == "mfma":
            if p.D & (c.A | c.B):
                n = max(n, 12 if big else 8)
            if p.D & c.C and not (p.D == c.C and p.mn == c.mn):
                n = max(n, 10 if big else 6)
            if p.D & c.D and not (p.D == c.C and p.mn == c.mn):
                n = max(n, 10 if big else 6)
        elif c.cls in ("valu", "ds", "vmem"):
            if p.D & (c.rd | c.wr):
                n = max(n, 12 if big else 8)
            if p.C & c.wr:
                n = max(n, 7 if big else 3)
    elif p.cls == "vmem":
        if p.wide_store and p.sdata & c.wr:
            n = max(n, 2)
    elif p.cls == "salu":
        if ("m0", 0) in p.wr and ((c.cls == "vmem" and c.lds_dma) or c.mn.startswith("v_writelane")
                                  or c.mn.startswith("v_readlane") or c.mn.startswith("s_movrel")):
            n = max(n, 1)
    if p.cls in ("ds", "vmem") and c.cls == "valu" and c.dpp:
        pass
    return n


TIMED = True


def fix(lines, report=False):
    out = []
    hist = []
    inserted = 0
    for ln in lines:
        s = ln.strip()
        if (not s) or s.startswith(";") or s.startswith(".") or s.endswith(":") or not ln.startswith("    "):
            out.append(ln)
            if s.startswith(".p2align") or s.startswith(".globl"):
                hist = []
            continue
        c = Ins(s)
        pad = 0
        for i in range(len(hist) - 1, -1, -1):
            p = hist[i]
            k = need(p, c)
            if not k:
                continue
            t, last = 0, (0 if p.cls == "mfma" else None)
            prev = p
            for q in hist[i + 1:] + [c]:
                t += prev.slots
                if q.cls == "mfma":
                    if last is not None and TIMED and q is not c:
                        t = max(t, last + 4)
                    last = t
                prev = q
            dist = t - 1
            if k > dist:
                pad = max(pad, k - dist)
        if pad:
            inserted += pad
            nop = Ins(f"s_nop {pad-1}")
            out.append(f"    s_nop {pad-1}")
            hist.append(nop)
        out.append(ln)
        hist.append(c)
        if c.mn in ("s_branch", "s_endpgm"):
            hist = []
        if len(hist) > 24:
            hist = hist[-24:]
    if report:
        print("hazard nops inserted:", inserted)
    return out
```

```python
import sys, math
sys.path.insert(0, "gen")
from asmlib import *
from layout import *
import hazard, importlib, workers as wk
CHN = [x for x in sys.argv if x.startswith('chain=')]
CHN = int(CHN[0][6:]) if CHN else 5
ch = importlib.import_module(f'chain{CHN}')
from workers import f2u, srd_from_arg, xreduce_add, xreduce_max

TIMEOUT = 400000
L_TK = 0x27000


def tstamp(a, opt, idx, dw=None):
    if opt.get("dbg") and dw is not None:
        lab = a.uid("TD")
        a(f"""
        s_cmp_lg_u32 s17, 0
        s_cbranch_scc1 {lab}
        s_memrealtime s[98:99]
        s_waitcnt lgkmcnt(0)
        s_mov_b64 s[100:101], exec
        s_mov_b64 exec, 1
        v_mov_b32 v254, s98
        v_not_b32 v255, v254
        v_mov_b32 v253, 0
        buffer_atomic_umax v254, v253, s[12:15], 0 offen offset:{dw*8} sc1
        buffer_atomic_umax v255, v253, s[12:15], 0 offen offset:{dw*8+4} sc1
        s_mov_b64 exec, s[100:101]
        {lab}:
        """)
    if not opt.get("tl"):
        return
    lab = a.uid("TS")
    a(f"""
    s_cmp_lg_u32 s17, 0
    s_cbranch_scc1 {lab}
    s_memrealtime s[98:99]
    s_waitcnt lgkmcnt(0)
    s_mov_b64 s[100:101], exec
    s_mov_b64 exec, 1
    v_mov_b32 v254, s98
    v_mov_b32 v255, 0
    buffer_store_dword v254, v255, s[8:11], s97 offen offset:{idx*4}
    s_mov_b64 exec, s[100:101]
    {lab}:
    """)


def poll_ge(a, vaddr, soff, thr, vtmp, sleep=2, x2=False, srd=8):
    lab = a.uid("PL")
    a("s_mov_b32 s21, 0")
    a(f"{lab}:")
    if x2:
        a(f"buffer_load_dwordx2 v[{vtmp}:{vtmp+1}], v{vaddr}, s[{srd}:{srd+3}], {soff} offen sc1")
    else:
        a(f"buffer_load_dword v{vtmp}, v{vaddr}, s[{srd}:{srd+3}], {soff} offen sc1")
    a(f"""
    s_add_u32 s21, s21, 1
    s_cmp_gt_u32 s21, {TIMEOUT}
    s_cbranch_scc1 F_fail
    s_waitcnt vmcnt(0)
    """)
    if x2:
        a(f"v_min_u32 v{vtmp}, v{vtmp}, v{vtmp+1}")
    a(f"""
    v_cmp_gt_u32 vcc, {thr}, v{vtmp}
    s_cbranch_vccz {lab}_ok
    s_sleep {sleep}
    s_branch {lab}
    {lab}_ok:
    """)


def flag_store(a, sval, soff, t0):
    a(f"""
    v_mov_b32 v{t0}, {sval}
    s_mov_b64 exec, 1
    buffer_store_dword v{t0}, v4, s[8:11], {soff} offen sc1
    s_mov_b64 exec, -1
    """)


def wait_ready(a):
    a(f"v_mov_b32 v252, {D_READY}")
    poll_ge(a, 252, 0, 1, 253, sleep=2, srd=12)


def prologue(a, opt):
    a(f"""
    s_cmp_ge_u32 s2, 256
    s_cbranch_scc1 F_exit
    s_load_dwordx2 s[4:5], s[0:1], {ARG_DBG}
    s_load_dwordx2 s[6:7], s[0:1], {ARG_WS}
    s_load_dwordx2 s[20:21], s[0:1], 0
    s_getreg_b32 s3, hwreg(HW_REG_XCC_ID)
    s_and_b32 s3, s3, 7
    v_and_b32 v1, 63, v0
    v_lshrrev_b32 v2, 6, v0
    v_readfirstlane_b32 s17, v2
    v_lshlrev_b32 v4, 4, v1
    s_waitcnt lgkmcnt(0)
    """)
    if opt.get("fakexcc"):
        a(f"s_cmp_lt_u32 s2, {opt['fakexcc']}")
        a("s_cselect_b32 s19, 1, 0")
        a("s_max_u32 s3, s3, s19")
    make_srd(a, 8, 6, WS_SIZE)
    make_srd(a, 12, 4, 256)
    if opt.get("tl"):
        a(f"s_lshl_b32 s97, s2, 7")
        a(f"s_add_u32 s97, s97, {WS_DBG:#x}")
    tstamp(a, opt, 0, 1)
    a(f"""
    s_cmp_lg_u32 s2, 255
    s_cbranch_scc1 F_nozero
    v_lshlrev_b32 v5, 4, v0
    v_mov_b32 v8, 0
    v_mov_b32 v9, 0
    v_mov_b32 v10, 0
    v_mov_b32 v11, 0
    """)
    for i in range(FLAG_BYTES // 4096):
        a(f"s_mov_b32 s19, {WS_FLAGS + i*4096:#x}")
        a(f"buffer_store_dwordx4 v[8:11], v5, s[8:11], s19 offen sc1")
    a(f"""
    F_nozero:
    s_bfe_u32 s16, s2, 0x50003
    s_cmp_lg_u32 s17, 0
    s_cbranch_scc1 F_noclaim
    s_lshl_b32 s19, s3, 2
    v_mov_b32 v5, s19
    s_lshl_b32 s19, 1, s16
    v_mov_b32 v124, s19
    s_mov_b64 exec, 1
    buffer_atomic_or v124, v5, s[12:15], 0 offen offset:{D_MASK} sc0 sc1
    s_mov_b64 exec, -1
    F_noclaim:
    s_lshl_b32 s19, s3, 5
    s_add_u32 s16, s16, s19
    s_mov_b32 s18, 0
    F_dispatch:
    s_cmp_ge_u32 s16, 32
    s_cbranch_scc1 F_worker
    """)


def confirm(a, opt, lds, t0, t1):
    lab = a.uid("CN")
    a(f"""
    s_cmp_lg_u32 s18, 0
    s_cbranch_scc1 {lab}_ok
    v_mov_b32 v{t0}, {lds:#x}
    s_cmp_lg_u32 s17, 0
    s_cbranch_scc1 {lab}_a
    s_mov_b64 exec, 1
    ds_write_b32 v{t0}, v124
    s_mov_b64 exec, -1
    {lab}_a:
    s_waitcnt lgkmcnt(0)
    s_barrier
    ds_read_b32 v{t1}, v{t0}
    s_cmp_lg_u32 s2, 255
    s_cbranch_scc1 {lab}_b
    s_cmp_lg_u32 s17, 0
    s_cbranch_scc1 {lab}_b
    v_mov_b32 v{t0}, {D_READY}
    v_mov_b32 v124, 1
    s_mov_b64 exec, 1
    buffer_store_dword v124, v{t0}, s[12:15], 0 offen sc1
    s_mov_b64 exec, -1
    {lab}_b:
    s_waitcnt lgkmcnt(0)
    v_readfirstlane_b32 s19, v{t1}
    s_bitcmp1_b32 s19, s16
    s_cbranch_scc1 F_loser
    {lab}_ok:
    """)
    if opt.get("tl"):
        a(f"v_mov_b32 v{t0}, s16")
        a(f"v_mov_b32 v{t1}, 0")
        a("s_mov_b64 exec, 1")
        a(f"buffer_store_dword v{t0}, v{t1}, s[8:11], s97 offen offset:124")
        a("s_mov_b64 exec, -1")


def loser(a, opt):
    a(f"""
    F_loser:
    v_mbcnt_lo_u32_b32 v1, -1, 0
    v_mbcnt_hi_u32_b32 v1, -1, v1
    s_lshl_b32 s19, s17, 6
    v_add_u32 v0, s19, v1
    v_lshlrev_b32 v4, 4, v1
    v_mov_b32 v3, {L_TK:#x}
    s_waitcnt vmcnt(0) lgkmcnt(0)
    s_barrier
    s_cmp_lg_u32 s17, 0
    s_cbranch_scc1 F_lwait
    s_lshl_b32 s19, s3, 2
    s_add_u32 s19, s19, {D_LOSE}
    v_mov_b32 v5, s19
    v_mov_b32 v6, 1
    s_mov_b64 exec, 1
    buffer_atomic_add v6, v5, s[12:15], 0 offen sc0 sc1
    s_waitcnt vmcnt(0)
    s_mov_b64 exec, -1
    v_readfirstlane_b32 s16, v6
    v_and_b32 v5, 15, v1
    v_lshlrev_b32 v5, 2, v5
    s_mov_b32 s21, 0
    F_ovf:
    buffer_load_dword v6, v5, s[12:15], 0 offen offset:{D_MASK} sc1
    s_add_u32 s21, s21, 1
    s_cmp_gt_u32 s21, {TIMEOUT}
    s_cbranch_scc1 F_fail
    s_waitcnt vmcnt(0)
    s_mov_b32 s19, 0
    """)
    for x in range(16):
        a(f"v_readlane_b32 s{40+x}, v6, {x}")
    for x in range(8):
        a(f"s_bcnt0_i32_b32 s{56+x}, s{40+x}")
        a(f"s_add_u32 s19, s19, s{48+x}")
        a(f"s_sub_u32 s19, s19, s{56+x}")
    a("""
    s_cmp_lg_u32 s19, 0
    s_cbranch_scc1 F_ovf
    """)
    for x in range(8):
        a(f"s_cmp_eq_u32 s3, {x}")
        a(f"s_cselect_b32 s22, s{40+x}, s22")
    a(f"""
    s_bcnt0_i32_b32 s19, s22
    s_mov_b32 s23, s3
    s_cmp_lt_u32 s16, s19
    s_cbranch_scc1 F_pick
    s_sub_u32 s16, s16, s19
    """)
    for x in range(8):
        a(f"""
        s_max_u32 s19, s{48+x}, s{56+x}
        s_sub_u32 s19, s19, s{56+x}
        s_cmp_gt_u32 s3, {x}
        s_cselect_b32 s19, s19, 0
        s_add_u32 s16, s16, s19
        """)
    for x in range(8):
        a(f"""
        s_max_u32 s20, s{48+x}, s{56+x}
        s_sub_u32 s20, s20, s{48+x}
        s_mov_b32 s19, s{48+x}
        s_mov_b32 s22, s{40+x}
        s_mov_b32 s23, {x}
        s_cmp_lt_u32 s16, s20
        s_cbranch_scc1 F_ovf_done
        s_sub_u32 s16, s16, s20
        """)
    a(f"""
    s_branch F_fail
    F_ovf_done:
    s_add_u32 s16, s16, s19
    v_mov_b32 v5, {D_SLOW}
    v_mov_b32 v6, 1
    s_mov_b64 exec, 1
    buffer_store_dword v6, v5, s[12:15], 0 offen sc1
    s_waitcnt vmcnt(0)
    s_mov_b64 exec, -1
    F_pick:
    s_ff0_i32_b32 s19, s22
    s_bitset1_b32 s22, s19
    s_sub_u32 s16, s16, 1
    s_cbranch_scc0 F_pick
    s_lshl_b32 s23, s23, 5
    s_add_u32 s19, s19, s23
    v_mov_b32 v6, s19
    ds_write_b32 v3, v6
    s_waitcnt lgkmcnt(0)
    F_lwait:
    s_barrier
    ds_read_b32 v6, v3
    s_waitcnt lgkmcnt(0)
    v_readfirstlane_b32 s16, v6
    s_mov_b32 s18, 1
    s_barrier
    s_branch F_dispatch
    """)


def chain_role(a, opt):
    o2 = dict(opt)
    o2["sc"] = "sc1"
    L16 = ch.LANE16
    a(f"""
    s_lshl_b32 s29, s16, 7
    s_add_u32 s29, s29, {F_PG:#x}
    s_lshl_b32 s28, s17, 2
    s_add_u32 s28, s28, s29
    s_add_u32 s28, s28, 96
    """)
    state = {}
    H1, H2, H3 = opt.get("h1", 8), opt.get("h2", 11), opt.get("h3", 14)

    def hook(i, T, arr_ok):
        if i == 0:
            confirm(a, opt, ch.lds_frag_off(("v", 5), 0), 30, 31)
        if arr_ok and not state.get("arr"):
            state["arr"] = 1
            a(f"""
            s_cmp_lg_u32 s17, 0
            s_cbranch_scc1 C_noarr
            v_mov_b32 v32, {D_CBAR}
            v_mov_b32 v33, 1
            s_mov_b64 exec, 1
            buffer_atomic_add v33, v32, s[12:15], 0 offen sc1
            s_mov_b64 exec, -1
            C_noarr:
            """)
        if i == H1:
            a(f"v_mov_b32 v31, {D_READY}")
            T.vmop("buffer_load_dword v30, v31, s[12:15], 0 offen sc1", "rd")
        if i == H2:
            T.wait_vm("rd")
            a("v_readfirstlane_b32 s19, v30")
            a("s_cmp_lg_u32 s19, 0")
            a("s_cbranch_scc1 C_rdok")
            a("s_mov_b64 s[22:23], vcc")
            poll_ge(a, 31, 0, 1, 30, sleep=1, srd=12)
            a("s_mov_b64 vcc, s[22:23]")
            a(f"""
            C_rdok:
            v_lshrrev_b32 v36, 2, v{L16}
            v_and_b32 v36, 63, v36
            """)
            T.vmop("buffer_load_dword v37, v36, s[8:11], s29 offen sc1", "pg")
        if i == H3:
            assert state.get("arr")
            T.wait_vm("pg")
            a("s_mov_b32 s19, 0")
            a("s_mov_b32 s21, 0")
            a("s_branch C_kv0_chk")
            ch.gen_kvwait(a, "C_kv0", "F_fail", 36, 37)
            a(f"v_mov_b32 v31, {D_CBAR}")
            T.vmop("buffer_load_dwordx2 v[46:47], v31, s[12:15], 0 offen sc1", "cb")
            ch.gen_prefetch0(a, "sc1", T)
            T.vmop("buffer_load_dword v37, v36, s[8:11], s29 offen sc1", "pg")

    ch.gen_setup(a, o2, hook)
    if opt.get("tl"):
        a("v_mov_b32 v40, v254\nv_mov_b32 v41, v255")
        tstamp(a, opt, 1)
        a("v_mov_b32 v254, v40\nv_mov_b32 v255, v41")
        a("v_mov_b32 v41, 0")
        a("s_mov_b64 exec, 1")
        a("s_cmp_lg_u32 s17, 0")
        a("s_cbranch_scc1 C_nost")
        for i in range(9):
            a(f"v_mov_b32 v40, s{66+2*i}")
            a(f"buffer_store_dword v40, v41, s[8:11], s97 offen offset:{32+4*i}")
        a("C_nost:")
        a("s_mov_b64 exec, -1")
    a(f"""
    s_mov_b32 s21, 0
    s_branch C_cbchk
    C_cbl:
    buffer_load_dwordx2 v[46:47], v31, s[12:15], 0 offen sc1
    s_add_u32 s21, s21, 1
    s_cmp_gt_u32 s21, {TIMEOUT}
    s_cbranch_scc1 F_fail
    C_cbchk:
    s_waitcnt vmcnt(0)
    v_readfirstlane_b32 s19, v46
    v_readfirstlane_b32 s20, v47
    s_cmp_lt_u32 s19, 32
    s_cbranch_scc1 C_cbl
    s_mov_b32 s19, 0
    s_branch C_kv1_chk
    """)
    ch.gen_kvwait(a, "C_kv1", "F_fail", 36, 37)
    a("s_barrier")
    if opt.get("tl") or opt.get("dbg"):
        a("v_mov_b32 v40, v254\nv_mov_b32 v41, v255\nv_mov_b32 v42, v253")
        tstamp(a, opt, 2, 2)
        a("s_waitcnt vmcnt(0)")
        a("v_mov_b32 v254, v40\nv_mov_b32 v255, v41\nv_mov_b32 v253, v42")
    a(f"""
    s_cmp_lg_u32 s20, 0
    s_cbranch_scc1 CS_entry
    """)
    for pfx, sc in (("C", ""), ("CS", "sc1")):
        if pfx == "CS":
            a("CS_entry:")
        o3 = dict(opt)
        o3.update(sc=sc, xsc="sc1", fused=1)
        if CHN == 4:
            ch.gen_loop(a, o3, pfx)
        elif pfx == "C" or CHN > 5:
            ch.gen_loops(a, o3, pfx)
        else:
            ch.gen_loop(a, o3, pfx, 3, pfx)
        a(f"{pfx}_fail:")
        a("s_branch F_fail")
        a(f"""
        {pfx}_done:
        v_mov_b32 v32, 64
        s_waitcnt vmcnt(0)
        s_mov_b64 exec, 1
        buffer_store_dword v32, v{L16}, s[8:11], s28 offen sc1
        s_mov_b64 exec, -1
        """)
        tstamp(a, opt, 3, 3)
        a("s_endpgm")


XR, ACC = 24, 152


def gemm1_issue_weights(a):
    sn, dma = wk.gen_gemm1(a, None, 40, 0, "G1")


def gemm1_main(a, opt):
    a("s_waitcnt vmcnt(0)")
    a("s_barrier")
    for ks in range(16):
        for ct in range(4):
            for u in range(2):
                r = (ks * 4 + ct) * 4 + u * 2
                a(f"ds_read_b64_tr_b16 a[{r}:{r+1}], v{14+ct} offset:{ks*4096+u*512}")
        a("s_waitcnt lgkmcnt(0)")
    a(f"""
    s_and_b32 s19, s40, 63
    s_lshr_b32 s20, s19, 1                 ; head
    s_and_b32 s21, s40, 1                  ; half
    s_lshl_b32 s42, s17, 18
    s_lshl_b32 s22, s20, 13
    s_add_u32 s42, s42, s22                ; w*256K + h*8K
    s_lshl_b32 s44, s20, 7
    s_lshl_b32 s22, s21, 2
    s_add_u32 s44, s44, s22
    s_add_u32 s44, s44, {F_PG:#x}
    s_mov_b32 s43, 0x100000
    s_cmp_ge_u32 s40, 192
    s_cbranch_scc1 G_bH
    s_cmp_ge_u32 s40, 128
    s_cbranch_scc1 G_bQ
    s_lshl_b32 s22, s17, 4
    s_add_u32 s44, s44, s22
    s_cmp_ge_u32 s40, 64
    s_cbranch_scc1 G_bV
    s_lshl_b32 s22, s21, 11
    s_add_u32 s42, s42, s22
    s_lshr_b32 s48, s42, 1
    s_lshl_b32 s22, s21, 10
    s_add_u32 s48, s48, s22
    s_add_u32 s48, s48, {WS_KM:#x}         ; w*128K + h*4K + half*2K
    s_add_u32 s42, s42, {WS_KF:#x}
    s_branch G_bdone
    G_bV:
    s_add_u32 s44, s44, 8
    s_lshl_b32 s22, s21, 12
    s_add_u32 s42, s42, s22
    s_add_u32 s42, s42, {WS_VF:#x}
    s_branch G_bdone
    G_bQ:
    s_lshl_b32 s22, s17, 3
    s_add_u32 s44, s44, s22
    s_add_u32 s44, s44, 64
    s_lshl_b32 s22, s21, 11
    s_add_u32 s42, s42, s22
    s_lshl_b32 s22, s20, 12
    s_sub_u32 s48, s42, s22
    s_add_u32 s48, s48, {WS_OF:#x}         ; w*256K + h*4K + half*2K
    s_add_u32 s42, s42, {WS_QF:#x}
    s_branch G_bdone
    G_bH:
    s_sub_u32 s19, s40, 192
    s_lshl_b32 s44, s19, 4
    s_lshl_b32 s22, s17, 2
    s_add_u32 s44, s44, s22
    s_add_u32 s44, s44, {F_HP:#x}
    s_mul_i32 s42, s17, {2*43*1024}
    s_lshl_b32 s19, s19, 11
    s_add_u32 s42, s42, s19
    s_add_u32 s42, s42, {WS_HF:#x}
    s_mov_b32 s43, {8*43*1024}
    G_bdone:
    s_cmp_eq_u32 s40, 213
    s_cselect_b32 s20, 0x7ffff000, 0
    v_add_u32 v19, s20, v4
    v_lshlrev_b32 v20, 3, v1
    v_and_b32 v23, 63, v20
    """)
    if opt.get("hold"):
        a(f"s_cmp_lt_u32 s40, {opt['hold']-1}")
        a("s_cbranch_scc1 G_nohold")
        a(f"v_mov_b32 v252, {D_CBAR}")
        poll_ge(a, 252, 0, 32, 253, sleep=32, srd=12)
        a("G_nohold:")
    a(f"s_mov_b32 s22, {F_LN:#x}")
    poll_ge(a, 23, "s22", 1, 210, sleep=2, x2=True)
    tstamp(a, opt, 2, 5)
    order = [(ks, tt) for ks in range(16) for tt in range(2)]

    def ld(i):
        ks, tt = order[i]
        if ks % 4 == 0:
            a(f"s_add_u32 s{46+tt}, s45, {tt*16384 + ks*1024}")
        a(f"buffer_load_dwordx4 v[{XR+4*i}:{XR+4*i+3}], v4, s[8:11], s{46+tt} offen offset:{(ks%4)*1024} sc1")

    a(f"""
    s_lshl_b32 s45, s17, 15
    s_add_u32 s45, s45, {WS_XN:#x}
    """)
    for i in range(32):
        ld(i)
    a(f"""
    s_sub_u32 s19, s40, 192
    s_lshl_b32 s19, s19, 7
    s_cmp_lt_u32 s40, 192
    s_cselect_b32 s19, 0, s19
    buffer_load_dwordx2 v[200:201], v18, s[60:63], s19 offen
    buffer_load_dwordx2 v[202:203], v18, s[60:63], s19 offen offset:32
    buffer_load_dwordx2 v[204:205], v18, s[60:63], s19 offen offset:64
    buffer_load_dwordx2 v[206:207], v18, s[60:63], s19 offen offset:96
    buffer_load_dwordx2 v[208:209], v18, s[60:63], s19 offen offset:96
    s_mov_b32 s41, 0
    v_mov_b64 v[212:213], -1
    v_mov_b64 v[214:215], -1
    s_cmp_ge_u32 s40, 192
    s_cbranch_scc1 G_H
    s_cmp_ge_u32 s40, 128
    s_cbranch_scc1 G_Q_entry
    s_cmp_ge_u32 s40, 64
    s_cbranch_scc1 G_V
    """)

    def loop(kind):
        NX = {"K": 2, "Q": 4}.get(kind, 0)
        a(f"G_{kind}_entry:")
        for _ in range(NX):
            a("buffer_load_dwordx2 v[208:209], v18, s[60:63], s19 offen offset:96")
        a(f"G_{kind}:")
        a("""
        s_add_u32 s45, s45, 0x20000
        s_cmp_eq_u32 s41, 15
        s_cselect_b32 s45, 0x7ff00000, s45
        """)
        for i, (ks, tt) in enumerate(order):
            a(f"s_waitcnt vmcnt({36+NX})")
            for ct in range(4):
                d = ACC + (tt * 4 + ct) * 4
                w = (ks * 4 + ct) * 4
                x = XR + 4 * i
                c = "0" if ks == 0 else f"v[{d}:{d+3}]"
                if kind == "V":
                    a(f"v_mfma_f32_16x16x32_bf16 v[{d}:{d+3}], v[{x}:{x+3}], a[{w}:{w+3}], {c}")
                else:
                    a(f"v_mfma_f32_16x16x32_bf16 v[{d}:{d+3}], a[{w}:{w+3}], v[{x}:{x+3}], {c}")
            ld(i)
        a("s_waitcnt vmcnt(32)")
        flag_store(a, "s41", "s44", 21)
        if kind == "V":
            for ct in range(4):
                d0 = ACC + ct * 4
                d1 = ACC + (4 + ct) * 4
                a(f"""
                v_cvt_pk_bf16_f32 v{d0}, v{d0}, v{d0+1}
                v_cvt_pk_bf16_f32 v{d0+1}, v{d0+2}, v{d0+3}
                v_cvt_pk_bf16_f32 v{d0+2}, v{d1}, v{d1+1}
                v_cvt_pk_bf16_f32 v{d0+3}, v{d1+2}, v{d1+3}
                buffer_store_dwordx4 v[{d0}:{d0+3}], v4, s[8:11], s42 offen offset:{ct*1024} sc1
                """)
        elif kind in "KQ":
            for j in range(NX):
                if j == 2:
                    a("s_add_u32 s19, s48, 0x20000")
                a(f"buffer_store_dwordx4 v[212:215], v4, s[8:11], s{48 if j < 2 else 19} offen offset:{(j&1)*1024} sc1")
            a(f"s_add_u32 s48, s48, {0x80000 if kind == 'K' else 0x100000:#x}")
            a("s_add_u32 s19, s42, 0x1000")
            for tt in range(2):
                for p in range(2):
                    d0 = ACC + (tt * 4 + p) * 4
                    d1 = d0 + 8
                    a(f"""
                    v_cvt_pk_bf16_f32 v{d0}, v{d0}, v{d0+1}
                    v_cvt_pk_bf16_f32 v{d0+1}, v{d0+2}, v{d0+3}
                    v_cvt_pk_bf16_f32 v{d0+2}, v{d1}, v{d1+1}
                    v_cvt_pk_bf16_f32 v{d0+3}, v{d1+2}, v{d1+3}
                    buffer_store_dwordx4 v[{d0}:{d0+3}], v4, s[8:11], s{42 if tt == 0 else 19} offen offset:{p*1024} sc1
                    """)
        else:
            a(f"s_add_u32 s19, s42, {43*1024}")
            for ct in range(4):
                for j in range(2):
                    a(f"v_lshlrev_b32 v{184+ct*4+2*j}, 16, v{200+2*ct+j}")
                    a(f"v_and_b32 v{184+ct*4+2*j+1}, 0xffff0000, v{200+2*ct+j}")
            for tt in range(2):
                for p in range(2):
                    d0 = ACC + (tt * 4 + 2 * p) * 4
                    for j in range(4):
                        r0 = d0 + 2 * j
                        bi = 184 + (2 * p + (j >> 1)) * 4 + (j & 1) * 2
                        a(f"""
                        v_cvt_pk_bf16_f32 v{r0+1}, v{r0}, v{r0+1}
                        v_lshlrev_b32 v{r0}, 16, v{r0+1}
                        v_and_b32 v{r0+1}, 0xffff0000, v{r0+1}
                        v_add_f32 v{r0}, v{r0}, v{bi}
                        v_add_f32 v{r0+1}, v{r0+1}, v{bi+1}
                        v_cvt_pk_bf16_f32 v{r0+1}, v{r0}, v{r0+1}
                        v_lshlrev_b32 v{r0}, 16, v{r0+1}
                        v_and_b32 v{r0+1}, 0xffff0000, v{r0+1}
                        v_max_f32 v{r0}, 0, v{r0}
                        v_max_f32 v{r0+1}, 0, v{r0+1}
                        v_mul_f32 v{r0}, v{r0}, v{r0}
                        v_mul_f32 v{r0+1}, v{r0+1}, v{r0+1}
                        v_cvt_pk_bf16_f32 v{d0+j}, v{r0}, v{r0+1}
                        """)
                    va = 4 if p == 0 else 19
                    a(f"buffer_store_dwordx4 v[{d0}:{d0+3}], v{va}, s[8:11], s{42 if tt == 0 else 19} offen offset:{p*1024} sc1")
        a(f"""
        s_add_u32 s42, s42, s43
        s_add_u32 s41, s41, 1
        s_cmp_eq_u32 s41, 1
        s_cbranch_scc1 G_{kind}_first
        s_cmp_lt_u32 s41, 16
        s_cbranch_scc1 G_{kind}
        s_branch G_end
        G_{kind}_first:
        s_waitcnt vmcnt(0)
        """)
        flag_store(a, "s41", "s44", 21)
        poll_ge(a, 20, "s22", 1, 210, sleep=2, x2=True)
        a(f"s_branch G_{kind}")

    for kind in "KQVH":
        loop(kind)
    a("G_end:")
    a("s_waitcnt vmcnt(0)")
    flag_store(a, "16", "s44", 21)
    a(f"""
    s_barrier
    G_add:
    s_cmp_lg_u32 s17, 0
    s_cbranch_scc1 G_noadd
    v_lshlrev_b32 v20, 7, v1
    v_mov_b32 v21, 1
    s_mov_b32 s19, {F_G1:#x}
    s_mov_b64 exec, 0xffffffff
    buffer_atomic_add v21, v20, s[8:11], s19 offen sc1
    s_mov_b64 exec, -1
    G_noadd:
    """)


def lane_ids(a):
    a("""
    v_and_b32 v120, 15, v1
    v_lshrrev_b32 v121, 4, v1
    v_lshrrev_b32 v122, 2, v120
    v_and_b32 v123, 3, v120
    """)


L_ATT = wk.L_RED + 0x4000
Q_, K_, V_, KVM_, KA_, S_ = 24, 40, 72, 104, 120, 128


def attn_consts(a):
    a(f"""
    s_lshr_b32 s19, s17, 1
    s_lshl_b32 s24, s43, 1
    s_add_u32 s24, s24, s19
    s_lshl_b32 s25, s24, 7
    s_add_u32 s25, s25, {F_PG:#x}
    s_lshl_b32 s19, s17, 11
    s_add_u32 s19, s19, {L_ATT:#x}
    v_lshrrev_b32 v20, 3, v120
    v_xor_b32 v21, v121, v20
    v_lshlrev_b32 v2, 8, v20
    v_lshl_add_u32 v2, v21, 6, v2
    v_and_b32 v21, 7, v120
    v_lshl_add_u32 v2, v21, 3, v2
    v_add_u32 v2, s19, v2
    v_lshrrev_b32 v20, 1, v121
    v_xor_b32 v21, v123, v20
    v_lshlrev_b32 v3, 8, v20
    v_lshl_add_u32 v3, v21, 6, v3
    v_and_b32 v21, 1, v121
    v_lshl_add_u32 v3, v21, 5, v3
    v_lshl_add_u32 v3, v122, 3, v3
    v_add_u32 v3, s19, v3
    s_mov_b32 s73, {f2u(wk.C_SCALE):#x}
    s_mov_b32 s72, {f2u(wk.LOG2E):#x}
    s_and_b32 s19, s41, 1
    s_lshl_b32 s19, s19, 4
    v_add_u32 v20, s19, v120
    v_lshlrev_b32 v21, 2, v121
    v_lshl_add_u32 v10, v120, 10, v11
    s_and_b32 s19, s17, 1
    s_lshl_b32 s19, s19, 10
    s_add_u32 s19, s19, {wk.L_RED:#x}
    v_add_u32 v19, s19, v4
    """)
    for t in range(2):
        for i in range(4):
            a(f"v_add_u32 v22, {16*t+i}, v21")
            a(f"v_cmp_le_u32 s[{56+8*t+2*i}:{57+8*t+2*i}], v22, v20")


def round_scale(a, r0, r1):
    a(f"""
    v_cvt_pk_bf16_f32 v{r1}, v{r0}, v{r1}
    v_lshlrev_b32 v{r0}, 16, v{r1}
    v_and_b32 v{r1}, 0xffff0000, v{r1}
    v_mul_f32 v{r0}, s73, v{r0}
    v_mul_f32 v{r1}, s73, v{r1}
    v_cvt_pk_bf16_f32 v{r1}, v{r0}, v{r1}
    v_lshlrev_b32 v{r0}, 16, v{r1}
    v_and_b32 v{r1}, 0xffff0000, v{r1}
    """)


def attn_task(a, opt):
    S0, S1, DE, DO = S_, S_ + 4, S_ + 8, S_ + 12
    T0, T1, NEG = S_ + 16, S_ + 17, S_ + 18
    P, PM = S_ + 20, S_ + 24
    O = 160
    a(f"""
    s_lshr_b32 s26, s42, 1
    s_lshl_b32 s19, s26, 18
    s_lshl_b32 s20, s24, 13
    s_add_u32 s19, s19, s20
    s_and_b32 s20, s42, 1
    s_lshl_b32 s20, s20, 12
    s_add_u32 s20, s20, s19
    s_add_u32 s20, s20, {WS_QF:#x}
    """)
    for i in range(4):
        a(f"buffer_load_dwordx4 v[{Q_+4*i}:{Q_+4*i+3}], v4, s[8:11], s20 offen offset:{i*1024} sc1")
    for hh in range(2):
        a(f"s_add_u32 s20, s19, {WS_KF + hh*4096:#x}")
        for i in range(4):
            r = K_ + (hh * 4 + i) * 4
            a(f"buffer_load_dwordx4 v[{r}:{r+3}], v4, s[8:11], s20 offen offset:{i*1024} sc1")
    a(f"""
    s_and_b32 s20, s17, 1
    s_lshl_b32 s20, s20, 12
    s_add_u32 s20, s20, s19
    s_add_u32 s20, s20, {WS_VF:#x}
    """)
    for i in range(4):
        a(f"buffer_load_dwordx4 v[{V_+4*i}:{V_+4*i+3}], v4, s[8:11], s20 offen offset:{i*1024} sc1")
    a(f"""
    s_lshl_b32 s23, s42, 14
    buffer_load_dwordx2 v[16:17], v10, s[48:51], s23 offen
    s_waitcnt vmcnt(5)
    """)
    for t, d in ((0, S0), (1, S1)):
        for f in range(4):
            c = "0" if f == 0 else f"v[{d}:{d+3}]"
            a(f"v_mfma_f32_16x16x32_bf16 v[{d}:{d+3}], v[{K_+16*t+4*f}:{K_+16*t+4*f+3}], v[{Q_+4*f}:{Q_+4*f+3}], {c}")
    a(f"v_mov_b32 v{NEG}, {f2u(-1e30):#x}")
    a(f"v_mov_b32 v{PM}, 0")
    a(f"v_mov_b32 v{PM+3}, 0")
    for j in range(0, 8, 2):
        round_scale(a, S0 + j, S0 + j + 1)
    for j in range(8):
        a(f"v_cndmask_b32 v{S0+j}, v{NEG}, v{S0+j}, s[{56+2*j}:{57+2*j}]")
    a(f"""
    v_max3_f32 v{T0}, v{S0}, v{S0+1}, v{S0+2}
    v_max3_f32 v{T0}, v{T0}, v{S0+3}, v{S0+4}
    v_max3_f32 v{T0}, v{T0}, v{S0+5}, v{S0+6}
    v_max_f32 v{T0}, v{T0}, v{S0+7}
    s_lshl_b32 s19, s26, 17
    s_lshl_b32 s20, s24, 12
    s_add_u32 s19, s19, s20
    s_add_u32 s19, s19, {WS_KM:#x}
    s_and_b32 s20, s17, 1
    s_lshl_b32 s20, s20, 11
    s_add_u32 s22, s19, s20
    s_xor_b32 s19, s22, 0x800
    s_mov_b32 s21, 0
    """)
    if CHN > 4:
        a("s_add_u32 s26, s26, 1")
        a("s_min_u32 s26, s26, 63")
    lab = a.uid("CF")
    a(f"""
    {lab}:
    buffer_load_dwordx4 v[20:23], v18, s[8:11], s25 offen offset:96 sc1
    s_add_u32 s21, s21, 1
    s_cmp_gt_u32 s21, {TIMEOUT}
    s_cbranch_scc1 F_fail
    s_waitcnt vmcnt(0)
    v_readfirstlane_b32 s20, v20
    s_cmp_ge_u32 s20, s26
    s_cbranch_scc1 {lab}_ok
    s_add_u32 s20, s20, 1
    s_cmp_ge_u32 s20, s26
    s_cbranch_scc1 {lab}_s
    s_sleep 16
    s_add_u32 s20, s20, 2
    s_cmp_ge_u32 s20, s26
    s_cbranch_scc1 {lab}
    s_sleep 80
    {lab}_s:
    s_sleep {opt.get('cfs', 4)}
    s_branch {lab}
    {lab}_ok:
    """)
    for w in range(4):
        a(f"buffer_load_dwordx4 v[{KVM_+4*w}:{KVM_+4*w+3}], v4, s[8:11], s{22 if w < 2 else 19} offen offset:{(w&1)*1024} sc1")
    a(f"""
    s_add_u32 s21, s21, 1
    s_cmp_gt_u32 s21, {TIMEOUT}
    s_cbranch_scc1 F_fail
    """)
    for w in range(4):
        a(f"s_waitcnt vmcnt({3-w})")
        a(f"ds_write_b64 v{2 if w < 2 else 5}, v[{KVM_+4*w}:{KVM_+4*w+1}] offset:{(w&1)*512}")
        r = KVM_ + 4 * w
        if w == 0:
            a(f"v_max3_u32 v20, v{r}, v{r+1}, v{r+2}")
            a(f"v_max_u32 v20, v20, v{r+3}")
        else:
            a(f"v_max3_u32 v20, v20, v{r}, v{r+1}")
            a(f"v_max3_u32 v20, v20, v{r+2}, v{r+3}")
    for w in range(4):
        a(f"ds_read_b64_tr_b16 v[{KA_+2*w}:{KA_+2*w+1}], v3 offset:{w*512}")
    a(f"""
    v_cmp_eq_u32 vcc, -1, v20
    s_cbranch_vccnz {lab}_ok
    """)
    tstamp(a, opt, 6)
    a(f"""
    s_lshl_b32 s19, s42, 17
    s_lshl_b32 s20, s43, 13
    s_add_u32 s20, s19, s20
    s_lshl_b32 s22, s17, 11
    s_add_u32 s20, s20, s22
    s_add_u32 s20, s20, {WS_OF:#x}
    s_lshl_b32 s22, s17, 15
    s_add_u32 s19, s19, s22
    s_add_u32 s19, s19, {WS_OF:#x}
    s_waitcnt lgkmcnt(2)
    v_mfma_f32_16x16x32_bf16 v[{DE}:{DE+3}], v[{KA_}:{KA_+3}], v[{Q_}:{Q_+3}], 0
    v_mfma_f32_16x16x32_bf16 v[{DO}:{DO+3}], v[{KA_}:{KA_+3}], v[{Q_+4}:{Q_+7}], 0
    s_waitcnt lgkmcnt(0)
    v_mfma_f32_16x16x32_bf16 v[{DE}:{DE+3}], v[{KA_+4}:{KA_+7}], v[{Q_+8}:{Q_+11}], v[{DE}:{DE+3}]
    v_mfma_f32_16x16x32_bf16 v[{DO}:{DO+3}], v[{KA_+4}:{KA_+7}], v[{Q_+12}:{Q_+15}], v[{DO}:{DO+3}]
    v_add_f32 v{DE}, v{DE}, v{DO+2}
    v_add_f32 v{DE+1}, v{DE+1}, v{DO+3}
    """)
    round_scale(a, DE, DE + 1)
    a(f"v_max3_f32 v{T0}, v{T0}, v{DE}, v{DE+1}")
    xreduce_max(a, T0, T1)
    regs = list(range(S0, S0 + 10))
    for r in regs:
        a(f"v_sub_f32 v{r}, v{r}, v{T0}")
    for r in regs:
        a(f"v_mul_f32 v{r}, s72, v{r}")
    for r in regs:
        a(f"v_exp_f32 v{r}, v{r}")
    a(f"v_add_f32 v{T0}, v{regs[0]}, v{regs[1]}")
    for r in regs[2:]:
        a(f"v_add_f32 v{T0}, v{T0}, v{r}")
    xreduce_add(a, T0, T1)
    a(f"v_rcp_f32 v{T0}, v{T0}")
    for r in regs:
        a(f"v_mul_f32 v{r}, v{r}, v{T0}")
    for j in range(4):
        a(f"v_cvt_pk_bf16_f32 v{P+j}, v{S0+2*j}, v{S0+2*j+1}")
    a(f"v_cvt_pk_bf16_f32 v{PM+1}, v{DE}, v{DE+1}")
    a(f"v_cvt_pk_bf16_f32 v{PM+2}, v{DE}, v{DE+1}")
    for et in range(4):
        d = O + 4 * et
        a(f"v_mfma_f32_16x16x32_bf16 v[{d}:{d+3}], v[{V_+4*et}:{V_+4*et+3}], v[{P}:{P+3}], 0")
    for et in range(4):
        d = O + 4 * et
        vm = KVM_ + 4 * (et >> 1) + 2
        b = PM + 2 if et % 2 == 0 else PM
        a(f"v_mfma_f32_16x16x16_bf16 v[{d}:{d+3}], v[{vm}:{vm+1}], v[{b}:{b+1}], v[{d}:{d+3}]")
    a("s_cmp_lg_u32 s27, 0")
    for k4 in range(2):
        d0 = O + 8 * k4
        d1 = d0 + 4
        a(f"""
        v_cvt_pk_bf16_f32 v{d0}, v{d0}, v{d0+1}
        v_cvt_pk_bf16_f32 v{d0+1}, v{d0+2}, v{d0+3}
        v_cvt_pk_bf16_f32 v{d0+2}, v{d1}, v{d1+1}
        v_cvt_pk_bf16_f32 v{d0+3}, v{d1+2}, v{d1+3}
        """)
    a("s_cbranch_scc1 W_oslow")
    for k4 in range(2):
        a(f"buffer_store_dwordx4 v[{O+8*k4}:{O+8*k4+3}], v4, s[8:11], s20 offen offset:{k4*1024}")
    a("s_branch W_odone")
    a("W_oslow:")
    for k4 in range(2):
        a(f"buffer_store_dwordx4 v[{O+8*k4}:{O+8*k4+3}], v4, s[8:11], s20 offen offset:{k4*1024} sc1")
    a("W_odone:")


def out_task(a, opt, gsrc):
    A = wk.ACC7
    a(f"""
    s_mov_b32 s21, 0
    W_pre:
    buffer_load_dword v20, v6, s[8:11], s19 offen sc1
    s_add_u32 s21, s21, 1
    s_cmp_gt_u32 s21, {TIMEOUT}
    s_cbranch_scc1 F_fail
    s_waitcnt vmcnt(0)
    v_cmp_eq_u32 vcc, -1, v20
    s_cbranch_vccnz W_pre
    """)
    tstamp(a, opt, 7)
    for ks in range(32):
        if ks % 4 == 0:
            a(f"s_add_u32 s20, s19, {ks*1024}")
        a(f"buffer_load_dwordx4 v[{24+4*ks}:{24+4*ks+3}], v4, s[8:11], s20 offen offset:{(ks%4)*1024} sc1")
    for ks in range(32):
        r = 24 + 4 * ks
        a(f"s_waitcnt vmcnt({31 - ks})")
        for ct in range(2):
            d = A + ct * 4
            w = (ks * 2 + ct) * 4
            c = "0" if ks == 0 else f"v[{d}:{d+3}]"
            a(f"v_mfma_f32_16x16x32_bf16 v[{d}:{d+3}], a[{w}:{w+3}], v[{r}:{r+3}], {c}")
            a(f"v_max3_u32 v20, v20, v{r+2*ct}, v{r+2*ct+1}")
    a(f"""
    v_cmp_eq_u32 vcc, -1, v20
    s_cbranch_vccnz W_pre
    ds_write_b128 v8, v[{A}:{A+3}]
    ds_write_b128 v8, v[{A+4}:{A+7}] offset:1024
    v_lshlrev_b32 v28, 16, v16
    v_and_b32 v29, 0xffff0000, v16
    v_lshlrev_b32 v30, 16, v17
    v_and_b32 v31, 0xffff0000, v17
    s_add_u32 s23, s23, s28
    s_waitcnt lgkmcnt(0)
    s_barrier
    """)
    for w in range(4):
        a(f"ds_read_b128 v[{A+4*w}:{A+4*w+3}], v19 offset:{w*4096}")
    a("v_xor_b32 v8, 0x800, v8")
    a("v_xor_b32 v19, 0x800, v19")
    a("s_waitcnt lgkmcnt(2)")
    for i in range(4):
        a(f"v_add_f32 v{A+i}, v{A+i}, v{A+4+i}")
    a("s_waitcnt lgkmcnt(0)")
    for i in range(4):
        a(f"v_add_f32 v{A+8+i}, v{A+8+i}, v{A+12+i}")
    for i in range(4):
        a(f"v_add_f32 v{24+i}, v{A+i}, v{A+8+i}")
    wk.round4(a, 24)
    for i in range(4):
        a(f"v_mul_f32 v{24+i}, v{24+i}, v{gsrc+i}")
    wk.round4(a, 24)
    for i in range(4):
        a(f"v_add_f32 v{24+i}, v{24+i}, v{28+i}")
    a("""
    v_cvt_pk_bf16_f32 v24, v24, v25
    v_cvt_pk_bf16_f32 v25, v26, v27
    buffer_store_dwordx2 v[24:25], v10, s[52:55], s23 offen
    """)


def worker(a, opt):
    GST = wk.GST
    a("F_worker:")
    a("s_sub_u32 s40, s16, 32")
    lane_ids(a)
    srd_from_arg(a, 76, ARG_X, 2 << 20)
    a("s_sub_u32 s41, 223, s40")
    LX = L_TK + 64

    def ln_flag():
        wait_ready(a)
        lab = a.uid("LF")
        a(f"""
        s_barrier
        s_cmp_lg_u32 s17, 0
        s_cbranch_scc1 {lab}
        s_lshl_b32 s19, s41, 2
        s_add_u32 s19, s19, {F_LN:#x}
        """)
        flag_store(a, "1", "s19", 21)
        a(f"{lab}:")

    a("s_cmp_lt_u32 s40, 128")
    a("s_cbranch_scc1 W_kv")
    wk.gen_ln(a, 41, 76, LX, part="load")
    srd_from_arg(a, 76, ARG_WO, 4 << 20)
    a("""
    s_sub_u32 s19, s40, 128
    s_lshl_b32 s19, s19, 16
    v_lshlrev_b32 v76, 7, v0
    buffer_load_dword v77, v76, s[76:79], s19 offen
    s_add_u32 s19, s19, 0x8000
    buffer_load_dword v78, v76, s[76:79], s19 offen
    """)
    wk.gen_ln(a, 41, 76, LX, sc="sc1", part="compute", pending=2)
    confirm(a, opt, L_TK, 20, 21)
    ln_flag()
    a("s_cmp_lt_u32 s40, 214")
    a("s_cbranch_scc0 G_add")
    gemm1_issue_weights(a)
    a("s_branch W_main")
    a("W_kv:")
    a("s_cmp_lt_u32 s40, 96")
    a("s_cbranch_scc1 W_noln")
    wk.gen_ln(a, 41, 76, LX, part="load")
    a("W_noln:")
    if opt.get("stag"):
        a(f"""
        s_and_b32 s19, s40, 31
        W_stag:
        s_sleep {opt['stag']}
        s_sub_u32 s19, s19, 1
        s_cbranch_scc0 W_stag
        """)
    gemm1_issue_weights(a)
    a("s_waitcnt vmcnt(16)")
    confirm(a, opt, L_TK, 20, 21)
    a("s_cmp_lt_u32 s40, 96")
    a("s_cbranch_scc1 W_noln2")
    wk.gen_ln(a, 41, 76, LX, sc="sc1", part="compute", pending=18)
    ln_flag()
    a("s_branch W_main")
    a("W_noln2:")
    wait_ready(a)
    a("W_main:")
    tstamp(a, opt, 1)
    gemm1_main(a, opt)
    a("W_c:")
    tstamp(a, opt, 3, 6)
    a("""
    s_lshr_b32 s41, s40, 4
    s_and_b32 s43, s40, 15
    """)
    lane_ids(a)
    wk.gen_out_consts(a, 43)
    attn_consts(a)
    a("s_barrier")
    wk.gen_gate_setup(a)
    a(f"""
    s_cmp_lg_u32 s17, 0
    s_cbranch_scc1 W_nopoll
    s_and_b32 s22, s40, 31
    s_lshl_b32 s22, s22, 7
    s_add_u32 s22, s22, {F_G1:#x}
    s_movk_i32 s23, 224
    v_mov_b32 v20, 0
    """)
    poll_ge(a, 20, "s22", "s23", 22, sleep=16)
    a(f"""
    W_nopoll:
    s_barrier
    v_mov_b32 v18, 0
    buffer_load_dword v23, v18, s[12:15], 0 offen offset:{D_SLOW} sc1
    s_mov_b32 s42, s41
    W_gate:
    """)
    for i in range(0, 16, 2):
        a(f"v_mov_b64 v[{GST+i}:{GST+i+1}], v[{GST+i+4}:{GST+i+5}]")
    wk.gen_gate(a, 42, GST + 16, "sc1", mul=1, dt=14)
    a(f"""
    s_add_u32 s42, s42, 28
    s_cmp_lt_u32 s42, 128
    s_cbranch_scc1 W_gate
    v_readfirstlane_b32 s27, v23
    """)
    if opt.get("oslow"):
        a("s_mov_b32 s27, 1")
    tstamp(a, opt, 4)
    wk.gen_wo_setup(a)
    a(f"""
    s_and_b32 s19, s17, 1
    s_lshl_b32 s19, s19, 10
    v_add_u32 v2, s19, v2
    v_xor_b32 v5, 0x400, v2
    v_and_b32 v6, 31, v1
    v_lshlrev_b32 v6, 10, v6
    v_lshrrev_b32 v7, 5, v1
    v_mul_u32_u24 v7, 0x3fc, v7
    v_add_u32 v6, v6, v7
    s_mov_b32 s42, s41
    s_lshr_b32 s28, s17, 1
    s_lshl_b32 s28, s28, 30
    s_barrier
    """)
    tstamp(a, opt, 5, 7)
    a("W_seg:")
    attn_task(a, opt)
    out_task(a, opt, GST)
    tstamp(a, opt, 8, 4)
    if opt.get("tl"):
        a("s_cmp_lt_u32 s42, 42")
        a("s_cselect_b32 s19, 0, 12")
        a("s_add_u32 s97, s97, s19")
    a(f"""
    s_xor_b32 s28, s28, 0x40000000
    s_add_u32 s42, s42, 14
    s_sub_u32 s19, s42, s41
    s_bitcmp1_b32 s19, 1
    s_cbranch_scc1 W_norot
    """)
    for i in range(0, 16, 2):
        a(f"v_mov_b64 v[{GST+i}:{GST+i+1}], v[{GST+i+4}:{GST+i+5}]")
    a(f"""
    W_norot:
    s_cmp_lt_u32 s42, 128
    s_cbranch_scc1 W_seg
    s_endpgm
    F_fail:
    v_mov_b32 v32, 0xdead
    v_mov_b32 v33, {D_FAIL}
    s_mov_b64 exec, 1
    buffer_store_dword v32, v33, s[12:15], 0 offen
    F_exit:
    s_endpgm
    """)


NAME = "recurrent_scan__memory_aug_recurrent_mem_tr__dense_activation_squared_relu__prompt"
DEF = dict(depth=2, pre1=42, pre2=55, gap1=40, gap2=40)
if CHN == 5:
    DEF.update(nw1=4, s10="28:3,30:3", s11="36:3,30:3", s12="46:3,30:3", s13="56:3,30:3",
               s20="80:3,40:3", s21="70:3,40:3", s22="60:3,40:3", s23="50:3,40:3")


def build(path, opt):
    o = dict(DEF)
    o.update(opt)
    hdr = open(f"cdna_kernels/{NAME}.s.ref").read().split("; Override launch")[0]
    a = Asm()
    for ln in hdr.strip().split("\n"):
        a.raw(ln)
    kn = NAME + "_kernel" if o.get("single") else "fused_kernel"
    if o.get("single"):
        a.raw(f"; @launch grid=(256,1,1) block=(256,1,1) lds={ch.LDS_BYTES}")
    else:
        a.raw(f"; @launch kernel=fused_kernel grid=(256,1,1) block=(256,1,1) lds={ch.LDS_BYTES}")
    a.raw('.amdgcn_target "amdgcn-amd-amdhsa--gfx950"')
    a.raw(".text")
    kernel_header(a, kn)
    prologue(a, o)
    chain_role(a, o)
    worker(a, o)
    loser(a, o)
    a.lines = ch.hoist_waits(a.lines)
    a.lines = hazard.fix(a.lines, True)
    a.raw('.section .rodata,"a"')
    a.raw(".p2align 6")
    a.raw(kernel_desc(kn, 512, 256))
    open(path, "w").write(a.text())


if __name__ == "__main__":
    opt = {}
    for kv in sys.argv[2:]:
        k, v = kv.split("=")
        opt[k] = v if k in ("sc", "xsc", "lnt") or ":" in v else int(v)
    build(sys.argv[1], opt)
```
